```python
import torch

def _softmax(x, axis=-1):
    return torch.softmax(x, dim=axis)
def _gelu(x):
    return torch.nn.functional.gelu(x, approximate="tanh")
def _silu(x):
    return torch.nn.functional.silu(x)
def _sigmoid(x):
    return torch.sigmoid(x)
def _layernorm(x, axis=-1, eps=1e-5):
    m = x.mean(dim=axis, keepdim=True)
    v = x.var(dim=axis, keepdim=True, unbiased=False)
    return (x - m) / torch.sqrt(v + eps)
def _scatter_add(tgt, idx, src, axis=0):
    return tgt.clone().index_add_(axis, idx, src)
def _segment_sum(src, seg, n):
    out = torch.zeros((n,) + src.shape[1:], dtype=src.dtype)
    return out.index_add_(0, seg, src)
def _pad(x, pw):
    flat = tuple(v for pair in reversed(pw) for v in pair)
    return torch.nn.functional.pad(x, flat)

kernel_name = 'gated_mix__sliding_local_dilated__softmax_full_mha__prompt'

def setup_inputs():

    _w = (lambda a: (lambda t: t.to(torch.bfloat16) if t.is_floating_point() else t)(torch.as_tensor(a)))
    def _A_setup():
        B, S, D = 1, 2048, 512
        return {
            "x": _w((lambda *s: torch.randn(*s, dtype=torch.bfloat16) * 0.05)(B, S, D)),
            "wqkv": _w((lambda *s: torch.randn(*s, dtype=torch.bfloat16) * 1.6)(D, 3 * D)),
            "wo": _w((lambda *s: torch.randn(*s, dtype=torch.bfloat16) * 0.05)(D, D)),
        }
    _A_in = _A_setup()

    def _B_setup():
        B, S, D = 1, 2048, 512
        return {
            "x": _w((lambda *s: torch.randn(*s, dtype=torch.bfloat16) * 0.05)(B, S, D)),
            "wqkv": _w((lambda *s: torch.randn(*s, dtype=torch.bfloat16) * 1.6)(D, 3 * D)),
            "wo": _w((lambda *s: torch.randn(*s, dtype=torch.bfloat16) * 0.1)(D, D)),
        }
    _B_in = _B_setup()

    return {
        "A_x": _A_in["x"],
        "A_wqkv": _A_in["wqkv"],
        "A_wo": _A_in["wo"],
        "B_x": _B_in["x"],
        "B_wqkv": _B_in["wqkv"],
        "B_wo": _B_in["wo"],
        "gate_w": _w((lambda *s: torch.randn(*s, dtype=torch.bfloat16) * 0.05)(512) * 16.0),
    }

def reference(A_x, A_wqkv, A_wo, B_x, B_wqkv, B_wo, gate_w):
    def _A_ref(x, wqkv, wo):
        B, S, D = x.shape
        H = 32; Dh = D // H
        W, dil = 8, 2
        qkv = (lambda x, *d: x.permute(*d))((x @ wqkv).reshape(B, S, 3, H, Dh), 2, 0, 3, 1, 4)
        q, k, v = qkv[0], qkv[1], qkv[2]
        scale = Dh ** -0.5
        pos = torch.arange(S)
        off = torch.arange(W) * dil
        idx = pos[:, None] - off[None, :]
        mask = idx >= 0
        idx_c = torch.where(mask, idx, 0).reshape(-1)
        kg = k[:, :, idx_c, :].reshape(B, H, S, W, Dh)
        vg = v[:, :, idx_c, :].reshape(B, H, S, W, Dh)
        logits = torch.einsum("bhsd,bhswd->bhsw", q, kg) * scale
        logits = torch.where(mask[None, None, :, :], logits, -1e9)
        attn = _softmax(logits, axis=-1)
        o = torch.einsum("bhsw,bhswd->bhsd", attn, vg)
        return (lambda x, *d: x.permute(*d))(o, 0, 2, 1, 3).reshape(B, S, D) @ wo

    def _B_ref(x, wqkv, wo):
        B, S, D = x.shape
        H = 32; Dh = D // H
        qkv = (lambda x, *d: x.permute(*d))((x @ wqkv).reshape(B, S, 3, H, Dh), 2, 0, 3, 1, 4)
        q, k, v = qkv[0], qkv[1], qkv[2]
        scale = Dh ** -0.5
        scores = torch.einsum("bhqd,bhkd->bhqk", q, k) * scale
        p = _softmax(scores, axis=-1)
        o = torch.einsum("bhqk,bhkd->bhqd", p, v)
        return (lambda x, *d: x.permute(*d))(o, 0, 2, 1, 3).reshape(B, S, D) @ wo

    x = A_x
    g = _sigmoid((x * gate_w).sum(-1, keepdims=True))
    a = _A_ref(x, A_wqkv, A_wo)
    b = _B_ref(x, B_wqkv, B_wo)
    return g * a + (1 - g) * b
```

```python
class Asm:
    def __init__(self):
        self.lines = []
    def __call__(self, s=""):
        for l in s.split("\n"):
            l = l.strip()
            if not l:
                continue
            if l.endswith(":") or l.startswith("."):
                self.lines.append(l)
            else:
                self.lines.append("    " + l)
    def c(self, s):
        self.lines.append("    ; " + s)
    def text(self):
        return "\n".join(self.lines) + "\n"

def vr(base, n=1):
    return f"v{base}" if n == 1 else f"v[{base}:{base+n-1}]"
def sr(base, n=1):
    return f"s{base}" if n == 1 else f"s[{base}:{base+n-1}]"

def kd(name, nvgpr, nsgpr=102):
    acc = ((nvgpr + 3)//4)*4
    return f""".section .rodata,"a"
.p2align 6
.amdhsa_kernel {name}
  .amdhsa_next_free_vgpr {nvgpr}
  .amdhsa_next_free_sgpr {nsgpr}
  .amdhsa_accum_offset {acc}
  .amdhsa_group_segment_fixed_size 0
  .amdhsa_kernarg_size 80
  .amdhsa_user_sgpr_count 2
  .amdhsa_user_sgpr_kernarg_segment_ptr 1
  .amdhsa_system_sgpr_workgroup_id_x 1
.end_amdhsa_kernel
"""
```

```python
import sys, math, struct
from asmlib import *

MB = 1 << 20
WS_QB, WS_KB, WS_VB = 0, 2*MB, 4*MB
WS_QA, WS_KA, WS_VA = 6*MB, 8*MB, 10*MB
WS_OA, WS_OB, WS_G = 12*MB, 14*MB, 16*MB
WS_SIZE = 17*MB
QSCALE = 0.25 * math.log2(math.e)
def f2u(x): return struct.unpack("<I", struct.pack("<f", x))[0]

def code_prefetch(a, start, end, vtmp, vdst, slo):
    a(f"s_getpc_b64 s[{slo}:{slo+1}]")
    lab = f"Lpc_{start}_{vtmp}"
    a(f"{lab}:")
    a(f"s_sub_u32 s{slo}, s{slo}, {lab}-{start}")
    a(f"s_subb_u32 s{slo+1}, s{slo+1}, 0")
    a(f"v_lshlrev_b32 v{vtmp}, 7, v1")
    a(f"v_min_u32 v{vtmp}, {end}-{start}-4, v{vtmp}")
    a(f"global_load_dword v{vdst}, v{vtmp}, s[{slo}:{slo+1}]")

def gen_k1(a, opt):
    a(".p2align 8")
    a(".globl qkv_kernel")
    a(".type qkv_kernel,@function")
    a("qkv_kernel:")
    a("s_cmp_ge_u32 s2, 256")
    a("s_cbranch_scc1 L1_end")
    a("s_load_dwordx4 s[4:7], s[0:1], 0")
    a("s_load_dwordx2 s[8:9], s[0:1], 32")
    a("s_load_dwordx2 s[10:11], s[0:1], 72")
    a("v_lshrrev_b32 v2, 6, v0")
    a("v_and_b32 v1, 63, v0")
    a("v_readfirstlane_b32 s20, v2")
    a("s_and_b32 s21, s2, 7")
    a("s_lshr_b32 s22, s2, 3")
    a("s_and_b32 s23, s22, 1")
    a("s_lshr_b32 s22, s22, 1")
    a("s_cmp_ge_u32 s20, 4")
    a("s_cbranch_scc0 L1_compute")
    a("s_sub_u32 s20, s20, 4")
    a("v_lshrrev_b32 v5, 3, v1")
    a("v_lshrrev_b32 v6, 4, v1")
    a("v_and_b32 v7, 7, v1")
    a("v_xor_b32 v8, v7, v6")
    a("v_xor_b32 v9, 4, v8")
    a("v_lshlrev_b32 v2, 11, v5")
    a("v_lshl_add_u32 v3, v9, 4, v2")
    a("v_lshl_add_u32 v2, v8, 4, v2")
    a("v_and_b32 v6, 1, v6")
    a("v_lshlrev_b32 v6, 2, v6")
    a("v_xor_b32 v6, v7, v6")
    a("v_mul_u32_u24 v4, 3072, v5")
    a("v_lshl_add_u32 v4, v6, 4, v4")
    a("s_lshl_b32 s30, s22, 7")
    a("s_lshr_b32 s28, s20, 1")
    a("s_lshl_b32 s28, s28, 6")
    a("s_add_u32 s30, s30, s28")
    a("s_and_b32 s28, s20, 1")
    a("s_add_u32 s30, s30, s28")
    a("s_lshl_b32 s30, s30, 10")
    a("s_mul_i32 s31, s20, 49152")
    a("s_lshl_b32 s28, s21, 7")
    a("s_add_u32 s31, s31, s28")
    a("s_lshl_b32 s32, s20, 12")
    a("s_lshl_b32 s33, s20, 11")
    a("s_add_u32 s33, s33, 16384")
    a("s_mov_b32 s34, 0")
    a("s_cmp_eq_u32 s23, 0")
    a("s_waitcnt lgkmcnt(0)")
    a("s_mov_b32 s12, s4")
    a("s_mov_b32 s13, s5")
    a("s_mov_b32 s14, 0x200000")
    a("s_mov_b32 s15, 0x00020000")
    a("s_cselect_b32 s16, s6, s8")
    a("s_cselect_b32 s17, s7, s9")
    a("s_mov_b32 s18, 0x180000")
    a("s_mov_b32 s19, 0x00020000")
    a("L1_ld_loop:")
    for i in range(4):
        a(f"s_add_u32 m0, s32, {1024*i}")
        a(f"s_add_u32 s28, s30, {16384*i}")
        a(f"buffer_load_dwordx4 v{2+(i&1)}, s[12:15], s28 offen lds")
    for t in range(3):
        for j in range(2):
            a(f"s_add_u32 m0, s33, {8192*t + 1024*j}")
            a(f"s_add_u32 s28, s31, {1024*t + 24576*j}")
            a(f"buffer_load_dwordx4 v4, s[16:19], s28 offen lds")
    a("s_add_u32 s30, s30, 128")
    a("s_add_u32 s31, s31, 196608")
    a("s_add_u32 s32, s32, 40960")
    a("s_add_u32 s33, s33, 40960")
    a("s_add_u32 s34, s34, 1")
    a("s_cmp_lt_u32 s34, 4")
    a("s_cbranch_scc1 L1_ld_loop")
    a("s_cmp_eq_u32 s34, 8")
    a("s_cbranch_scc1 L1_ld_tail")
    a("s_cmp_eq_u32 s34, 4")
    a("s_cbranch_scc0 L1_ld_steady")
    a("s_sub_u32 s32, s32, 163840")
    a("s_sub_u32 s33, s33, 163840")
    a("s_waitcnt vmcnt(30)")
    a("s_barrier")
    a("L1_ld_steady:")
    a("s_waitcnt vmcnt(20)")
    a("s_barrier")
    a("s_branch L1_ld_loop")
    a("L1_ld_tail:")
    a("s_waitcnt vmcnt(20)")
    a("s_barrier")
    a("s_waitcnt vmcnt(10)")
    a("s_barrier")
    a("s_waitcnt vmcnt(0)")
    a("s_barrier")
    a("s_endpgm")
    a("L1_compute:")
    code_prefetch(a, "qkv_kernel", "L_code_end", 10, 11, 40)
    a("s_and_b32 s28, s20, 1")
    a("s_lshr_b32 s29, s20, 1")
    a("v_and_b32 v7, 31, v1")
    a("v_lshrrev_b32 v8, 5, v1")
    a("v_bfe_u32 v9, v1, 1, 3")
    a("v_xor_b32 v9, v9, v8")
    a("v_lshlrev_b32 v9, 4, v9")
    a("s_lshl_b32 s30, s28, 13")
    a("v_lshlrev_b32 v2, 7, v7")
    a("v_add_u32 v2, s30, v2")
    a("v_xor_b32 v3, 32, v9")
    a("v_xor_b32 v4, 64, v9")
    a("v_xor_b32 v5, 96, v9")
    a("v_add_u32 v3, v2, v3")
    a("v_add_u32 v4, v2, v4")
    a("v_add_u32 v5, v2, v5")
    a("v_add_u32 v2, v2, v9")
    a("v_bfe_u32 v9, v1, 2, 2")
    a("v_lshl_add_u32 v6, v8, 3, v9")
    a("v_lshlrev_b32 v6, 7, v6")
    a("v_bfe_u32 v9, v1, 3, 1")
    a("v_xor_b32 v9, s29, v9")
    a("v_lshl_add_u32 v6, v9, 6, v6")
    a("v_bfe_u32 v9, v1, 4, 1")
    a("v_lshl_add_u32 v6, v9, 5, v6")
    a("v_and_b32 v9, 3, v1")
    a("v_lshl_add_u32 v6, v9, 3, v6")
    a("v_add_u32 v6, 16384, v6")
    ACC = 32
    def acc(tile, t): return ACC + (tile*3 + t)*16
    for r in range(96):
        a(f"v_mov_b32 v{ACC+r}, 0")
    a("s_waitcnt lgkmcnt(0)")
    a("s_cmp_eq_u32 s23, 0")
    a(f"s_cselect_b32 s31, {WS_QA}, 0")
    a("s_add_u32 s24, s10, s31")
    a("s_addc_u32 s25, s11, 0")
    a(f"s_mov_b32 s26, {6*MB}")
    a("s_mov_b32 s27, 0x00020000")
    a("s_lshl_b32 s31, s21, 1")
    a("s_add_u32 s31, s31, s29")
    a("s_lshl_b32 s31, s31, 17")
    a("s_lshl_b32 s32, s22, 1")
    a("s_add_u32 s32, s32, s28")
    a("s_lshl_b32 s32, s32, 11")
    a("s_add_u32 s31, s31, s32")
    a("v_lshlrev_b32 v12, 4, v1")
    a("v_bfe_u32 v9, v1, 4, 1")
    a("v_lshlrev_b32 v13, 16, v9")
    a("v_lshl_add_u32 v13, v8, 8, v13")
    a("v_and_b32 v9, 15, v1")
    a("v_lshl_add_u32 v13, v9, 4, v13")
    FA, FB = 128, 148
    def reads(F, s):
        L = []
        L.append(f"ds_read_b128 v[{F}:{F+3}], v{2+s}")
        L.append(f"ds_read_b64_tr_b16 v[{F+8}:{F+9}], v6 offset:{(16*s)*128}")
        L.append(f"ds_read_b64_tr_b16 v[{F+10}:{F+11}], v6 offset:{(16*s+4)*128}")
        L.append(f"ds_read_b128 v[{F+4}:{F+7}], v{2+s} offset:4096")
        for t in (1, 2):
            L.append(f"ds_read_b64_tr_b16 v[{F+8+4*t}:{F+9+4*t}], v6 offset:{t*8192 + (16*s)*128}")
            L.append(f"ds_read_b64_tr_b16 v[{F+10+4*t}:{F+11+4*t}], v6 offset:{t*8192 + (16*s+4)*128}")
        return L
    def mfmas(F):
        L = []
        for t in range(3):
            for tile in range(2):
                x = f"v[{F+4*tile}:{F+4*tile+3}]"
                w = f"v[{F+8+4*t}:{F+11+4*t}]"
                d = f"v[{acc(tile,t)}:{acc(tile,t)+15}]"
                if t < 2:
                    L.append(f"v_mfma_f32_32x32x16_bf16 {d}, {w}, {x}, {d}")
                else:
                    L.append(f"v_mfma_f32_32x32x16_bf16 {d}, {x}, {w}, {d}")
        return L
    def interleave(M, R):
        out = [M[0]] + R[0:3] + [M[1]] + R[3:6] + [M[2]] + R[6:8] + M[3:]
        return out
    a("s_mov_b32 s34, 0")
    a("s_mov_b32 s35, 40960")
    a("s_barrier")
    for l in reads(FA, 0): a(l)
    a("L1_c_loop:")
    for s in range(3):
        cur, nxt = (FA, FB) if s % 2 == 0 else (FB, FA)
        a("s_waitcnt lgkmcnt(0)")
        for l in interleave(mfmas(cur), reads(nxt, s+1)): a(l)
    a("s_add_u32 s34, s34, 1")
    a("s_cmp_eq_u32 s34, 4")
    a("s_cselect_b32 s36, -122880, s35")
    for r in (2, 3, 4, 5, 6):
        a(f"v_add_u32 v{r}, s36, v{r}")
    a("s_cmp_eq_u32 s34, 8")
    a("s_waitcnt lgkmcnt(0)")
    a("s_cbranch_scc1 L1_c_last")
    a("s_barrier")
    for l in interleave(mfmas(FB), reads(FA, 0)): a(l)
    a("s_branch L1_c_loop")
    a("L1_c_last:")
    for l in mfmas(FB): a(l)
    a(f"s_mov_b32 s36, {f2u(QSCALE)}")
    a(f"s_add_u32 s32, s31, {2*MB}")
    a(f"s_add_u32 s33, s31, {4*MB}")
    a("s_add_u32 s37, s31, 65536")
    a("s_add_u32 s38, s32, 65536")
    a("s_nop 7")
    for t in range(3):
        for tile in range(2):
            A0 = acc(tile, t)
            if t == 0:
                for r in range(16):
                    a(f"v_mul_f32 v{A0+r}, s36, v{A0+r}")
            for r in range(8):
                a(f"v_cvt_pk_bf16_f32 v{A0+r}, v{A0+2*r}, v{A0+2*r+1}")
            if t < 2:
                a(f"buffer_store_dwordx4 v[{A0}:{A0+3}], v12, s[24:27], s{31+t} offen offset:{1024*tile}")
                a(f"buffer_store_dwordx4 v[{A0+4}:{A0+7}], v12, s[24:27], s{37+t} offen offset:{1024*tile}")
            else:
                a(f"buffer_store_dwordx4 v[{A0}:{A0+3}], v13, s[24:27], s33 offen offset:{1024*tile}")
                a(f"buffer_store_dwordx4 v[{A0+4}:{A0+7}], v13, s[24:27], s33 offen offset:{1024*tile+512}")
    a("L1_end:")
    a("s_endpgm")
    return 168

def gen_k2(a, opt):
    a(".p2align 8")
    a(".globl attn_kernel")
    a(".type attn_kernel,@function")
    a("attn_kernel:")
    a("s_cmp_ge_u32 s2, 256")
    a("s_cbranch_scc1 L2_end")
    a("s_load_dwordx2 s[4:5], s[0:1], 0")
    a("s_load_dwordx2 s[6:7], s[0:1], 48")
    a("s_load_dwordx2 s[10:11], s[0:1], 72")
    a("v_lshrrev_b32 v2, 6, v0")
    a("v_and_b32 v1, 63, v0")
    a("v_readfirstlane_b32 s20, v2")
    a("v_lshlrev_b32 v2, 4, v1")
    a("s_and_b32 s21, s2, 7")
    a("s_lshl_b32 s21, s21, 2")
    a("s_bfe_u32 s22, s2, 0x20003")
    a("s_add_u32 s21, s21, s22")
    a("s_lshr_b32 s22, s2, 5")
    a("s_lshl_b32 s22, s22, 3")
    a("s_add_u32 s22, s22, s20")
    a("s_lshl_b32 s23, s21, 16")
    a("s_lshl_b32 s28, s22, 10")
    a("s_add_u32 s28, s28, s23")
    a("s_cmp_lt_u32 s22, 2")
    a("s_cselect_b32 s29, 0, 2048")
    a(f"s_cselect_b32 s44, {f2u(1000.0)}, 0")
    a("s_sub_u32 s29, s28, s29")
    a("v_lshrrev_b32 v8, 5, v1")
    a("v_and_b32 v7, 31, v1")
    a("v_lshlrev_b32 v6, 4, v7")
    a("v_lshl_add_u32 v6, v8, 8, v6")
    QA, KAC, KAP, VA0, VA1, VAP = 112, 116, 120, 124, 128, 132
    GX, GW = 136, 140
    Q, KF, V0, V1 = 8, 12, 16, 20
    S = [32, 48]; P = [64, 72]; O = 80; NM = 96
    a("v_mov_b32 v24, v7")
    a("v_mov_b32 v25, v8")
    for r in range(12):
        a(f"v_mov_b32 v{VA0+r}, 0x3f803f80")
    a("s_waitcnt lgkmcnt(0)")
    a("s_mov_b32 s12, s10")
    a("s_mov_b32 s13, s11")
    a(f"s_mov_b32 s14, {WS_SIZE}")
    a("s_mov_b32 s15, 0x00020000")
    a(f"s_add_u32 s30, s28, {WS_QA}")
    a(f"buffer_load_dwordx4 v[{QA}:{QA+3}], v2, s[12:15], s30 offen")
    a(f"s_add_u32 s30, s28, {WS_KA}")
    a(f"buffer_load_dwordx4 v[{KAC}:{KAC+3}], v2, s[12:15], s30 offen")
    a(f"s_add_u32 s30, s29, {WS_KA}")
    a(f"buffer_load_dwordx4 v[{KAP}:{KAP+3}], v2, s[12:15], s30 offen")
    a("s_mov_b32 exec_lo, 0x0000ffff")
    a("s_mov_b32 exec_hi, 0x0000ffff")
    a(f"s_add_u32 s30, s28, {WS_VA}")
    a(f"buffer_load_dwordx4 v[{VA0}:{VA0+3}], v6, s[12:15], s30 offen")
    a(f"buffer_load_dwordx4 v[{VA1}:{VA1+3}], v6, s[12:15], s30 offen offset:512")
    a(f"s_add_u32 s30, s29, {WS_VA}")
    a(f"buffer_load_dwordx4 v[{VAP}:{VAP+3}], v6, s[12:15], s30 offen offset:512")
    a("s_mov_b64 exec, -1")
    a("s_mov_b32 s16, s4")
    a("s_mov_b32 s17, s5")
    a("s_mov_b32 s18, 0x200000")
    a("s_mov_b32 s19, 0x00020000")
    a("s_mov_b32 s24, s6")
    a("s_mov_b32 s25, s7")
    a("s_mov_b32 s26, 1024")
    a("s_mov_b32 s27, 0x00020000")
    a("s_lshl_b32 s31, s2, 3")
    a("s_add_u32 s31, s31, s20")
    a("s_lshl_b32 s30, s31, 10")
    a(f"buffer_load_dwordx4 v[{GX}:{GX+3}], v2, s[16:19], s30 offen")
    a(f"buffer_load_dwordx4 v[{GW}:{GW+3}], v2, s[24:27], 0 offen")
    a(f"buffer_load_dwordx4 v[{Q}:{Q+3}], v2, s[12:15], s28 offen")
    a("s_lshl_b32 s32, s20, 11")
    a("s_mov_b32 m0, s32")
    a("s_add_u32 s33, s32, s23")
    a(f"s_add_u32 s30, s33, {WS_KB}")
    a("buffer_load_dwordx4 v2, s[12:15], s30 offen lds")
    a("buffer_load_dwordx4 v2, s[12:15], s30 offen offset:1024 lds")
    a("s_mul_i32 s34, s20, 2080")
    a("s_add_u32 m0, s34, 65536")
    a(f"s_add_u32 s30, s33, {WS_VB}")
    a("buffer_load_dwordx4 v2, s[12:15], s30 offen lds")
    a("s_add_u32 m0, s34, 65536+16")
    a("s_nop 0")
    a("buffer_load_dwordx4 v2, s[12:15], s30 offen offset:1024 lds")
    a("s_mul_i32 s32, s20, 6144")
    a("s_add_u32 s32, s32, 16384")
    a("s_add_u32 s33, s32, s23")
    a("s_mov_b32 m0, s32")
    a(f"s_add_u32 s30, s33, {WS_KB}")
    for i in range(3):
        a(f"buffer_load_dwordx4 v2, s[12:15], s30 offen offset:{1024*i} lds")
    a("s_add_u32 m0, s32, 3072")
    a(f"s_add_u32 s30, s33, {WS_KB+3072}")
    for i in range(3):
        a(f"buffer_load_dwordx4 v2, s[12:15], s30 offen offset:{1024*i} lds")
    a("s_mul_i32 s34, s20, 6240")
    for i in range(6):
        a(f"s_add_u32 m0, s34, {65536 + 16*1040 + 1040*i}")
        a(f"s_add_u32 s30, s33, {WS_VB + 1024*i}")
        a("buffer_load_dwordx4 v2, s[12:15], s30 offen lds")
    code_prefetch(a, "attn_kernel", "L_code_end", 26, 7, 40)
    a("s_cmp_lg_u32 s20, 0")
    a("s_cbranch_scc1 L2_no_ones")
    a("v_mul_u32_u24 v26, 1040, v1")
    a("v_mov_b32 v28, 0x3f803f80")
    a("v_mov_b32 v29, 0x3f803f80")
    a("v_mov_b32 v30, 0x3f803f80")
    a("v_mov_b32 v31, 0x3f803f80")
    a("v_add_u32 v26, 65536+1024, v26")
    a("ds_write_b128 v26, v[28:31]")
    a("L2_no_ones:")
    a("v_cmp_gt_u32 vcc, 16, v24")
    a("v_add_u32 v3, 65536, v6")
    a("v_add_u32 v4, 65536+512, v6")
    a("v_mov_b32 v5, 65536+1024")
    a("v_cndmask_b32 v3, v5, v3, vcc")
    a("v_cndmask_b32 v4, v5, v4, vcc")
    a("v_mov_b32 v5, v2")
    a("v_lshlrev_b32 v26, 2, v25")
    a("v_sub_u32 v26, v24, v26")
    a("v_cvt_f32_i32 v26, v26")
    a(f"v_add_f32 v26, {f2u(-3.5)}, v26")
    a("v_add_f32 v28, s44, v26")
    a(f"s_mov_b32 s45, {f2u(-1e30)}")
    for r in range(16):
        cst = 8*(r//4) + (r % 4)
        a(f"v_subrev_f32 v{S[0]+r}, {f2u(float(cst))}, v26")
    for b in range(4):
        a(f"v_subrev_f32 v{S[1]+12+b}, {f2u(float(b-8))}, v28")
    regs = [S[0]+r for r in range(16)] + [S[1]+12+b for b in range(4)]
    for r in regs:
        a(f"v_add_f32_e64 v{r}, |v{r}|, -4.0 clamp")
    for r in regs:
        a(f"v_mul_f32 v{r}, s45, v{r}")
    a(f"v_mov_b32 v{P[1]}, 0")
    a(f"v_mov_b32 v{P[1]+1}, 0")
    a("s_waitcnt vmcnt(23)")
    a(f"v_mfma_f32_32x32x16_bf16 v[{S[0]}:{S[0]+15}], v[{KAC}:{KAC+3}], v[{QA}:{QA+3}], v[{S[0]}:{S[0]+15}]")
    a(f"v_mfma_f32_32x32x16_bf16 v[{S[1]}:{S[1]+15}], v[{KAP}:{KAP+3}], v[{QA}:{QA+3}], v[{S[1]}:{S[1]+15}]")
    a("s_waitcnt vmcnt(18)")
    a(f"v_dot2_f32_bf16 v28, v{GX}, v{GW}, 0")
    a(f"v_dot2_f32_bf16 v29, v{GX+1}, v{GW+1}, 0")
    a(f"v_dot2_f32_bf16 v28, v{GX+2}, v{GW+2}, v28")
    a(f"v_dot2_f32_bf16 v29, v{GX+3}, v{GW+3}, v29")
    a("s_nop 2")
    a("v_add_f32 v28, v28, v29")
    a("s_nop 1")
    a("v_add_f32_dpp v28, v28, v28 row_shr:1 row_mask:0xf bank_mask:0xf bound_ctrl:0")
    a("s_nop 1")
    a("v_add_f32_dpp v28, v28, v28 row_shr:2 row_mask:0xf bank_mask:0xf bound_ctrl:0")
    a("s_nop 1")
    a("v_add_f32_dpp v28, v28, v28 row_shr:4 row_mask:0xf bank_mask:0xf bound_ctrl:0")
    a("s_nop 1")
    a("v_add_f32_dpp v28, v28, v28 row_shr:8 row_mask:0xf bank_mask:0xf bound_ctrl:0")
    a(f"v_max3_f32 v26, v{S[0]}, v{S[0]+1}, v{S[0]+2}")
    a(f"v_max3_f32 v27, v{S[0]+3}, v{S[0]+4}, v{S[0]+5}")
    a("v_add_f32_dpp v28, v28, v28 row_bcast:15 row_mask:0xa bank_mask:0xf")
    a(f"v_max3_f32 v26, v26, v{S[0]+6}, v{S[0]+7}")
    a(f"v_max3_f32 v27, v27, v{S[0]+8}, v{S[0]+9}")
    a("v_add_f32_dpp v28, v28, v28 row_bcast:31 row_mask:0xc bank_mask:0xf")
    a(f"v_max3_f32 v26, v26, v{S[0]+10}, v{S[0]+11}")
    a(f"v_mul_f32 v28, {f2u(-math.log2(math.e))}, v28")
    a(f"v_max3_f32 v27, v27, v{S[0]+12}, v{S[0]+13}")
    a("v_exp_f32 v28, v28")
    a(f"v_max3_f32 v26, v26, v{S[0]+14}, v{S[0]+15}")
    a("v_add_f32 v28, 1.0, v28")
    a(f"v_max3_f32 v27, v27, v{S[1]+12}, v{S[1]+13}")
    a("v_rcp_f32 v28, v28")
    a(f"v_max3_f32 v26, v26, v{S[1]+14}, v{S[1]+15}")
    a("v_max_f32 v26, v26, v27")
    a("v_mov_b32 v27, v26")
    a("s_lshl_b32 s30, s31, 2")
    a(f"s_add_u32 s30, s30, {WS_G}")
    a("v_mov_b32 v29, 0")
    a("v_permlane32_swap_b32 v26, v27")
    a("s_mov_b32 exec_lo, 0")
    a("s_mov_b32 exec_hi, 0x80000000")
    a("buffer_store_dword v28, v29, s[12:15], s30 offen")
    a("s_mov_b64 exec, -1")
    a("v_max_f32 v26, v26, v27")
    for r in regs:
        a(f"v_sub_f32 v{r}, v{r}, v26")
    for r in regs:
        a(f"v_exp_f32 v{r}, v{r}")
    a(f"v_cvt_pk_bf16_f32 v{P[1]+2}, v{S[1]+12}, v{S[1]+13}")
    for i in range(8):
        a(f"v_cvt_pk_bf16_f32 v{P[0]+i}, v{S[0]+2*i}, v{S[0]+2*i+1}")
    a(f"v_cvt_pk_bf16_f32 v{P[1]+3}, v{S[1]+14}, v{S[1]+15}")
    a(f"v_mfma_f32_32x32x16_bf16 v[{O}:{O+15}], v[{VA0}:{VA0+3}], v[{P[0]}:{P[0]+3}], 0")
    a(f"v_mfma_f32_32x32x16_bf16 v[{O}:{O+15}], v[{VA1}:{VA1+3}], v[{P[0]+4}:{P[0]+7}], v[{O}:{O+15}]")
    a(f"v_mfma_f32_32x32x16_bf16 v[{O}:{O+15}], v[{VAP}:{VAP+3}], v[{P[1]}:{P[1]+3}], v[{O}:{O+15}]")
    a("s_waitcnt vmcnt(14) lgkmcnt(0)")
    a("s_barrier")
    a(f"ds_read_b128 v[{KF}:{KF+3}], v5")
    a("s_lshl_b32 s36, s22, 15")
    a("s_lshl_b32 s37, s21, 10")
    a("s_add_u32 s36, s36, s37")
    a(f"s_add_u32 s37, s36, {WS_OA}")
    a(f"s_add_u32 s36, s36, {WS_OB}")
    a("s_nop 4")
    a(f"v_rcp_f32 v26, v{O+8}")
    a("s_nop 0")
    for r in range(8):
        a(f"v_mul_f32 v{O+r}, v{O+r}, v26")
    for i in range(4):
        a(f"v_cvt_pk_bf16_f32 v{O+i}, v{O+2*i}, v{O+2*i+1}")
    a(f"buffer_store_dwordx4 v[{O}:{O+3}], v2, s[12:15], s37 offen")
    a("s_waitcnt lgkmcnt(0)")
    a(f"v_mfma_f32_32x32x16_bf16 v[{S[0]}:{S[0]+15}], v[{KF}:{KF+3}], v[{Q}:{Q+3}], 0")
    a("s_mov_b32 s38, 0")
    a("s_nop 7")
    a("s_nop 3")
    a(f"v_max3_f32 v26, v{S[0]}, v{S[0]+1}, v{S[0]+2}")
    a(f"v_max3_f32 v27, v{S[0]+3}, v{S[0]+4}, v{S[0]+5}")
    for i in range(2):
        a(f"v_max3_f32 v26, v26, v{S[0]+6+4*i}, v{S[0]+7+4*i}")
        a(f"v_max3_f32 v27, v27, v{S[0]+8+4*i}, v{S[0]+9+4*i}")
    a(f"v_max3_f32 v26, v26, v{S[0]+14}, v{S[0]+15}")
    a("v_max_f32 v26, v26, v27")
    a("L2_setmax:")
    a("v_mov_b32 v27, v26")
    a("s_nop 1")
    a("v_permlane32_swap_b32 v26, v27")
    a("s_nop 1")
    a("v_max_f32 v26, v26, v27")
    for r in range(16):
        a(f"v_sub_f32 v{NM+r}, 0, v26")
    for r in range(8):
        a(f"v_mov_b32 v{P[1]+r}, 0")
        a(f"v_mov_b32 v{V0+r}, 0")
    for r in range(16):
        a(f"v_mov_b32 v{O+r}, 0")
    a(f"v_mfma_f32_32x32x16_bf16 v[{S[0]}:{S[0]+15}], v[{KF}:{KF+3}], v[{Q}:{Q+3}], v[{NM}:{NM+15}]")
    a(f"ds_read_b128 v[{KF}:{KF+3}], v5 offset:1024")
    a("s_mov_b32 s39, 0")
    a("s_nop 7")
    a("s_waitcnt lgkmcnt(0)")
    U = opt.get("unroll", 8)
    a(".p2align 6")
    a("L2_loop:")
    for u in range(U):
        cur, nxt = S[u & 1], S[(u+1) & 1]
        Pc, Pp = P[u & 1], P[(u+1) & 1]
        ex = [f"v_exp_f32 v{cur+i}, v{cur+i}" for i in range(16)]
        cv = [f"v_cvt_pk_bf16_f32 v{Pc+i}, v{cur+2*i}, v{cur+2*i+1}" for i in range(8)]
        a(f"v_mfma_f32_32x32x16_bf16 v[{nxt}:{nxt+15}], v[{KF}:{KF+3}], v[{Q}:{Q+3}], v[{NM}:{NM+15}]")
        a(f"ds_read_b128 v[{KF}:{KF+3}], v5 offset:{(u+2)*1024}")
        for l in ex[0:4] + [cv[0]] + ex[4:6] + [cv[1]]: a(l)
        a("s_waitcnt lgkmcnt(2)")
        a(f"v_mfma_f32_32x32x16_bf16 v[{O}:{O+15}], v[{V0}:{V0+3}], v[{Pp}:{Pp+3}], v[{O}:{O+15}]")
        a(f"ds_read_b128 v[{V0}:{V0+3}], v3 offset:{u*1040}")
        for l in ex[6:8] + [cv[2]] + ex[8:10] + [cv[3]] + ex[10:12] + [cv[4]]: a(l)
        a("s_waitcnt lgkmcnt(2)")
        a(f"v_mfma_f32_32x32x16_bf16 v[{O}:{O+15}], v[{V1}:{V1+3}], v[{Pp+4}:{Pp+7}], v[{O}:{O+15}]")
        a(f"ds_read_b128 v[{V1}:{V1+3}], v4 offset:{u*1040}")
        for l in ex[12:14] + [cv[5]] + ex[14:16] + [cv[6]]: a(l)
        if u == U-1:
            a(f"v_add_u32 v5, {1024*U}, v5")
            a(f"v_add_u32 v3, {1040*U}, v3")
            a(f"v_add_u32 v4, {1040*U}, v4")
            a("s_add_u32 s39, s39, 1")
        a("s_waitcnt lgkmcnt(2)")
        a(cv[7])
    a("s_cmp_eq_u32 s39, 1")
    a("s_cbranch_scc0 L2_nobar")
    a("s_cmp_eq_u32 s38, 0")
    a("s_cbranch_scc0 L2_nobar")
    a("s_waitcnt vmcnt(0)")
    a("s_barrier")
    a("L2_nobar:")
    a(f"s_cmp_lt_u32 s39, {64//U}")
    a("s_cbranch_scc1 L2_loop")
    a("s_waitcnt lgkmcnt(0)")
    a(f"v_mfma_f32_32x32x16_bf16 v[{O}:{O+15}], v[{V0}:{V0+3}], v[{P[1]}:{P[1]+3}], v[{O}:{O+15}]")
    a(f"v_mfma_f32_32x32x16_bf16 v[{O}:{O+15}], v[{V1}:{V1+3}], v[{P[1]+4}:{P[1]+7}], v[{O}:{O+15}]")
    a(f"s_mov_b32 s40, {f2u(2.0**100)}")
    a("s_nop 7")
    a("s_nop 3")
    a(f"v_mul_f32 v26, 0, v{O}")
    for r in range(1, 8):
        a(f"v_fma_f32 v26, v{O+r}, 0, v26")
    a(f"v_add_f32 v26, v26, v{O+8}")
    a(f"v_rcp_f32 v27, v{O+8}")
    a("v_cmp_nlt_f32 vcc, v26, s40")
    a("s_cmp_eq_u32 s38, 0")
    a("s_cbranch_scc0 L2_fin")
    a("s_nop 1")
    a("s_cbranch_vccnz L2_fallback")
    a("L2_fin:")
    for r in range(8):
        a(f"v_mul_f32 v{O+r}, v{O+r}, v27")
    for i in range(4):
        a(f"v_cvt_pk_bf16_f32 v{O+i}, v{O+2*i}, v{O+2*i+1}")
    a(f"buffer_store_dwordx4 v[{O}:{O+3}], v2, s[12:15], s36 offen")
    a("L2_end:")
    a("s_endpgm")
    a("L2_fallback:")
    a("s_mov_b32 s38, 1")
    a("v_mov_b32 v5, v2")
    a(f"v_subrev_u32 v3, {1040*64}, v3")
    a(f"v_subrev_u32 v4, {1040*64}, v4")
    a(f"v_mov_b32 v26, {f2u(-3.0e38)}")
    a("s_mov_b32 s39, 0")
    a("L2_fb_loop:")
    a(f"ds_read_b128 v[{KF}:{KF+3}], v5")
    a("v_add_u32 v5, 1024, v5")
    a("s_waitcnt lgkmcnt(0)")
    a(f"v_mfma_f32_32x32x16_bf16 v[{S[0]}:{S[0]+15}], v[{KF}:{KF+3}], v[{Q}:{Q+3}], 0")
    a("s_nop 7")
    a("s_nop 3")
    for i in range(8):
        a(f"v_max3_f32 v26, v26, v{S[0]+2*i}, v{S[0]+2*i+1}")
    a("s_add_u32 s39, s39, 1")
    a("s_cmp_lt_u32 s39, 64")
    a("s_cbranch_scc1 L2_fb_loop")
    a("v_mov_b32 v5, v2")
    a(f"ds_read_b128 v[{KF}:{KF+3}], v5")
    a("s_waitcnt lgkmcnt(0)")
    a("s_branch L2_setmax")
    return 144

def gen_k3(a, opt):
    a(".p2align 8")
    a(".globl oproj_kernel")
    a(".type oproj_kernel,@function")
    a("oproj_kernel:")
    a("s_cmp_ge_u32 s2, 256")
    a("s_cbranch_scc1 L3_end")
    a("s_load_dwordx2 s[4:5], s[0:1], 16")
    a("s_load_dwordx2 s[6:7], s[0:1], 40")
    a("s_load_dwordx2 s[8:9], s[0:1], 56")
    a("s_load_dwordx2 s[10:11], s[0:1], 72")
    a("v_lshrrev_b32 v2, 6, v0")
    a("v_and_b32 v1, 63, v0")
    a("v_readfirstlane_b32 s20, v2")
    a("v_lshlrev_b32 v2, 4, v1")
    a("s_and_b32 s21, s2, 7")
    a("s_lshl_b32 s21, s21, 2")
    a("s_bfe_u32 s22, s2, 0x20003")
    a("s_add_u32 s21, s21, s22")
    a("s_lshr_b32 s22, s2, 5")
    a("s_and_b32 s23, s20, 1")
    a("s_lshr_b32 s28, s20, 1")
    a("s_and_b32 s29, s28, 1")
    a("s_lshl_b32 s30, s21, 1")
    a("s_add_u32 s30, s30, s23")
    a("s_lshl_b32 s30, s30, 15")
    a("s_lshl_b32 s31, s29, 14")
    a("s_add_u32 s30, s30, s31")
    a("s_lshr_b32 s31, s28, 1")
    a("s_lshl_b32 s32, s31, 21")
    a("s_add_u32 s30, s30, s32")
    a(f"s_add_u32 s30, s30, {WS_OA}")
    a("v_lshrrev_b32 v5, 3, v1")
    a("v_bfe_u32 v6, v1, 4, 1")
    a("v_lshlrev_b32 v6, 2, v6")
    a("v_and_b32 v7, 7, v1")
    a("v_xor_b32 v6, v7, v6")
    a("v_lshlrev_b32 v4, 10, v5")
    a("v_lshl_add_u32 v4, v6, 4, v4")
    a("s_lshl_b32 s33, s29, 18")
    a("s_lshl_b32 s32, s23, 16")
    a("s_add_u32 s33, s33, s32")
    a("s_lshl_b32 s32, s22, 7")
    a("s_add_u32 s33, s33, s32")
    a("s_lshl_b32 s34, s28, 15")
    a("s_lshl_b32 s32, s23, 13")
    a("s_add_u32 s35, s34, s32")
    a("v_and_b32 v7, 31, v1")
    a("v_lshlrev_b32 v8, 3, v7")
    a("s_lshl_b32 s36, s21, 8")
    a("s_lshl_b32 s32, s23, 2")
    a("s_add_u32 s36, s36, s32")
    a(f"s_add_u32 s36, s36, {WS_G}")
    a("s_cmp_eq_u32 s31, 0")
    a("s_waitcnt lgkmcnt(0)")
    a("s_mov_b32 s12, s10")
    a("s_mov_b32 s13, s11")
    a(f"s_mov_b32 s14, {WS_SIZE}")
    a("s_mov_b32 s15, 0x00020000")
    a("s_cselect_b32 s16, s4, s6")
    a("s_cselect_b32 s17, s5, s7")
    a("s_mov_b32 s18, 0x80000")
    a("s_mov_b32 s19, 0x00020000")
    OF = 64
    for p in range(2):
        for g in range(8):
            a(f"s_add_u32 m0, s35, {p*16384 + g*1024}")
            a(f"s_add_u32 s32, s33, {p*131072 + g*8192}")
            a("buffer_load_dwordx4 v4, s[16:19], s32 offen lds")
        for i in range(8):
            if i % 4 == 0:
                a(f"s_add_u32 s32, s30, {(8*p+i)*1024}")
            a(f"buffer_load_dwordx4 v[{OF+4*(8*p+i)}:{OF+4*(8*p+i)+3}], v2, s[12:15], s32 offen offset:{(i%4)*1024}")
    a("buffer_load_dword v9, v8, s[12:15], s36 offen")
    code_prefetch(a, "oproj_kernel", "L_code_end", 10, 11, 40)
    a("s_mov_b32 s24, s8")
    a("s_mov_b32 s25, s9")
    a("s_mov_b32 s26, 0x200000")
    a("s_mov_b32 s27, 0x00020000")
    a("v_lshrrev_b32 v14, 5, v1")
    a("v_bfe_u32 v15, v1, 2, 2")
    a("v_lshl_add_u32 v12, v14, 2, v15")
    a("v_lshlrev_b32 v12, 7, v12")
    a("v_bfe_u32 v15, v1, 4, 1")
    a("v_lshl_add_u32 v12, v15, 5, v12")
    a("v_and_b32 v15, 3, v1")
    a("v_lshl_add_u32 v12, v15, 3, v12")
    a("v_add_u32 v12, s34, v12")
    a("v_bfe_u32 v15, v1, 3, 1")
    a("v_lshlrev_b32 v15, 6, v15")
    a("v_xor_b32 v13, 64, v15")
    a("v_add_u32 v13, v12, v13")
    a("v_add_u32 v12, v12, v15")
    a("s_lshl_b32 s32, s23, 2")
    a("s_add_u32 s32, s32, s28")
    a("s_lshl_b32 s32, s32, 11")
    a("v_add_u32 v16, s32, v2")
    a("v_add_u32 v17, 0x10000, v16")
    a("v_add_u32 v18, s35, v2")
    a("v_lshlrev_b32 v19, 11, v7")
    a("v_lshl_add_u32 v19, v14, 4, v19")
    a("s_lshl_b32 s37, s21, 6")
    a("s_add_u32 s37, s37, s23")
    a("s_lshl_b32 s37, s37, 10")
    a("s_lshl_b32 s32, s22, 7")
    a("s_add_u32 s37, s37, s32")
    a("s_lshl_b32 s32, s28, 5")
    a("s_add_u32 s37, s37, s32")
    ACC = [32, 48]
    WF = [20, 128]
    def rd(setb, i):
        return [f"ds_read_b64_tr_b16 v[{setb}:{setb+1}], v12 offset:{(16*i)*128}",
                f"ds_read_b64_tr_b16 v[{setb+2}:{setb+3}], v12 offset:{(16*i+8)*128}",
                f"ds_read_b64_tr_b16 v[{setb+4}:{setb+5}], v13 offset:{(16*i)*128}",
                f"ds_read_b64_tr_b16 v[{setb+6}:{setb+7}], v13 offset:{(16*i+8)*128}"]
    for p in range(2):
        a(f"s_waitcnt vmcnt({18 if p == 0 else 2})")
        a("s_barrier")
        for l in rd(WF[0], 8*p): a(l)
        for i in range(8):
            gi = 8*p + i
            cur, nxt = WF[i & 1], WF[(i+1) & 1]
            if i < 7:
                for l in rd(nxt, gi+1): a(l)
                a("s_waitcnt lgkmcnt(4)")
            else:
                a("s_waitcnt lgkmcnt(0)")
            for ctl in range(2):
                c = "0" if gi == 0 else f"v[{ACC[ctl]}:{ACC[ctl]+15}]"
                a(f"v_mfma_f32_32x32x16_bf16 v[{ACC[ctl]}:{ACC[ctl]+15}], v[{cur+4*ctl}:{cur+4*ctl+3}], v[{OF+4*gi}:{OF+4*gi+3}], {c}")
    a("s_waitcnt vmcnt(1)")
    a("v_sub_f32 v10, 1.0, v9")
    a("s_cmp_eq_u32 s31, 0")
    a("s_cselect_b64 vcc, -1, 0")
    a("s_nop 4")
    a("v_cndmask_b32 v9, v10, v9, vcc")
    a("s_nop 4")
    for r in range(32):
        a(f"v_mul_f32 v{32+r}, v9, v{32+r}")
    for q in range(4):
        base = "v16" if q < 2 else "v17"
        off = (q & 1) * 32768
        a(f"ds_write_b128 {base}, v[{32+8*q}:{32+8*q+3}] offset:{off}")
        a(f"ds_write_b128 {base}, v[{32+8*q+4}:{32+8*q+7}] offset:{off+1024}")
    a("s_waitcnt lgkmcnt(0)")
    a("s_barrier")
    for src in range(4):
        a(f"ds_read_b128 v[{64+8*src}:{64+8*src+3}], v18 offset:{src*2048}")
        a(f"ds_read_b128 v[{64+8*src+4}:{64+8*src+7}], v18 offset:{src*2048+1024}")
    a("s_waitcnt lgkmcnt(4)")
    for r in range(8):
        a(f"v_add_f32 v{64+r}, v{64+r}, v{72+r}")
    a("s_waitcnt lgkmcnt(0)")
    for r in range(8):
        a(f"v_add_f32 v{80+r}, v{80+r}, v{88+r}")
    for r in range(8):
        a(f"v_add_f32 v{64+r}, v{64+r}, v{80+r}")
    for i in range(4):
        a(f"v_cvt_pk_bf16_f32 v{64+i}, v{64+2*i}, v{64+2*i+1}")
    a("s_nop 1")
    a("v_permlane32_swap_b32 v64, v66")
    a("v_permlane32_swap_b32 v65, v67")
    a("s_nop 1")
    a("buffer_store_dwordx4 v[64:67], v19, s[24:27], s37 offen")
    a("L3_end:")
    a("s_endpgm")
    return 136

HEADER = open("gated_mix__sliding_local_dilated__softmax_full_mha__prompt.s.ref").read().split("; Override launch")[0]

def main(out, opt):
    a = Asm()
    n1 = gen_k1(a, opt)
    n2 = gen_k2(a, opt)
    n3 = gen_k3(a, opt)
    a("L_code_end:")
    a("s_endpgm")
    s = HEADER
    s += "; generated by gen/gen.py (hand-written generator)\n"
    s += "; @launch kernel=qkv_kernel grid=(256,1,1) block=(512,1,1) lds=163840\n"
    s += "; @launch kernel=attn_kernel grid=(256,1,1) block=(512,1,1) lds=132096\n"
    s += "; @launch kernel=oproj_kernel grid=(256,1,1) block=(512,1,1) lds=131072\n"
    s += '.amdgcn_target "amdgcn-amd-amdhsa--gfx950"\n.text\n'
    s += a.text()
    s += kd("qkv_kernel", n1) + kd("attn_kernel", n2) + kd("oproj_kernel", n3)
    open(out, "w").write(s)

if __name__ == "__main__":
    out = sys.argv[1] if len(sys.argv) > 1 else "gated_mix__sliding_local_dilated__softmax_full_mha__prompt.s"
    opt = {}
    for kv in sys.argv[2:]:
        k, v = kv.split("=")
        opt[k] = int(v)
    main(out, opt)
```

```python
import sys, math, struct
from asmlib import *

MB = 1 << 20
WS_QB, WS_KB, WS_VB = 0, 2*MB, 4*MB
WS_QA, WS_KA, WS_VA = 6*MB, 8*MB, 10*MB
WS_OA, WS_OB, WS_G = 12*MB, 14*MB, 16*MB
WS_SIZE = 17*MB
QSCALE = 0.25 * math.log2(math.e)
def f2u(x): return struct.unpack("<I", struct.pack("<f", x))[0]

def code_prefetch(a, start, end, vtmp, vdst, slo):
    a(f"s_getpc_b64 s[{slo}:{slo+1}]")
    lab = f"Lpc_{start}_{vtmp}"
    a(f"{lab}:")
    a(f"s_sub_u32 s{slo}, s{slo}, {lab}-{start}")
    a(f"s_subb_u32 s{slo+1}, s{slo+1}, 0")
    a(f"v_lshlrev_b32 v{vtmp}, 7, v1")
    a(f"v_min_u32 v{vtmp}, {end}-{start}-4, v{vtmp}")
    a(f"global_load_dword v{vdst}, v{vtmp}, s[{slo}:{slo+1}]")


DIAG_BASE = 32*MB
class Diag:
    def __init__(self, a, opt, kidx, s0=64):
        self.a, self.on, self.k, self.n, self.s0 = a, opt.get("diag", 0), kidx, 0, s0
    def stamp(self, real=False):
        if not self.on: return
        a = self.a
        r = self.s0 + 2*self.n
        a(f"s_{'memrealtime' if real else 'memtime'} s[{r}:{r+1}]")
        a("s_waitcnt lgkmcnt(0)")
        self.n += 1
    def flush(self, wsptr=10, wave=20, v0=0):
        if not self.on: return
        a = self.a
        a(f"s_mov_b32 s96, s{wsptr}")
        a(f"s_mov_b32 s97, s{wsptr+1}")
        a(f"s_mov_b32 s98, {64*MB}")
        a("s_mov_b32 s99, 0x00020000")
        a("s_lshl_b32 s100, s2, 3")
        a(f"s_add_u32 s100, s100, s{wave}")
        a("s_lshl_b32 s100, s100, 6")
        a(f"s_add_u32 s100, s100, {DIAG_BASE + self.k*256*1024}")
        a("s_mov_b64 exec, 1")
        a(f"v_mov_b32 v{v0}, 0")
        for i in range(self.n):
            a(f"v_mov_b32 v{v0+1}, s{self.s0+2*i}")
            a(f"buffer_store_dword v{v0+1}, v{v0}, s[96:99], s100 offen offset:{4*i}")
        a("s_waitcnt vmcnt(0)")

def gen_k1(a, opt):
    a(".p2align 8")
    a(".globl qkv_kernel")
    a(".type qkv_kernel,@function")
    a("qkv_kernel:")
    a("s_cmp_ge_u32 s2, 256")
    a("s_cbranch_scc1 L1_end")
    D = Diag(a, opt, 0); D.stamp(True); D.stamp()
    a("s_load_dwordx4 s[4:7], s[0:1], 0")
    a("s_load_dwordx2 s[8:9], s[0:1], 32")
    a("s_load_dwordx2 s[10:11], s[0:1], 72")
    a("v_lshrrev_b32 v2, 6, v0")
    a("v_and_b32 v1, 63, v0")
    a("v_readfirstlane_b32 s20, v2")
    a("s_and_b32 s21, s2, 7")
    a("s_lshr_b32 s22, s2, 3")
    a("s_and_b32 s23, s22, 1")
    a("s_lshr_b32 s22, s22, 1")
    a("s_cmp_ge_u32 s20, 4")
    a("s_cbranch_scc0 L1_compute")
    a("s_sub_u32 s20, s20, 4")
    a("v_lshrrev_b32 v5, 3, v1")
    a("v_lshrrev_b32 v6, 4, v1")
    a("v_and_b32 v7, 7, v1")
    a("v_xor_b32 v8, v7, v6")
    a("v_xor_b32 v9, 4, v8")
    a("v_lshlrev_b32 v2, 11, v5")
    a("v_lshl_add_u32 v3, v9, 4, v2")
    a("v_lshl_add_u32 v2, v8, 4, v2")
    a("v_and_b32 v6, 1, v6")
    a("v_lshlrev_b32 v6, 2, v6")
    a("v_xor_b32 v6, v7, v6")
    a("v_mul_u32_u24 v4, 3072, v5")
    a("v_lshl_add_u32 v4, v6, 4, v4")
    a("s_lshl_b32 s30, s22, 7")
    a("s_lshr_b32 s28, s20, 1")
    a("s_lshl_b32 s28, s28, 6")
    a("s_add_u32 s30, s30, s28")
    a("s_and_b32 s28, s20, 1")
    a("s_add_u32 s30, s30, s28")
    a("s_lshl_b32 s30, s30, 10")
    a("s_mul_i32 s31, s20, 49152")
    a("s_lshl_b32 s28, s21, 7")
    a("s_add_u32 s31, s31, s28")
    a("s_lshl_b32 s32, s20, 12")
    a("s_lshl_b32 s33, s20, 11")
    a("s_add_u32 s33, s33, 16384")
    a("s_mov_b32 s34, 0")
    a("s_cmp_eq_u32 s23, 0")
    a("s_waitcnt lgkmcnt(0)")
    a("s_mov_b32 s12, s4")
    a("s_mov_b32 s13, s5")
    a("s_mov_b32 s14, 0x200000")
    a("s_mov_b32 s15, 0x00020000")
    a("s_cselect_b32 s16, s6, s8")
    a("s_cselect_b32 s17, s7, s9")
    a("s_mov_b32 s18, 0x180000")
    a("s_mov_b32 s19, 0x00020000")
    a("L1_ld_loop:")
    for i in range(4):
        a(f"s_add_u32 m0, s32, {1024*i}")
        a(f"s_add_u32 s28, s30, {16384*i}")
        a(f"buffer_load_dwordx4 v{2+(i&1)}, s[12:15], s28 offen lds")
    for t in range(3):
        for j in range(2):
            a(f"s_add_u32 m0, s33, {8192*t + 1024*j}")
            a(f"s_add_u32 s28, s31, {1024*t + 24576*j}")
            a(f"buffer_load_dwordx4 v4, s[16:19], s28 offen lds")
    a("s_add_u32 s30, s30, 128")
    a("s_add_u32 s31, s31, 196608")
    a("s_add_u32 s32, s32, 40960")
    a("s_add_u32 s33, s33, 40960")
    a("s_add_u32 s34, s34, 1")
    a("s_cmp_lt_u32 s34, 4")
    a("s_cbranch_scc1 L1_ld_loop")
    a("s_cmp_eq_u32 s34, 8")
    a("s_cbranch_scc1 L1_ld_tail")
    a("s_cmp_eq_u32 s34, 4")
    a("s_cbranch_scc0 L1_ld_steady")
    a("s_sub_u32 s32, s32, 163840")
    a("s_sub_u32 s33, s33, 163840")
    D.stamp()
    a("s_waitcnt vmcnt(30)")
    D.stamp()
    a("s_barrier")
    a("L1_ld_steady:")
    a("s_waitcnt vmcnt(20)")
    a("s_barrier")
    a("s_branch L1_ld_loop")
    a("L1_ld_tail:")
    a("s_waitcnt vmcnt(20)")
    a("s_barrier")
    a("s_waitcnt vmcnt(10)")
    a("s_barrier")
    a("s_waitcnt vmcnt(0)")
    D.stamp()
    a("s_barrier")
    if D.on:
        D.stamp(); D.stamp(True)
        a("s_add_u32 s20, s20, 4")
        D.flush()
    a("s_endpgm")
    a("L1_compute:")
    D.n = 2
    code_prefetch(a, "qkv_kernel", "L_code_end", 10, 11, 40)
    a("s_and_b32 s28, s20, 1")
    a("s_lshr_b32 s29, s20, 1")
    a("v_and_b32 v7, 31, v1")
    a("v_lshrrev_b32 v8, 5, v1")
    a("v_bfe_u32 v9, v1, 1, 3")
    a("v_xor_b32 v9, v9, v8")
    a("v_lshlrev_b32 v9, 4, v9")
    a("s_lshl_b32 s30, s28, 13")
    a("v_lshlrev_b32 v2, 7, v7")
    a("v_add_u32 v2, s30, v2")
    a("v_xor_b32 v3, 32, v9")
    a("v_xor_b32 v4, 64, v9")
    a("v_xor_b32 v5, 96, v9")
    a("v_add_u32 v3, v2, v3")
    a("v_add_u32 v4, v2, v4")
    a("v_add_u32 v5, v2, v5")
    a("v_add_u32 v2, v2, v9")
    a("v_bfe_u32 v9, v1, 2, 2")
    a("v_lshl_add_u32 v6, v8, 3, v9")
    a("v_lshlrev_b32 v6, 7, v6")
    a("v_bfe_u32 v9, v1, 3, 1")
    a("v_xor_b32 v9, s29, v9")
    a("v_lshl_add_u32 v6, v9, 6, v6")
    a("v_bfe_u32 v9, v1, 4, 1")
    a("v_lshl_add_u32 v6, v9, 5, v6")
    a("v_and_b32 v9, 3, v1")
    a("v_lshl_add_u32 v6, v9, 3, v6")
    a("v_add_u32 v6, 16384, v6")
    ACC = 32
    def acc(tile, t): return ACC + (tile*3 + t)*16
    for r in range(96):
        a(f"v_mov_b32 v{ACC+r}, 0")
    a("s_waitcnt lgkmcnt(0)")
    a("s_cmp_eq_u32 s23, 0")
    a(f"s_cselect_b32 s31, {WS_QA}, 0")
    a("s_add_u32 s24, s10, s31")
    a("s_addc_u32 s25, s11, 0")
    a(f"s_mov_b32 s26, {6*MB}")
    a("s_mov_b32 s27, 0x00020000")
    if opt.get("xcdtest"):
        a("s_getreg_b32 s50, hwreg(HW_REG_XCC_ID)")
        a("s_sub_u32 s50, s50, s2")
        a("s_and_b32 s50, s50, 7")
        a("s_mov_b32 s52, s10")
        a("s_mov_b32 s53, s11")
        a(f"s_mov_b32 s54, {64*MB}")
        a("s_mov_b32 s55, 0x00020000")
        a("s_lshl_b32 s51, s2, 2")
        a(f"s_add_u32 s51, s51, {20*MB}")
        a("v_mov_b32 v20, s50")
        a("v_mov_b32 v21, 0")
        a("buffer_store_dword v20, v21, s[52:55], s51 offen")
    a("s_lshl_b32 s31, s21, 1")
    a("s_add_u32 s31, s31, s29")
    a("s_lshl_b32 s31, s31, 17")
    a("s_lshl_b32 s32, s22, 1")
    a("s_add_u32 s32, s32, s28")
    a("s_lshl_b32 s32, s32, 11")
    a("s_add_u32 s31, s31, s32")
    a("v_lshlrev_b32 v12, 4, v1")
    a("v_bfe_u32 v9, v1, 4, 1")
    a("v_lshlrev_b32 v13, 16, v9")
    a("v_lshl_add_u32 v13, v8, 8, v13")
    a("v_and_b32 v9, 15, v1")
    a("v_lshl_add_u32 v13, v9, 4, v13")
    FA, FB = 128, 148
    def reads(F, s):
        L = []
        L.append(f"ds_read_b128 v[{F}:{F+3}], v{2+s}")
        L.append(f"ds_read_b64_tr_b16 v[{F+8}:{F+9}], v6 offset:{(16*s)*128}")
        L.append(f"ds_read_b64_tr_b16 v[{F+10}:{F+11}], v6 offset:{(16*s+4)*128}")
        L.append(f"ds_read_b128 v[{F+4}:{F+7}], v{2+s} offset:4096")
        for t in (1, 2):
            L.append(f"ds_read_b64_tr_b16 v[{F+8+4*t}:{F+9+4*t}], v6 offset:{t*8192 + (16*s)*128}")
            L.append(f"ds_read_b64_tr_b16 v[{F+10+4*t}:{F+11+4*t}], v6 offset:{t*8192 + (16*s+4)*128}")
        return L
    def mfmas(F):
        L = []
        for t in range(3):
            for tile in range(2):
                x = f"v[{F+4*tile}:{F+4*tile+3}]"
                w = f"v[{F+8+4*t}:{F+11+4*t}]"
                d = f"v[{acc(tile,t)}:{acc(tile,t)+15}]"
                if t < 2:
                    L.append(f"v_mfma_f32_32x32x16_bf16 {d}, {w}, {x}, {d}")
                else:
                    L.append(f"v_mfma_f32_32x32x16_bf16 {d}, {x}, {w}, {d}")
        return L
    def interleave(M, R):
        out = [M[0]] + R[0:3] + [M[1]] + R[3:6] + [M[2]] + R[6:8] + M[3:]
        return out
    a("s_mov_b32 s34, 0")
    a("s_mov_b32 s35, 40960")
    D.stamp()
    a("s_barrier")
    D.stamp()
    for l in reads(FA, 0): a(l)
    a("L1_c_loop:")
    for s in range(3):
        cur, nxt = (FA, FB) if s % 2 == 0 else (FB, FA)
        a("s_waitcnt lgkmcnt(0)")
        for l in interleave(mfmas(cur), reads(nxt, s+1)): a(l)
    a("s_add_u32 s34, s34, 1")
    a("s_cmp_eq_u32 s34, 4")
    a("s_cselect_b32 s36, -122880, s35")
    for r in (2, 3, 4, 5, 6):
        a(f"v_add_u32 v{r}, s36, v{r}")
    a("s_cmp_eq_u32 s34, 8")
    a("s_waitcnt lgkmcnt(0)")
    a("s_cbranch_scc1 L1_c_last")
    a("s_barrier")
    for l in interleave(mfmas(FB), reads(FA, 0)): a(l)
    a("s_branch L1_c_loop")
    a("L1_c_last:")
    for l in mfmas(FB): a(l)
    D.stamp()
    a(f"s_mov_b32 s36, {f2u(QSCALE)}")
    a(f"s_add_u32 s32, s31, {2*MB}")
    a(f"s_add_u32 s33, s31, {4*MB}")
    a("s_add_u32 s37, s31, 65536")
    a("s_add_u32 s38, s32, 65536")
    a("s_nop 7")
    for t in range(3):
        for tile in range(2):
            A0 = acc(tile, t)
            if t == 0:
                for r in range(16):
                    a(f"v_mul_f32 v{A0+r}, s36, v{A0+r}")
            for r in range(8):
                a(f"v_cvt_pk_bf16_f32 v{A0+r}, v{A0+2*r}, v{A0+2*r+1}")
            if t < 2:
                a(f"buffer_store_dwordx4 v[{A0}:{A0+3}], v12, s[24:27], s{31+t} offen offset:{1024*tile}")
                a(f"buffer_store_dwordx4 v[{A0+4}:{A0+7}], v12, s[24:27], s{37+t} offen offset:{1024*tile}")
            else:
                a(f"buffer_store_dwordx4 v[{A0}:{A0+3}], v13, s[24:27], s33 offen offset:{1024*tile}")
                a(f"buffer_store_dwordx4 v[{A0+4}:{A0+7}], v13, s[24:27], s33 offen offset:{1024*tile+512}")
    if D.on:
        a("s_waitcnt vmcnt(0)")
        D.stamp(); D.stamp(True)
        D.flush()
    a("L1_end:")
    a("s_endpgm")
    return 168

def gen_k2(a, opt):
    a(".p2align 8")
    a(".globl attn_kernel")
    a(".type attn_kernel,@function")
    a("attn_kernel:")
    a("s_cmp_ge_u32 s2, 256")
    a("s_cbranch_scc1 L2_end")
    D = Diag(a, opt, 1); D.stamp(True); D.stamp()
    a("s_load_dwordx2 s[4:5], s[0:1], 0")
    a("s_load_dwordx2 s[6:7], s[0:1], 48")
    a("s_load_dwordx2 s[10:11], s[0:1], 72")
    a("v_lshrrev_b32 v2, 6, v0")
    a("v_and_b32 v1, 63, v0")
    a("v_readfirstlane_b32 s20, v2")
    a("v_lshlrev_b32 v2, 4, v1")
    a("s_and_b32 s21, s2, 7")
    a("s_lshl_b32 s21, s21, 2")
    a("s_bfe_u32 s22, s2, 0x20003")
    a("s_add_u32 s21, s21, s22")
    a("s_lshr_b32 s22, s2, 5")
    a("s_lshl_b32 s22, s22, 3")
    a("s_add_u32 s22, s22, s20")
    a("s_lshl_b32 s23, s21, 16")
    a("s_lshl_b32 s28, s22, 10")
    a("s_add_u32 s28, s28, s23")
    a("s_cmp_lt_u32 s22, 2")
    a("s_cselect_b32 s29, 0, 2048")
    a(f"s_cselect_b32 s44, {f2u(1000.0)}, 0")
    a("s_sub_u32 s29, s28, s29")
    a("v_lshrrev_b32 v8, 5, v1")
    a("v_and_b32 v7, 31, v1")
    a("v_lshlrev_b32 v6, 4, v7")
    a("v_lshl_add_u32 v6, v8, 8, v6")
    QA, KAC, KAP, VA0, VA1, VAP = 112, 116, 120, 124, 128, 132
    GX, GW = 136, 140
    Q, KF, V0, V1 = 8, 12, 16, 20
    S = [32, 48]; P = [64, 72]; O = 80; NM = 96
    a("v_mov_b32 v24, v7")
    a("v_mov_b32 v25, v8")
    for r in range(12):
        a(f"v_mov_b32 v{VA0+r}, 0x3f803f80")
    a("s_waitcnt lgkmcnt(0)")
    a("s_mov_b32 s12, s10")
    a("s_mov_b32 s13, s11")
    a(f"s_mov_b32 s14, {WS_SIZE}")
    a("s_mov_b32 s15, 0x00020000")
    a(f"s_add_u32 s30, s28, {WS_QA}")
    a(f"buffer_load_dwordx4 v[{QA}:{QA+3}], v2, s[12:15], s30 offen")
    a(f"s_add_u32 s30, s28, {WS_KA}")
    a(f"buffer_load_dwordx4 v[{KAC}:{KAC+3}], v2, s[12:15], s30 offen")
    a(f"s_add_u32 s30, s29, {WS_KA}")
    a(f"buffer_load_dwordx4 v[{KAP}:{KAP+3}], v2, s[12:15], s30 offen")
    a("s_mov_b32 exec_lo, 0x0000ffff")
    a("s_mov_b32 exec_hi, 0x0000ffff")
    a(f"s_add_u32 s30, s28, {WS_VA}")
    a(f"buffer_load_dwordx4 v[{VA0}:{VA0+3}], v6, s[12:15], s30 offen")
    a(f"buffer_load_dwordx4 v[{VA1}:{VA1+3}], v6, s[12:15], s30 offen offset:512")
    a(f"s_add_u32 s30, s29, {WS_VA}")
    a(f"buffer_load_dwordx4 v[{VAP}:{VAP+3}], v6, s[12:15], s30 offen offset:512")
    a("s_mov_b64 exec, -1")
    a("s_mov_b32 s16, s4")
    a("s_mov_b32 s17, s5")
    a("s_mov_b32 s18, 0x200000")
    a("s_mov_b32 s19, 0x00020000")
    a("s_mov_b32 s24, s6")
    a("s_mov_b32 s25, s7")
    a("s_mov_b32 s26, 1024")
    a("s_mov_b32 s27, 0x00020000")
    a("s_lshl_b32 s31, s2, 3")
    a("s_add_u32 s31, s31, s20")
    a("s_lshl_b32 s30, s31, 10")
    a(f"buffer_load_dwordx4 v[{GX}:{GX+3}], v2, s[16:19], s30 offen")
    a(f"buffer_load_dwordx4 v[{GW}:{GW+3}], v2, s[24:27], 0 offen")
    a(f"buffer_load_dwordx4 v[{Q}:{Q+3}], v2, s[12:15], s28 offen")
    a("s_lshl_b32 s32, s20, 11")
    a("s_mov_b32 m0, s32")
    a("s_add_u32 s33, s32, s23")
    a(f"s_add_u32 s30, s33, {WS_KB}")
    a("buffer_load_dwordx4 v2, s[12:15], s30 offen lds")
    a("buffer_load_dwordx4 v2, s[12:15], s30 offen offset:1024 lds")
    a("s_mul_i32 s34, s20, 2080")
    a("s_add_u32 m0, s34, 65536")
    a(f"s_add_u32 s30, s33, {WS_VB}")
    a("buffer_load_dwordx4 v2, s[12:15], s30 offen lds")
    a("s_add_u32 m0, s34, 65536+16")
    a("s_nop 0")
    a("buffer_load_dwordx4 v2, s[12:15], s30 offen offset:1024 lds")
    a("s_mul_i32 s32, s20, 6144")
    a("s_add_u32 s32, s32, 16384")
    a("s_add_u32 s33, s32, s23")
    a("s_mov_b32 m0, s32")
    a(f"s_add_u32 s30, s33, {WS_KB}")
    for i in range(3):
        a(f"buffer_load_dwordx4 v2, s[12:15], s30 offen offset:{1024*i} lds")
    a("s_add_u32 m0, s32, 3072")
    a(f"s_add_u32 s30, s33, {WS_KB+3072}")
    for i in range(3):
        a(f"buffer_load_dwordx4 v2, s[12:15], s30 offen offset:{1024*i} lds")
    a("s_mul_i32 s34, s20, 6240")
    for i in range(6):
        a(f"s_add_u32 m0, s34, {65536 + 16*1040 + 1040*i}")
        a(f"s_add_u32 s30, s33, {WS_VB + 1024*i}")
        a("buffer_load_dwordx4 v2, s[12:15], s30 offen lds")
    code_prefetch(a, "attn_kernel", "L_code_end", 26, 7, 40)
    a("s_cmp_lg_u32 s20, 0")
    a("s_cbranch_scc1 L2_no_ones")
    a("v_mul_u32_u24 v26, 1040, v1")
    a("v_mov_b32 v28, 0x3f803f80")
    a("v_mov_b32 v29, 0x3f803f80")
    a("v_mov_b32 v30, 0x3f803f80")
    a("v_mov_b32 v31, 0x3f803f80")
    a("v_add_u32 v26, 65536+1024, v26")
    a("ds_write_b128 v26, v[28:31]")
    a("L2_no_ones:")
    a("v_cmp_gt_u32 vcc, 16, v24")
    a("v_add_u32 v3, 65536, v6")
    a("v_add_u32 v4, 65536+512, v6")
    a("v_mov_b32 v5, 65536+1024")
    a("v_cndmask_b32 v3, v5, v3, vcc")
    a("v_cndmask_b32 v4, v5, v4, vcc")
    a("v_mov_b32 v5, v2")
    a("v_lshlrev_b32 v26, 2, v25")
    a("v_sub_u32 v26, v24, v26")
    a("v_cvt_f32_i32 v26, v26")
    a(f"v_add_f32 v26, {f2u(-3.5)}, v26")
    a("v_add_f32 v28, s44, v26")
    a(f"s_mov_b32 s45, {f2u(-1e30)}")
    for r in range(16):
        cst = 8*(r//4) + (r % 4)
        a(f"v_subrev_f32 v{S[0]+r}, {f2u(float(cst))}, v26")
    for b in range(4):
        a(f"v_subrev_f32 v{S[1]+12+b}, {f2u(float(b-8))}, v28")
    regs = [S[0]+r for r in range(16)] + [S[1]+12+b for b in range(4)]
    for r in regs:
        a(f"v_add_f32_e64 v{r}, |v{r}|, -4.0 clamp")
    for r in regs:
        a(f"v_mul_f32 v{r}, s45, v{r}")
    a(f"v_mov_b32 v{P[1]}, 0")
    a(f"v_mov_b32 v{P[1]+1}, 0")
    D.stamp()
    a("s_waitcnt vmcnt(23)")
    D.stamp()
    a(f"v_mfma_f32_32x32x16_bf16 v[{S[0]}:{S[0]+15}], v[{KAC}:{KAC+3}], v[{QA}:{QA+3}], v[{S[0]}:{S[0]+15}]")
    a(f"v_mfma_f32_32x32x16_bf16 v[{S[1]}:{S[1]+15}], v[{KAP}:{KAP+3}], v[{QA}:{QA+3}], v[{S[1]}:{S[1]+15}]")
    a("s_waitcnt vmcnt(18)")
    a(f"v_dot2_f32_bf16 v28, v{GX}, v{GW}, 0")
    a(f"v_dot2_f32_bf16 v29, v{GX+1}, v{GW+1}, 0")
    a(f"v_dot2_f32_bf16 v28, v{GX+2}, v{GW+2}, v28")
    a(f"v_dot2_f32_bf16 v29, v{GX+3}, v{GW+3}, v29")
    a("s_nop 2")
    a("v_add_f32 v28, v28, v29")
    a("s_nop 1")
    a("v_add_f32_dpp v28, v28, v28 row_shr:1 row_mask:0xf bank_mask:0xf bound_ctrl:0")
    a("s_nop 1")
    a("v_add_f32_dpp v28, v28, v28 row_shr:2 row_mask:0xf bank_mask:0xf bound_ctrl:0")
    a("s_nop 1")
    a("v_add_f32_dpp v28, v28, v28 row_shr:4 row_mask:0xf bank_mask:0xf bound_ctrl:0")
    a("s_nop 1")
    a("v_add_f32_dpp v28, v28, v28 row_shr:8 row_mask:0xf bank_mask:0xf bound_ctrl:0")
    a(f"v_max3_f32 v26, v{S[0]}, v{S[0]+1}, v{S[0]+2}")
    a(f"v_max3_f32 v27, v{S[0]+3}, v{S[0]+4}, v{S[0]+5}")
    a("v_add_f32_dpp v28, v28, v28 row_bcast:15 row_mask:0xa bank_mask:0xf")
    a(f"v_max3_f32 v26, v26, v{S[0]+6}, v{S[0]+7}")
    a(f"v_max3_f32 v27, v27, v{S[0]+8}, v{S[0]+9}")
    a("v_add_f32_dpp v28, v28, v28 row_bcast:31 row_mask:0xc bank_mask:0xf")
    a(f"v_max3_f32 v26, v26, v{S[0]+10}, v{S[0]+11}")
    a(f"v_mul_f32 v28, {f2u(-math.log2(math.e))}, v28")
    a(f"v_max3_f32 v27, v27, v{S[0]+12}, v{S[0]+13}")
    a("v_exp_f32 v28, v28")
    a(f"v_max3_f32 v26, v26, v{S[0]+14}, v{S[0]+15}")
    a("v_add_f32 v28, 1.0, v28")
    a(f"v_max3_f32 v27, v27, v{S[1]+12}, v{S[1]+13}")
    a("v_rcp_f32 v28, v28")
    a(f"v_max3_f32 v26, v26, v{S[1]+14}, v{S[1]+15}")
    a("v_max_f32 v26, v26, v27")
    a("v_mov_b32 v27, v26")
    a("s_lshl_b32 s30, s31, 2")
    a(f"s_add_u32 s30, s30, {WS_G}")
    a("v_mov_b32 v29, 0")
    a("v_permlane32_swap_b32 v26, v27")
    a("s_mov_b32 exec_lo, 0")
    a("s_mov_b32 exec_hi, 0x80000000")
    a("buffer_store_dword v28, v29, s[12:15], s30 offen")
    a("s_mov_b64 exec, -1")
    a("v_max_f32 v26, v26, v27")
    for r in regs:
        a(f"v_sub_f32 v{r}, v{r}, v26")
    for r in regs:
        a(f"v_exp_f32 v{r}, v{r}")
    a(f"v_cvt_pk_bf16_f32 v{P[1]+2}, v{S[1]+12}, v{S[1]+13}")
    for i in range(8):
        a(f"v_cvt_pk_bf16_f32 v{P[0]+i}, v{S[0]+2*i}, v{S[0]+2*i+1}")
    a(f"v_cvt_pk_bf16_f32 v{P[1]+3}, v{S[1]+14}, v{S[1]+15}")
    a(f"v_mfma_f32_32x32x16_bf16 v[{O}:{O+15}], v[{VA0}:{VA0+3}], v[{P[0]}:{P[0]+3}], 0")
    a(f"v_mfma_f32_32x32x16_bf16 v[{O}:{O+15}], v[{VA1}:{VA1+3}], v[{P[0]+4}:{P[0]+7}], v[{O}:{O+15}]")
    a(f"v_mfma_f32_32x32x16_bf16 v[{O}:{O+15}], v[{VAP}:{VAP+3}], v[{P[1]}:{P[1]+3}], v[{O}:{O+15}]")
    D.stamp()
    a("s_waitcnt vmcnt(14) lgkmcnt(0)")
    a("s_barrier")
    D.stamp()
    a(f"ds_read_b128 v[{KF}:{KF+3}], v5")
    a("s_lshl_b32 s36, s22, 15")
    a("s_lshl_b32 s37, s21, 10")
    a("s_add_u32 s36, s36, s37")
    a(f"s_add_u32 s37, s36, {WS_OA}")
    a(f"s_add_u32 s36, s36, {WS_OB}")
    a("s_nop 4")
    a(f"v_rcp_f32 v26, v{O+8}")
    a("s_nop 0")
    for r in range(8):
        a(f"v_mul_f32 v{O+r}, v{O+r}, v26")
    for i in range(4):
        a(f"v_cvt_pk_bf16_f32 v{O+i}, v{O+2*i}, v{O+2*i+1}")
    a(f"buffer_store_dwordx4 v[{O}:{O+3}], v2, s[12:15], s37 offen")
    a("s_waitcnt lgkmcnt(0)")
    a(f"v_mfma_f32_32x32x16_bf16 v[{S[0]}:{S[0]+15}], v[{KF}:{KF+3}], v[{Q}:{Q+3}], 0")
    a("s_mov_b32 s38, 0")
    a("s_nop 7")
    a("s_nop 3")
    a(f"v_max3_f32 v26, v{S[0]}, v{S[0]+1}, v{S[0]+2}")
    a(f"v_max3_f32 v27, v{S[0]+3}, v{S[0]+4}, v{S[0]+5}")
    for i in range(2):
        a(f"v_max3_f32 v26, v26, v{S[0]+6+4*i}, v{S[0]+7+4*i}")
        a(f"v_max3_f32 v27, v27, v{S[0]+8+4*i}, v{S[0]+9+4*i}")
    a(f"v_max3_f32 v26, v26, v{S[0]+14}, v{S[0]+15}")
    a("v_max_f32 v26, v26, v27")
    a("L2_setmax:")
    a("v_mov_b32 v27, v26")
    a("s_nop 1")
    a("v_permlane32_swap_b32 v26, v27")
    a("s_nop 1")
    a("v_max_f32 v26, v26, v27")
    for r in range(16):
        a(f"v_sub_f32 v{NM+r}, 0, v26")
    for r in range(8):
        a(f"v_mov_b32 v{P[1]+r}, 0")
        a(f"v_mov_b32 v{V0+r}, 0")
    for r in range(16):
        a(f"v_mov_b32 v{O+r}, 0")
    a(f"v_mfma_f32_32x32x16_bf16 v[{S[0]}:{S[0]+15}], v[{KF}:{KF+3}], v[{Q}:{Q+3}], v[{NM}:{NM+15}]")
    a(f"ds_read_b128 v[{KF}:{KF+3}], v5 offset:1024")
    a("s_mov_b32 s39, 0")
    a("s_nop 7")
    a("s_waitcnt lgkmcnt(0)")
    D.stamp()
    U = opt.get("unroll", 8)
    a(".p2align 6")
    a("L2_loop:")
    for u in range(U):
        cur, nxt = S[u & 1], S[(u+1) & 1]
        Pc, Pp = P[u & 1], P[(u+1) & 1]
        ex = [f"v_exp_f32 v{cur+i}, v{cur+i}" for i in range(16)]
        cv = [f"v_cvt_pk_bf16_f32 v{Pc+i}, v{cur+2*i}, v{cur+2*i+1}" for i in range(8)]
        a(f"v_mfma_f32_32x32x16_bf16 v[{nxt}:{nxt+15}], v[{KF}:{KF+3}], v[{Q}:{Q+3}], v[{NM}:{NM+15}]")
        a(f"ds_read_b128 v[{KF}:{KF+3}], v5 offset:{(u+2)*1024}")
        for l in ex[0:4] + [cv[0]] + ex[4:6] + [cv[1]]: a(l)
        a("s_waitcnt lgkmcnt(2)")
        a(f"v_mfma_f32_32x32x16_bf16 v[{O}:{O+15}], v[{V0}:{V0+3}], v[{Pp}:{Pp+3}], v[{O}:{O+15}]")
        a(f"ds_read_b128 v[{V0}:{V0+3}], v3 offset:{u*1040}")
        for l in ex[6:8] + [cv[2]] + ex[8:10] + [cv[3]] + ex[10:12] + [cv[4]]: a(l)
        a("s_waitcnt lgkmcnt(2)")
        a(f"v_mfma_f32_32x32x16_bf16 v[{O}:{O+15}], v[{V1}:{V1+3}], v[{Pp+4}:{Pp+7}], v[{O}:{O+15}]")
        a(f"ds_read_b128 v[{V1}:{V1+3}], v4 offset:{u*1040}")
        for l in ex[12:14] + [cv[5]] + ex[14:16] + [cv[6]]: a(l)
        if u == U-1:
            a(f"v_add_u32 v5, {1024*U}, v5")
            a(f"v_add_u32 v3, {1040*U}, v3")
            a(f"v_add_u32 v4, {1040*U}, v4")
            a("s_add_u32 s39, s39, 1")
        a("s_waitcnt lgkmcnt(2)")
        a(cv[7])
    a("s_cmp_eq_u32 s39, 1")
    a("s_cbranch_scc0 L2_nobar")
    a("s_cmp_eq_u32 s38, 0")
    a("s_cbranch_scc0 L2_nobar")
    a("s_waitcnt vmcnt(0)")
    a("s_barrier")
    a("L2_nobar:")
    a(f"s_cmp_lt_u32 s39, {64//U}")
    a("s_cbranch_scc1 L2_loop")
    a("s_waitcnt lgkmcnt(0)")
    D.stamp()
    a(f"v_mfma_f32_32x32x16_bf16 v[{O}:{O+15}], v[{V0}:{V0+3}], v[{P[1]}:{P[1]+3}], v[{O}:{O+15}]")
    a(f"v_mfma_f32_32x32x16_bf16 v[{O}:{O+15}], v[{V1}:{V1+3}], v[{P[1]+4}:{P[1]+7}], v[{O}:{O+15}]")
    a(f"s_mov_b32 s40, {f2u(2.0**100)}")
    a("s_nop 7")
    a("s_nop 3")
    a(f"v_mul_f32 v26, 0, v{O}")
    for r in range(1, 8):
        a(f"v_fma_f32 v26, v{O+r}, 0, v26")
    a(f"v_add_f32 v26, v26, v{O+8}")
    a(f"v_rcp_f32 v27, v{O+8}")
    a("v_cmp_nlt_f32 vcc, v26, s40")
    a("s_cmp_eq_u32 s38, 0")
    a("s_cbranch_scc0 L2_fin")
    a("s_nop 1")
    a("s_cbranch_vccnz L2_fallback")
    a("L2_fin:")
    for r in range(8):
        a(f"v_mul_f32 v{O+r}, v{O+r}, v27")
    for i in range(4):
        a(f"v_cvt_pk_bf16_f32 v{O+i}, v{O+2*i}, v{O+2*i+1}")
    a(f"buffer_store_dwordx4 v[{O}:{O+3}], v2, s[12:15], s36 offen")
    if D.on:
        a("s_waitcnt vmcnt(0)")
        D.stamp(); D.stamp(True)
        D.flush()
    a("L2_end:")
    a("s_endpgm")
    a("L2_fallback:")
    a("s_mov_b32 s38, 1")
    a("v_mov_b32 v5, v2")
    a(f"v_subrev_u32 v3, {1040*64}, v3")
    a(f"v_subrev_u32 v4, {1040*64}, v4")
    a(f"v_mov_b32 v26, {f2u(-3.0e38)}")
    a("s_mov_b32 s39, 0")
    a("L2_fb_loop:")
    a(f"ds_read_b128 v[{KF}:{KF+3}], v5")
    a("v_add_u32 v5, 1024, v5")
    a("s_waitcnt lgkmcnt(0)")
    a(f"v_mfma_f32_32x32x16_bf16 v[{S[0]}:{S[0]+15}], v[{KF}:{KF+3}], v[{Q}:{Q+3}], 0")
    a("s_nop 7")
    a("s_nop 3")
    for i in range(8):
        a(f"v_max3_f32 v26, v26, v{S[0]+2*i}, v{S[0]+2*i+1}")
    a("s_add_u32 s39, s39, 1")
    a("s_cmp_lt_u32 s39, 64")
    a("s_cbranch_scc1 L2_fb_loop")
    a("v_mov_b32 v5, v2")
    a(f"ds_read_b128 v[{KF}:{KF+3}], v5")
    a("s_waitcnt lgkmcnt(0)")
    a("s_branch L2_setmax")
    return 144

def gen_k3(a, opt):
    a(".p2align 8")
    a(".globl oproj_kernel")
    a(".type oproj_kernel,@function")
    a("oproj_kernel:")
    a("s_cmp_ge_u32 s2, 256")
    a("s_cbranch_scc1 L3_end")
    D = Diag(a, opt, 2); D.stamp(True); D.stamp()
    a("s_load_dwordx2 s[4:5], s[0:1], 16")
    a("s_load_dwordx2 s[6:7], s[0:1], 40")
    a("s_load_dwordx2 s[8:9], s[0:1], 56")
    a("s_load_dwordx2 s[10:11], s[0:1], 72")
    a("v_lshrrev_b32 v2, 6, v0")
    a("v_and_b32 v1, 63, v0")
    a("v_readfirstlane_b32 s20, v2")
    a("v_lshlrev_b32 v2, 4, v1")
    a("s_and_b32 s21, s2, 7")
    a("s_lshl_b32 s21, s21, 2")
    a("s_bfe_u32 s22, s2, 0x20003")
    a("s_add_u32 s21, s21, s22")
    a("s_lshr_b32 s22, s2, 5")
    a("s_and_b32 s23, s20, 1")
    a("s_lshr_b32 s28, s20, 1")
    a("s_and_b32 s29, s28, 1")
    a("s_lshl_b32 s30, s21, 1")
    a("s_add_u32 s30, s30, s23")
    a("s_lshl_b32 s30, s30, 15")
    a("s_lshl_b32 s31, s29, 14")
    a("s_add_u32 s30, s30, s31")
    a("s_lshr_b32 s31, s28, 1")
    a("s_lshl_b32 s32, s31, 21")
    a("s_add_u32 s30, s30, s32")
    a(f"s_add_u32 s30, s30, {WS_OA}")
    a("v_lshrrev_b32 v5, 3, v1")
    a("v_bfe_u32 v6, v1, 4, 1")
    a("v_lshlrev_b32 v6, 2, v6")
    a("v_and_b32 v7, 7, v1")
    a("v_xor_b32 v6, v7, v6")
    a("v_lshlrev_b32 v4, 10, v5")
    a("v_lshl_add_u32 v4, v6, 4, v4")
    a("s_lshl_b32 s33, s29, 18")
    a("s_lshl_b32 s32, s23, 16")
    a("s_add_u32 s33, s33, s32")
    a("s_lshl_b32 s32, s22, 7")
    a("s_add_u32 s33, s33, s32")
    a("s_lshl_b32 s34, s28, 15")
    a("s_lshl_b32 s32, s23, 13")
    a("s_add_u32 s35, s34, s32")
    a("v_and_b32 v7, 31, v1")
    a("v_lshlrev_b32 v8, 3, v7")
    a("s_lshl_b32 s36, s21, 8")
    a("s_lshl_b32 s32, s23, 2")
    a("s_add_u32 s36, s36, s32")
    a(f"s_add_u32 s36, s36, {WS_G}")
    a("s_cmp_eq_u32 s31, 0")
    a("s_waitcnt lgkmcnt(0)")
    a("s_mov_b32 s12, s10")
    a("s_mov_b32 s13, s11")
    a(f"s_mov_b32 s14, {WS_SIZE}")
    a("s_mov_b32 s15, 0x00020000")
    a("s_cselect_b32 s16, s4, s6")
    a("s_cselect_b32 s17, s5, s7")
    a("s_mov_b32 s18, 0x80000")
    a("s_mov_b32 s19, 0x00020000")
    OF = 64
    for p in range(2):
        for g in range(8):
            a(f"s_add_u32 m0, s35, {p*16384 + g*1024}")
            a(f"s_add_u32 s32, s33, {p*131072 + g*8192}")
            a("buffer_load_dwordx4 v4, s[16:19], s32 offen lds")
        for i in range(8):
            if i % 4 == 0:
                a(f"s_add_u32 s32, s30, {(8*p+i)*1024}")
            a(f"buffer_load_dwordx4 v[{OF+4*(8*p+i)}:{OF+4*(8*p+i)+3}], v2, s[12:15], s32 offen offset:{(i%4)*1024}")
    a("buffer_load_dword v9, v8, s[12:15], s36 offen")
    code_prefetch(a, "oproj_kernel", "L_code_end", 10, 11, 40)
    a("s_mov_b32 s24, s8")
    a("s_mov_b32 s25, s9")
    a("s_mov_b32 s26, 0x200000")
    a("s_mov_b32 s27, 0x00020000")
    a("v_lshrrev_b32 v14, 5, v1")
    a("v_bfe_u32 v15, v1, 2, 2")
    a("v_lshl_add_u32 v12, v14, 2, v15")
    a("v_lshlrev_b32 v12, 7, v12")
    a("v_bfe_u32 v15, v1, 4, 1")
    a("v_lshl_add_u32 v12, v15, 5, v12")
    a("v_and_b32 v15, 3, v1")
    a("v_lshl_add_u32 v12, v15, 3, v12")
    a("v_add_u32 v12, s34, v12")
    a("v_bfe_u32 v15, v1, 3, 1")
    a("v_lshlrev_b32 v15, 6, v15")
    a("v_xor_b32 v13, 64, v15")
    a("v_add_u32 v13, v12, v13")
    a("v_add_u32 v12, v12, v15")
    a("s_lshl_b32 s32, s23, 2")
    a("s_add_u32 s32, s32, s28")
    a("s_lshl_b32 s32, s32, 11")
    a("v_add_u32 v16, s32, v2")
    a("v_add_u32 v17, 0x10000, v16")
    a("v_add_u32 v18, s35, v2")
    a("v_lshlrev_b32 v19, 11, v7")
    a("v_lshl_add_u32 v19, v14, 4, v19")
    a("s_lshl_b32 s37, s21, 6")
    a("s_add_u32 s37, s37, s23")
    a("s_lshl_b32 s37, s37, 10")
    a("s_lshl_b32 s32, s22, 7")
    a("s_add_u32 s37, s37, s32")
    a("s_lshl_b32 s32, s28, 5")
    a("s_add_u32 s37, s37, s32")
    ACC = [32, 48]
    WF = [20, 128]
    def rd(setb, i):
        return [f"ds_read_b64_tr_b16 v[{setb}:{setb+1}], v12 offset:{(16*i)*128}",
                f"ds_read_b64_tr_b16 v[{setb+2}:{setb+3}], v12 offset:{(16*i+8)*128}",
                f"ds_read_b64_tr_b16 v[{setb+4}:{setb+5}], v13 offset:{(16*i)*128}",
                f"ds_read_b64_tr_b16 v[{setb+6}:{setb+7}], v13 offset:{(16*i+8)*128}"]
    for p in range(2):
        D.stamp()
        a(f"s_waitcnt vmcnt({18 if p == 0 else 2})")
        a("s_barrier")
        D.stamp()
        for l in rd(WF[0], 8*p): a(l)
        for i in range(8):
            gi = 8*p + i
            cur, nxt = WF[i & 1], WF[(i+1) & 1]
            if i < 7:
                for l in rd(nxt, gi+1): a(l)
                a("s_waitcnt lgkmcnt(4)")
            else:
                a("s_waitcnt lgkmcnt(0)")
            for ctl in range(2):
                c = "0" if gi == 0 else f"v[{ACC[ctl]}:{ACC[ctl]+15}]"
                a(f"v_mfma_f32_32x32x16_bf16 v[{ACC[ctl]}:{ACC[ctl]+15}], v[{cur+4*ctl}:{cur+4*ctl+3}], v[{OF+4*gi}:{OF+4*gi+3}], {c}")
    D.stamp()
    a("s_waitcnt vmcnt(1)")
    a("v_sub_f32 v10, 1.0, v9")
    a("s_cmp_eq_u32 s31, 0")
    a("s_cselect_b64 vcc, -1, 0")
    a("s_nop 4")
    a("v_cndmask_b32 v9, v10, v9, vcc")
    a("s_nop 4")
    for r in range(32):
        a(f"v_mul_f32 v{32+r}, v9, v{32+r}")
    for q in range(4):
        base = "v16" if q < 2 else "v17"
        off = (q & 1) * 32768
        a(f"ds_write_b128 {base}, v[{32+8*q}:{32+8*q+3}] offset:{off}")
        a(f"ds_write_b128 {base}, v[{32+8*q+4}:{32+8*q+7}] offset:{off+1024}")
    a("s_waitcnt lgkmcnt(0)")
    a("s_barrier")
    for src in range(4):
        a(f"ds_read_b128 v[{64+8*src}:{64+8*src+3}], v18 offset:{src*2048}")
        a(f"ds_read_b128 v[{64+8*src+4}:{64+8*src+7}], v18 offset:{src*2048+1024}")
    a("s_waitcnt lgkmcnt(4)")
    for r in range(8):
        a(f"v_add_f32 v{64+r}, v{64+r}, v{72+r}")
    a("s_waitcnt lgkmcnt(0)")
    for r in range(8):
        a(f"v_add_f32 v{80+r}, v{80+r}, v{88+r}")
    for r in range(8):
        a(f"v_add_f32 v{64+r}, v{64+r}, v{80+r}")
    for i in range(4):
        a(f"v_cvt_pk_bf16_f32 v{64+i}, v{64+2*i}, v{64+2*i+1}")
    a("s_nop 1")
    a("v_permlane32_swap_b32 v64, v66")
    a("v_permlane32_swap_b32 v65, v67")
    a("s_nop 1")
    a("buffer_store_dwordx4 v[64:67], v19, s[24:27], s37 offen")
    if opt.get("xcdtest"):
        a("s_cmp_lg_u32 s2, 0")
        a("s_cbranch_scc1 L3_end")
        a("s_cmp_lg_u32 s20, 0")
        a("s_cbranch_scc1 L3_end")
        a("s_mov_b32 s52, s10")
        a("s_mov_b32 s53, s11")
        a(f"s_mov_b32 s54, {64*MB}")
        a("s_mov_b32 s55, 0x00020000")
        a(f"s_mov_b32 s51, {20*MB}")
        a("buffer_load_dwordx4 v[20:23], v2, s[52:55], s51 offen")
        a("s_waitcnt vmcnt(0)")
        a("v_readfirstlane_b32 s50, v20")
        a("v_xor_b32 v20, s50, v20")
        a("v_xor_b32 v21, s50, v21")
        a("v_xor_b32 v22, s50, v22")
        a("v_xor_b32 v23, s50, v23")
        a("v_or_b32 v20, v20, v21")
        a("v_or_b32 v22, v22, v23")
        a("v_or_b32 v20, v20, v22")
        a("v_cmp_ne_u32 vcc, 0, v20")
        a("s_nop 4")
        a(f"s_cbranch_vcc{'z' if opt['xcdtest'] == 1 else 'nz'} L3_end")
        a("s_mov_b32 s50, 0")
        a("L3_slp:")
        a("s_sleep 127")
        a("s_add_u32 s50, s50, 1")
        a("s_cmp_lt_u32 s50, 12")
        a("s_cbranch_scc1 L3_slp")
    if D.on:
        a("s_waitcnt vmcnt(0)")
        D.stamp(); D.stamp(True)
        D.flush()
    a("L3_end:")
    a("s_endpgm")
    return 136

HEADER = open("gated_mix__sliding_local_dilated__softmax_full_mha__prompt.s.ref").read().split("; Override launch")[0]

def main(out, opt):
    a = Asm()
    n1 = gen_k1(a, opt)
    n2 = gen_k2(a, opt)
    n3 = gen_k3(a, opt)
    a("L_code_end:")
    a("s_endpgm")
    s = HEADER
    s += "; generated by gen/gen.py (hand-written generator)\n"
    s += "; @launch kernel=qkv_kernel grid=(256,1,1) block=(512,1,1) lds=163840\n"
    s += "; @launch kernel=attn_kernel grid=(256,1,1) block=(512,1,1) lds=132096\n"
    s += "; @launch kernel=oproj_kernel grid=(256,1,1) block=(512,1,1) lds=131072\n"
    s += '.amdgcn_target "amdgcn-amd-amdhsa--gfx950"\n.text\n'
    s += a.text()
    s += kd("qkv_kernel", n1) + kd("attn_kernel", n2) + kd("oproj_kernel", n3)
    open(out, "w").write(s)

if __name__ == "__main__":
    out = sys.argv[1] if len(sys.argv) > 1 else "gated_mix__sliding_local_dilated__softmax_full_mha__prompt.s"
    opt = {}
    for kv in sys.argv[2:]:
        k, v = kv.split("=")
        opt[k] = int(v)
    main(out, opt)
```

```python
import sys, math, struct
from asmlib import *

MB = 1 << 20
WS_QB, WS_KB, WS_VB = 0, 2*MB, 4*MB
WS_QA, WS_KA, WS_VA = 6*MB, 8*MB, 10*MB
WS_OA, WS_OB, WS_G = 12*MB, 14*MB, 16*MB
WS_SIZE = 17*MB
QSCALE = 0.25 * math.log2(math.e)
def f2u(x): return struct.unpack("<I", struct.pack("<f", x))[0]

def code_prefetch(a, start, end, vtmp, vdst, slo):
    a(f"s_getpc_b64 s[{slo}:{slo+1}]")
    lab = f"Lpc_{start}_{vtmp}"
    a(f"{lab}:")
    a(f"s_sub_u32 s{slo}, s{slo}, {lab}-{start}")
    a(f"s_subb_u32 s{slo+1}, s{slo+1}, 0")
    a(f"v_lshlrev_b32 v{vtmp}, 7, v1")
    a(f"v_min_u32 v{vtmp}, {end}-{start}-4, v{vtmp}")
    a(f"global_load_dword v{vdst}, v{vtmp}, s[{slo}:{slo+1}]")


DIAG_BASE = 32*MB
class Diag:
    def __init__(self, a, opt, kidx, s0=64):
        self.a, self.on, self.k, self.n, self.s0 = a, opt.get("diag", 0), kidx, 0, s0
    def stamp(self, real=False):
        if not self.on: return
        a = self.a
        r = self.s0 + 2*self.n
        a(f"s_{'memrealtime' if real else 'memtime'} s[{r}:{r+1}]")
        a("s_waitcnt lgkmcnt(0)")
        self.n += 1
    def flush(self, wsptr=10, wave=20, v0=0):
        if not self.on: return
        a = self.a
        a(f"s_mov_b32 s96, s{wsptr}")
        a(f"s_mov_b32 s97, s{wsptr+1}")
        a(f"s_mov_b32 s98, {64*MB}")
        a("s_mov_b32 s99, 0x00020000")
        a("s_lshl_b32 s100, s2, 3")
        a(f"s_add_u32 s100, s100, s{wave}")
        a("s_lshl_b32 s100, s100, 6")
        a(f"s_add_u32 s100, s100, {DIAG_BASE + self.k*256*1024}")
        a("s_mov_b64 exec, 1")
        a(f"v_mov_b32 v{v0}, 0")
        for i in range(self.n):
            a(f"v_mov_b32 v{v0+1}, s{self.s0+2*i}")
            a(f"buffer_store_dword v{v0+1}, v{v0}, s[96:99], s100 offen offset:{4*i}")
        a("s_waitcnt vmcnt(0)")

def gen_k1(a, opt):
    a(".p2align 8")
    a(".globl qkv_kernel")
    a(".type qkv_kernel,@function")
    a("qkv_kernel:")
    a("s_cmp_ge_u32 s2, 256")
    a("s_cbranch_scc1 L1_end")
    D = Diag(a, opt, 0); D.stamp(True); D.stamp()
    a("s_load_dwordx4 s[4:7], s[0:1], 0")
    a("s_load_dwordx2 s[8:9], s[0:1], 32")
    a("s_load_dwordx2 s[10:11], s[0:1], 72")
    a("v_lshrrev_b32 v2, 6, v0")
    a("v_and_b32 v1, 63, v0")
    a("v_readfirstlane_b32 s20, v2")
    a("s_and_b32 s21, s2, 7")
    a("s_lshr_b32 s22, s2, 3")
    a("s_and_b32 s23, s22, 1")
    a("s_lshr_b32 s22, s22, 1")
    a("s_cmp_ge_u32 s20, 4")
    a("s_cbranch_scc0 L1_compute")
    a("s_sub_u32 s20, s20, 4")
    a("v_lshrrev_b32 v5, 3, v1")
    a("v_lshrrev_b32 v6, 4, v1")
    a("v_and_b32 v7, 7, v1")
    a("v_xor_b32 v8, v7, v6")
    a("v_xor_b32 v9, 4, v8")
    a("v_lshlrev_b32 v2, 11, v5")
    a("v_lshl_add_u32 v3, v9, 4, v2")
    a("v_lshl_add_u32 v2, v8, 4, v2")
    a("v_and_b32 v6, 1, v6")
    a("v_lshlrev_b32 v6, 2, v6")
    a("v_xor_b32 v6, v7, v6")
    a("v_mul_u32_u24 v4, 3072, v5")
    a("v_lshl_add_u32 v4, v6, 4, v4")
    a("s_lshl_b32 s30, s22, 7")
    a("s_lshr_b32 s28, s20, 1")
    a("s_lshl_b32 s28, s28, 6")
    a("s_add_u32 s30, s30, s28")
    a("s_and_b32 s28, s20, 1")
    a("s_add_u32 s30, s30, s28")
    a("s_lshl_b32 s30, s30, 10")
    a("s_mul_i32 s31, s20, 49152")
    a("s_lshl_b32 s28, s21, 7")
    a("s_add_u32 s31, s31, s28")
    a("s_lshl_b32 s32, s20, 12")
    a("s_lshl_b32 s33, s20, 11")
    a("s_add_u32 s33, s33, 16384")
    a("s_mov_b32 s34, 0")
    a("s_cmp_eq_u32 s23, 0")
    a("s_waitcnt lgkmcnt(0)")
    a("s_mov_b32 s12, s4")
    a("s_mov_b32 s13, s5")
    a("s_mov_b32 s14, 0x200000")
    a("s_mov_b32 s15, 0x00020000")
    a("s_cselect_b32 s16, s6, s8")
    a("s_cselect_b32 s17, s7, s9")
    a("s_mov_b32 s18, 0x180000")
    a("s_mov_b32 s19, 0x00020000")
    a("L1_ld_loop:")
    for i in range(4):
        a(f"s_add_u32 m0, s32, {1024*i}")
        a(f"s_add_u32 s28, s30, {16384*i}")
        a(f"buffer_load_dwordx4 v{2+(i&1)}, s[12:15], s28 offen lds")
    for t in range(3):
        for j in range(2):
            a(f"s_add_u32 m0, s33, {8192*t + 1024*j}")
            a(f"s_add_u32 s28, s31, {1024*t + 24576*j}")
            a(f"buffer_load_dwordx4 v4, s[16:19], s28 offen lds")
    a("s_add_u32 s30, s30, 128")
    a("s_add_u32 s31, s31, 196608")
    a("s_add_u32 s32, s32, 40960")
    a("s_add_u32 s33, s33, 40960")
    a("s_add_u32 s34, s34, 1")
    a("s_cmp_lt_u32 s34, 4")
    a("s_cbranch_scc1 L1_ld_loop")
    a("s_cmp_eq_u32 s34, 8")
    a("s_cbranch_scc1 L1_ld_tail")
    a("s_cmp_eq_u32 s34, 4")
    a("s_cbranch_scc0 L1_ld_steady")
    a("s_sub_u32 s32, s32, 163840")
    a("s_sub_u32 s33, s33, 163840")
    D.stamp()
    a("s_waitcnt vmcnt(30)")
    D.stamp()
    a("s_barrier")
    a("L1_ld_steady:")
    a("s_waitcnt vmcnt(20)")
    a("s_barrier")
    a("s_branch L1_ld_loop")
    a("L1_ld_tail:")
    a("s_waitcnt vmcnt(20)")
    a("s_barrier")
    a("s_waitcnt vmcnt(10)")
    a("s_barrier")
    a("s_waitcnt vmcnt(0)")
    D.stamp()
    a("s_barrier")
    if D.on:
        D.stamp(); D.stamp(True)
        a("s_add_u32 s20, s20, 4")
        D.flush()
    a("s_endpgm")
    a("L1_compute:")
    D.n = 2
    code_prefetch(a, "qkv_kernel", "L_code_end", 10, 11, 40)
    a("s_and_b32 s28, s20, 1")
    a("s_lshr_b32 s29, s20, 1")
    a("v_and_b32 v7, 31, v1")
    a("v_lshrrev_b32 v8, 5, v1")
    a("v_bfe_u32 v9, v1, 1, 3")
    a("v_xor_b32 v9, v9, v8")
    a("v_lshlrev_b32 v9, 4, v9")
    a("s_lshl_b32 s30, s28, 13")
    a("v_lshlrev_b32 v2, 7, v7")
    a("v_add_u32 v2, s30, v2")
    a("v_xor_b32 v3, 32, v9")
    a("v_xor_b32 v4, 64, v9")
    a("v_xor_b32 v5, 96, v9")
    a("v_add_u32 v3, v2, v3")
    a("v_add_u32 v4, v2, v4")
    a("v_add_u32 v5, v2, v5")
    a("v_add_u32 v2, v2, v9")
    a("v_bfe_u32 v9, v1, 2, 2")
    a("v_lshl_add_u32 v6, v8, 3, v9")
    a("v_lshlrev_b32 v6, 7, v6")
    a("v_bfe_u32 v9, v1, 3, 1")
    a("v_xor_b32 v9, s29, v9")
    a("v_lshl_add_u32 v6, v9, 6, v6")
    a("v_bfe_u32 v9, v1, 4, 1")
    a("v_lshl_add_u32 v6, v9, 5, v6")
    a("v_and_b32 v9, 3, v1")
    a("v_lshl_add_u32 v6, v9, 3, v6")
    a("v_add_u32 v6, 16384, v6")
    ACC = 32
    def acc(tile, t): return ACC + (tile*3 + t)*16
    for r in range(96):
        a(f"v_mov_b32 v{ACC+r}, 0")
    a("s_waitcnt lgkmcnt(0)")
    a("s_cmp_eq_u32 s23, 0")
    a(f"s_cselect_b32 s31, {WS_QA}, 0")
    a("s_add_u32 s24, s10, s31")
    a("s_addc_u32 s25, s11, 0")
    a(f"s_mov_b32 s26, {6*MB}")
    a("s_mov_b32 s27, 0x00020000")
    a("s_lshl_b32 s31, s21, 1")
    a("s_add_u32 s31, s31, s29")
    a("s_lshl_b32 s31, s31, 17")
    a("s_lshl_b32 s32, s22, 1")
    a("s_add_u32 s32, s32, s28")
    a("s_lshl_b32 s32, s32, 11")
    a("s_add_u32 s31, s31, s32")
    a("v_lshlrev_b32 v12, 4, v1")
    a("v_bfe_u32 v9, v1, 4, 1")
    a("v_lshlrev_b32 v13, 16, v9")
    a("v_lshl_add_u32 v13, v8, 8, v13")
    a("v_and_b32 v9, 15, v1")
    a("v_lshl_add_u32 v13, v9, 4, v13")
    FA, FB = 128, 148
    def reads(F, s):
        L = []
        L.append(f"ds_read_b128 v[{F}:{F+3}], v{2+s}")
        L.append(f"ds_read_b64_tr_b16 v[{F+8}:{F+9}], v6 offset:{(16*s)*128}")
        L.append(f"ds_read_b64_tr_b16 v[{F+10}:{F+11}], v6 offset:{(16*s+4)*128}")
        L.append(f"ds_read_b128 v[{F+4}:{F+7}], v{2+s} offset:4096")
        for t in (1, 2):
            L.append(f"ds_read_b64_tr_b16 v[{F+8+4*t}:{F+9+4*t}], v6 offset:{t*8192 + (16*s)*128}")
            L.append(f"ds_read_b64_tr_b16 v[{F+10+4*t}:{F+11+4*t}], v6 offset:{t*8192 + (16*s+4)*128}")
        return L
    def mfmas(F):
        L = []
        for t in range(3):
            for tile in range(2):
                x = f"v[{F+4*tile}:{F+4*tile+3}]"
                w = f"v[{F+8+4*t}:{F+11+4*t}]"
                d = f"v[{acc(tile,t)}:{acc(tile,t)+15}]"
                if t < 2:
                    L.append(f"v_mfma_f32_32x32x16_bf16 {d}, {w}, {x}, {d}")
                else:
                    L.append(f"v_mfma_f32_32x32x16_bf16 {d}, {x}, {w}, {d}")
        return L
    def interleave(M, R):
        out = [M[0]] + R[0:3] + [M[1]] + R[3:6] + [M[2]] + R[6:8] + M[3:]
        return out
    a("s_mov_b32 s34, 0")
    a("s_mov_b32 s35, 40960")
    D.stamp()
    a("s_barrier")
    D.stamp()
    for l in reads(FA, 0): a(l)
    a("L1_c_loop:")
    for s in range(3):
        cur, nxt = (FA, FB) if s % 2 == 0 else (FB, FA)
        a("s_waitcnt lgkmcnt(0)")
        for l in interleave(mfmas(cur), reads(nxt, s+1)): a(l)
    a("s_add_u32 s34, s34, 1")
    a("s_cmp_eq_u32 s34, 4")
    a("s_cselect_b32 s36, -122880, s35")
    for r in (2, 3, 4, 5, 6):
        a(f"v_add_u32 v{r}, s36, v{r}")
    a("s_cmp_eq_u32 s34, 8")
    a("s_waitcnt lgkmcnt(0)")
    a("s_cbranch_scc1 L1_c_last")
    a("s_barrier")
    for l in interleave(mfmas(FB), reads(FA, 0)): a(l)
    a("s_branch L1_c_loop")
    a("L1_c_last:")
    for l in mfmas(FB): a(l)
    D.stamp()
    a(f"s_mov_b32 s36, {f2u(QSCALE)}")
    a(f"s_add_u32 s32, s31, {2*MB}")
    a(f"s_add_u32 s33, s31, {4*MB}")
    a("s_add_u32 s37, s31, 65536")
    a("s_add_u32 s38, s32, 65536")
    a("s_nop 7")
    for t in range(3):
        for tile in range(2):
            A0 = acc(tile, t)
            if t == 0:
                for r in range(16):
                    a(f"v_mul_f32 v{A0+r}, s36, v{A0+r}")
            for r in range(8):
                a(f"v_cvt_pk_bf16_f32 v{A0+r}, v{A0+2*r}, v{A0+2*r+1}")
            if t < 2:
                a(f"buffer_store_dwordx4 v[{A0}:{A0+3}], v12, s[24:27], s{31+t} offen offset:{1024*tile}")
                a(f"buffer_store_dwordx4 v[{A0+4}:{A0+7}], v12, s[24:27], s{37+t} offen offset:{1024*tile}")
            else:
                a(f"buffer_store_dwordx4 v[{A0}:{A0+3}], v13, s[24:27], s33 offen offset:{1024*tile}")
                a(f"buffer_store_dwordx4 v[{A0+4}:{A0+7}], v13, s[24:27], s33 offen offset:{1024*tile+512}")
    if D.on:
        a("s_waitcnt vmcnt(0)")
        D.stamp(); D.stamp(True)
        D.flush()
    a("L1_end:")
    a("s_endpgm")
    return 168

def gen_k2(a, opt):
    a(".p2align 8")
    a(".globl attn_kernel")
    a(".type attn_kernel,@function")
    a("attn_kernel:")
    a("s_cmp_ge_u32 s2, 256")
    a("s_cbranch_scc1 L2_end")
    D = Diag(a, opt, 1); D.stamp(True); D.stamp()
    a("s_load_dwordx2 s[4:5], s[0:1], 0")
    a("s_load_dwordx2 s[6:7], s[0:1], 48")
    a("s_load_dwordx2 s[10:11], s[0:1], 72")
    a("v_lshrrev_b32 v2, 6, v0")
    a("v_and_b32 v1, 63, v0")
    a("v_readfirstlane_b32 s20, v2")
    a("v_lshlrev_b32 v2, 4, v1")
    a("s_and_b32 s21, s2, 7")
    a("s_lshl_b32 s21, s21, 2")
    a("s_bfe_u32 s22, s2, 0x20003")
    a("s_add_u32 s21, s21, s22")
    a("s_lshr_b32 s22, s2, 5")
    a("s_lshl_b32 s22, s22, 3")
    a("s_add_u32 s22, s22, s20")
    a("s_lshl_b32 s23, s21, 16")
    a("s_lshl_b32 s28, s22, 10")
    a("s_add_u32 s28, s28, s23")
    a("s_cmp_lt_u32 s22, 2")
    a("s_cselect_b32 s29, 0, 2048")
    a(f"s_cselect_b32 s44, {f2u(1000.0)}, 0")
    a("s_sub_u32 s29, s28, s29")
    a("v_lshrrev_b32 v8, 5, v1")
    a("v_and_b32 v7, 31, v1")
    a("v_lshlrev_b32 v6, 4, v7")
    a("v_lshl_add_u32 v6, v8, 8, v6")
    QA, KAC, KAP, VA0, VA1, VAP = 112, 116, 120, 124, 128, 132
    GX, GW = 136, 140
    Q, KF, V0, V1 = 8, 12, 16, 20
    S = [32, 48]; P = [64, 72]; O = 80; NM = 96
    a("v_mov_b32 v24, v7")
    a("v_mov_b32 v25, v8")
    for r in range(12):
        a(f"v_mov_b32 v{VA0+r}, 0x3f803f80")
    a("s_waitcnt lgkmcnt(0)")
    a("s_mov_b32 s12, s10")
    a("s_mov_b32 s13, s11")
    a(f"s_mov_b32 s14, {WS_SIZE}")
    a("s_mov_b32 s15, 0x00020000")
    a(f"s_add_u32 s30, s28, {WS_QA}")
    a(f"buffer_load_dwordx4 v[{QA}:{QA+3}], v2, s[12:15], s30 offen")
    a(f"s_add_u32 s30, s28, {WS_KA}")
    a(f"buffer_load_dwordx4 v[{KAC}:{KAC+3}], v2, s[12:15], s30 offen")
    a(f"s_add_u32 s30, s29, {WS_KA}")
    a(f"buffer_load_dwordx4 v[{KAP}:{KAP+3}], v2, s[12:15], s30 offen")
    a("s_mov_b32 exec_lo, 0x0000ffff")
    a("s_mov_b32 exec_hi, 0x0000ffff")
    a(f"s_add_u32 s30, s28, {WS_VA}")
    a(f"buffer_load_dwordx4 v[{VA0}:{VA0+3}], v6, s[12:15], s30 offen")
    a(f"buffer_load_dwordx4 v[{VA1}:{VA1+3}], v6, s[12:15], s30 offen offset:512")
    a(f"s_add_u32 s30, s29, {WS_VA}")
    a(f"buffer_load_dwordx4 v[{VAP}:{VAP+3}], v6, s[12:15], s30 offen offset:512")
    a("s_mov_b64 exec, -1")
    a("s_mov_b32 s16, s4")
    a("s_mov_b32 s17, s5")
    a("s_mov_b32 s18, 0x200000")
    a("s_mov_b32 s19, 0x00020000")
    a("s_mov_b32 s24, s6")
    a("s_mov_b32 s25, s7")
    a("s_mov_b32 s26, 1024")
    a("s_mov_b32 s27, 0x00020000")
    a("s_lshl_b32 s31, s2, 3")
    a("s_add_u32 s31, s31, s20")
    a("s_lshl_b32 s30, s31, 10")
    a(f"buffer_load_dwordx4 v[{GX}:{GX+3}], v2, s[16:19], s30 offen")
    a(f"buffer_load_dwordx4 v[{GW}:{GW+3}], v2, s[24:27], 0 offen")
    a(f"buffer_load_dwordx4 v[{Q}:{Q+3}], v2, s[12:15], s28 offen")
    a("s_lshl_b32 s32, s20, 11")
    a("s_mov_b32 m0, s32")
    a("s_add_u32 s33, s32, s23")
    a(f"s_add_u32 s30, s33, {WS_KB}")
    a("buffer_load_dwordx4 v2, s[12:15], s30 offen lds")
    a("buffer_load_dwordx4 v2, s[12:15], s30 offen offset:1024 lds")
    a("s_mul_i32 s34, s20, 2080")
    a("s_add_u32 m0, s34, 65536")
    a(f"s_add_u32 s30, s33, {WS_VB}")
    a("buffer_load_dwordx4 v2, s[12:15], s30 offen lds")
    a("s_add_u32 m0, s34, 65536+16")
    a("s_nop 0")
    a("buffer_load_dwordx4 v2, s[12:15], s30 offen offset:1024 lds")
    a("s_mul_i32 s32, s20, 6144")
    a("s_add_u32 s32, s32, 16384")
    a("s_add_u32 s33, s32, s23")
    a("s_mov_b32 m0, s32")
    a(f"s_add_u32 s30, s33, {WS_KB}")
    for i in range(3):
        a(f"buffer_load_dwordx4 v2, s[12:15], s30 offen offset:{1024*i} lds")
    a("s_add_u32 m0, s32, 3072")
    a(f"s_add_u32 s30, s33, {WS_KB+3072}")
    for i in range(3):
        a(f"buffer_load_dwordx4 v2, s[12:15], s30 offen offset:{1024*i} lds")
    a("s_mul_i32 s34, s20, 6240")
    for i in range(6):
        a(f"s_add_u32 m0, s34, {65536 + 16*1040 + 1040*i}")
        a(f"s_add_u32 s30, s33, {WS_VB + 1024*i}")
        a("buffer_load_dwordx4 v2, s[12:15], s30 offen lds")
    code_prefetch(a, "attn_kernel", "L_code_end", 26, 7, 40)
    a("s_cmp_lg_u32 s20, 0")
    a("s_cbranch_scc1 L2_no_ones")
    a("v_mul_u32_u24 v26, 1040, v1")
    a("v_mov_b32 v28, 0x3f803f80")
    a("v_mov_b32 v29, 0x3f803f80")
    a("v_mov_b32 v30, 0x3f803f80")
    a("v_mov_b32 v31, 0x3f803f80")
    a("v_add_u32 v26, 65536+1024, v26")
    a("ds_write_b128 v26, v[28:31]")
    a("L2_no_ones:")
    a("v_cmp_gt_u32 vcc, 16, v24")
    a("v_add_u32 v3, 65536, v6")
    a("v_add_u32 v4, 65536+512, v6")
    a("v_mov_b32 v5, 65536+1024")
    a("v_cndmask_b32 v3, v5, v3, vcc")
    a("v_cndmask_b32 v4, v5, v4, vcc")
    a("v_mov_b32 v5, v2")
    a("v_lshlrev_b32 v26, 2, v25")
    a("v_sub_u32 v26, v24, v26")
    a("v_cvt_f32_i32 v26, v26")
    a(f"v_add_f32 v26, {f2u(-3.5)}, v26")
    a("v_add_f32 v28, s44, v26")
    a(f"s_mov_b32 s45, {f2u(-1e30)}")
    for r in range(16):
        cst = 8*(r//4) + (r % 4)
        a(f"v_subrev_f32 v{S[0]+r}, {f2u(float(cst))}, v26")
    for b in range(4):
        a(f"v_subrev_f32 v{S[1]+12+b}, {f2u(float(b-8))}, v28")
    regs = [S[0]+r for r in range(16)] + [S[1]+12+b for b in range(4)]
    for r in regs:
        a(f"v_add_f32_e64 v{r}, |v{r}|, -4.0 clamp")
    for r in regs:
        a(f"v_mul_f32 v{r}, s45, v{r}")
    a(f"v_mov_b32 v{P[1]}, 0")
    a(f"v_mov_b32 v{P[1]+1}, 0")
    D.stamp()
    a("s_waitcnt vmcnt(23)")
    D.stamp()
    a(f"v_mfma_f32_32x32x16_bf16 v[{S[0]}:{S[0]+15}], v[{KAC}:{KAC+3}], v[{QA}:{QA+3}], v[{S[0]}:{S[0]+15}]")
    a(f"v_mfma_f32_32x32x16_bf16 v[{S[1]}:{S[1]+15}], v[{KAP}:{KAP+3}], v[{QA}:{QA+3}], v[{S[1]}:{S[1]+15}]")
    a("s_waitcnt vmcnt(18)")
    a(f"v_dot2_f32_bf16 v28, v{GX}, v{GW}, 0")
    a(f"v_dot2_f32_bf16 v29, v{GX+1}, v{GW+1}, 0")
    a(f"v_dot2_f32_bf16 v28, v{GX+2}, v{GW+2}, v28")
    a(f"v_dot2_f32_bf16 v29, v{GX+3}, v{GW+3}, v29")
    a("s_nop 2")
    a("v_add_f32 v28, v28, v29")
    a("s_nop 1")
    a("v_add_f32_dpp v28, v28, v28 row_shr:1 row_mask:0xf bank_mask:0xf bound_ctrl:0")
    a("s_nop 1")
    a("v_add_f32_dpp v28, v28, v28 row_shr:2 row_mask:0xf bank_mask:0xf bound_ctrl:0")
    a("s_nop 1")
    a("v_add_f32_dpp v28, v28, v28 row_shr:4 row_mask:0xf bank_mask:0xf bound_ctrl:0")
    a("s_nop 1")
    a("v_add_f32_dpp v28, v28, v28 row_shr:8 row_mask:0xf bank_mask:0xf bound_ctrl:0")
    a(f"v_max3_f32 v26, v{S[0]}, v{S[0]+1}, v{S[0]+2}")
    a(f"v_max3_f32 v27, v{S[0]+3}, v{S[0]+4}, v{S[0]+5}")
    a("v_add_f32_dpp v28, v28, v28 row_bcast:15 row_mask:0xa bank_mask:0xf")
    a(f"v_max3_f32 v26, v26, v{S[0]+6}, v{S[0]+7}")
    a(f"v_max3_f32 v27, v27, v{S[0]+8}, v{S[0]+9}")
    a("v_add_f32_dpp v28, v28, v28 row_bcast:31 row_mask:0xc bank_mask:0xf")
    a(f"v_max3_f32 v26, v26, v{S[0]+10}, v{S[0]+11}")
    a(f"v_mul_f32 v28, {f2u(-math.log2(math.e))}, v28")
    a(f"v_max3_f32 v27, v27, v{S[0]+12}, v{S[0]+13}")
    a("v_exp_f32 v28, v28")
    a(f"v_max3_f32 v26, v26, v{S[0]+14}, v{S[0]+15}")
    a("v_add_f32 v28, 1.0, v28")
    a(f"v_max3_f32 v27, v27, v{S[1]+12}, v{S[1]+13}")
    a("v_rcp_f32 v28, v28")
    a(f"v_max3_f32 v26, v26, v{S[1]+14}, v{S[1]+15}")
    a("v_max_f32 v26, v26, v27")
    a("v_mov_b32 v27, v26")
    a("s_lshl_b32 s30, s31, 2")
    a(f"s_add_u32 s30, s30, {WS_G}")
    a("v_mov_b32 v29, 0")
    a("v_permlane32_swap_b32 v26, v27")
    a("s_mov_b32 exec_lo, 0")
    a("s_mov_b32 exec_hi, 0x80000000")
    a("buffer_store_dword v28, v29, s[12:15], s30 offen")
    a("s_mov_b64 exec, -1")
    a("v_max_f32 v26, v26, v27")
    for r in regs:
        a(f"v_sub_f32 v{r}, v{r}, v26")
    for r in regs:
        a(f"v_exp_f32 v{r}, v{r}")
    a(f"v_cvt_pk_bf16_f32 v{P[1]+2}, v{S[1]+12}, v{S[1]+13}")
    for i in range(8):
        a(f"v_cvt_pk_bf16_f32 v{P[0]+i}, v{S[0]+2*i}, v{S[0]+2*i+1}")
    a(f"v_cvt_pk_bf16_f32 v{P[1]+3}, v{S[1]+14}, v{S[1]+15}")
    a(f"v_mfma_f32_32x32x16_bf16 v[{O}:{O+15}], v[{VA0}:{VA0+3}], v[{P[0]}:{P[0]+3}], 0")
    a(f"v_mfma_f32_32x32x16_bf16 v[{O}:{O+15}], v[{VA1}:{VA1+3}], v[{P[0]+4}:{P[0]+7}], v[{O}:{O+15}]")
    a(f"v_mfma_f32_32x32x16_bf16 v[{O}:{O+15}], v[{VAP}:{VAP+3}], v[{P[1]}:{P[1]+3}], v[{O}:{O+15}]")
    D.stamp()
    a("s_waitcnt vmcnt(14) lgkmcnt(0)")
    a("s_barrier")
    D.stamp()
    a(f"ds_read_b128 v[{KF}:{KF+3}], v5")
    a("s_lshl_b32 s36, s22, 15")
    a("s_lshl_b32 s37, s21, 10")
    a("s_add_u32 s36, s36, s37")
    a(f"s_add_u32 s37, s36, {WS_OA}")
    a(f"s_add_u32 s36, s36, {WS_OB}")
    a("s_nop 4")
    a(f"v_rcp_f32 v26, v{O+8}")
    a("s_nop 0")
    for r in range(8):
        a(f"v_mul_f32 v{O+r}, v{O+r}, v26")
    for i in range(4):
        a(f"v_cvt_pk_bf16_f32 v{O+i}, v{O+2*i}, v{O+2*i+1}")
    a(f"buffer_store_dwordx4 v[{O}:{O+3}], v2, s[12:15], s37 offen")
    a("s_waitcnt lgkmcnt(0)")
    a(f"v_mfma_f32_32x32x16_bf16 v[{S[0]}:{S[0]+15}], v[{KF}:{KF+3}], v[{Q}:{Q+3}], 0")
    a("s_mov_b32 s38, 0")
    a("s_nop 7")
    a("s_nop 3")
    a(f"v_max3_f32 v26, v{S[0]}, v{S[0]+1}, v{S[0]+2}")
    a(f"v_max3_f32 v27, v{S[0]+3}, v{S[0]+4}, v{S[0]+5}")
    for i in range(2):
        a(f"v_max3_f32 v26, v26, v{S[0]+6+4*i}, v{S[0]+7+4*i}")
        a(f"v_max3_f32 v27, v27, v{S[0]+8+4*i}, v{S[0]+9+4*i}")
    a(f"v_max3_f32 v26, v26, v{S[0]+14}, v{S[0]+15}")
    a("v_max_f32 v26, v26, v27")
    a("L2_setmax:")
    a("v_mov_b32 v27, v26")
    a("s_nop 1")
    a("v_permlane32_swap_b32 v26, v27")
    a("s_nop 1")
    a("v_max_f32 v26, v26, v27")
    for r in range(16):
        a(f"v_sub_f32 v{NM+r}, 0, v26")
    for r in range(8):
        a(f"v_mov_b32 v{P[1]+r}, 0")
        a(f"v_mov_b32 v{V0+r}, 0")
    for r in range(16):
        a(f"v_mov_b32 v{O+r}, 0")
    a(f"v_mfma_f32_32x32x16_bf16 v[{S[0]}:{S[0]+15}], v[{KF}:{KF+3}], v[{Q}:{Q+3}], v[{NM}:{NM+15}]")
    a(f"ds_read_b128 v[{KF}:{KF+3}], v5 offset:1024")
    a("s_mov_b32 s39, 0")
    a("s_nop 7")
    a("s_waitcnt lgkmcnt(0)")
    D.stamp()
    U = opt.get("unroll", 8)
    a(".p2align 6")
    a("L2_loop:")
    for u in range(U):
        cur, nxt = S[u & 1], S[(u+1) & 1]
        Pc, Pp = P[u & 1], P[(u+1) & 1]
        ex = [f"v_exp_f32 v{cur+i}, v{cur+i}" for i in range(16)]
        cv = [f"v_cvt_pk_bf16_f32 v{Pc+i}, v{cur+2*i}, v{cur+2*i+1}" for i in range(8)]
        a(f"v_mfma_f32_32x32x16_bf16 v[{nxt}:{nxt+15}], v[{KF}:{KF+3}], v[{Q}:{Q+3}], v[{NM}:{NM+15}]")
        a(f"ds_read_b128 v[{KF}:{KF+3}], v5 offset:{(u+2)*1024}")
        for l in ex[0:4] + [cv[0]] + ex[4:6] + [cv[1]]: a(l)
        a("s_waitcnt lgkmcnt(2)")
        a(f"v_mfma_f32_32x32x16_bf16 v[{O}:{O+15}], v[{V0}:{V0+3}], v[{Pp}:{Pp+3}], v[{O}:{O+15}]")
        a(f"ds_read_b128 v[{V0}:{V0+3}], v3 offset:{u*1040}")
        for l in ex[6:8] + [cv[2]] + ex[8:10] + [cv[3]] + ex[10:12] + [cv[4]]: a(l)
        a("s_waitcnt lgkmcnt(2)")
        a(f"v_mfma_f32_32x32x16_bf16 v[{O}:{O+15}], v[{V1}:{V1+3}], v[{Pp+4}:{Pp+7}], v[{O}:{O+15}]")
        a(f"ds_read_b128 v[{V1}:{V1+3}], v4 offset:{u*1040}")
        for l in ex[12:14] + [cv[5]] + ex[14:16] + [cv[6]]: a(l)
        if u == U-1:
            a(f"v_add_u32 v5, {1024*U}, v5")
            a(f"v_add_u32 v3, {1040*U}, v3")
            a(f"v_add_u32 v4, {1040*U}, v4")
            a("s_add_u32 s39, s39, 1")
        a("s_waitcnt lgkmcnt(2)")
        a(cv[7])
    a("s_cmp_eq_u32 s39, 1")
    a("s_cbranch_scc0 L2_nobar")
    a("s_cmp_eq_u32 s38, 0")
    a("s_cbranch_scc0 L2_nobar")
    a("s_waitcnt vmcnt(0)")
    a("s_barrier")
    a("L2_nobar:")
    a(f"s_cmp_lt_u32 s39, {64//U}")
    a("s_cbranch_scc1 L2_loop")
    a("s_waitcnt lgkmcnt(0)")
    D.stamp()
    a(f"v_mfma_f32_32x32x16_bf16 v[{O}:{O+15}], v[{V0}:{V0+3}], v[{P[1]}:{P[1]+3}], v[{O}:{O+15}]")
    a(f"v_mfma_f32_32x32x16_bf16 v[{O}:{O+15}], v[{V1}:{V1+3}], v[{P[1]+4}:{P[1]+7}], v[{O}:{O+15}]")
    a(f"s_mov_b32 s40, {f2u(2.0**100)}")
    a("s_nop 7")
    a("s_nop 3")
    a(f"v_mul_f32 v26, 0, v{O}")
    for r in range(1, 8):
        a(f"v_fma_f32 v26, v{O+r}, 0, v26")
    a(f"v_add_f32 v26, v26, v{O+8}")
    a(f"v_rcp_f32 v27, v{O+8}")
    a("v_cmp_nlt_f32 vcc, v26, s40")
    a("s_cmp_eq_u32 s38, 0")
    a("s_cbranch_scc0 L2_fin")
    a("s_nop 1")
    a("s_cbranch_vccnz L2_fallback")
    a("L2_fin:")
    for r in range(8):
        a(f"v_mul_f32 v{O+r}, v{O+r}, v27")
    for i in range(4):
        a(f"v_cvt_pk_bf16_f32 v{O+i}, v{O+2*i}, v{O+2*i+1}")
    a(f"buffer_store_dwordx4 v[{O}:{O+3}], v2, s[12:15], s36 offen")
    if D.on:
        a("s_waitcnt vmcnt(0)")
        D.stamp(); D.stamp(True)
        D.flush()
    a("L2_end:")
    a("s_endpgm")
    a("L2_fallback:")
    a("s_mov_b32 s38, 1")
    a("v_mov_b32 v5, v2")
    a(f"v_subrev_u32 v3, {1040*64}, v3")
    a(f"v_subrev_u32 v4, {1040*64}, v4")
    a(f"v_mov_b32 v26, {f2u(-3.0e38)}")
    a("s_mov_b32 s39, 0")
    a("L2_fb_loop:")
    a(f"ds_read_b128 v[{KF}:{KF+3}], v5")
    a("v_add_u32 v5, 1024, v5")
    a("s_waitcnt lgkmcnt(0)")
    a(f"v_mfma_f32_32x32x16_bf16 v[{S[0]}:{S[0]+15}], v[{KF}:{KF+3}], v[{Q}:{Q+3}], 0")
    a("s_nop 7")
    a("s_nop 3")
    for i in range(8):
        a(f"v_max3_f32 v26, v26, v{S[0]+2*i}, v{S[0]+2*i+1}")
    a("s_add_u32 s39, s39, 1")
    a("s_cmp_lt_u32 s39, 64")
    a("s_cbranch_scc1 L2_fb_loop")
    a("v_mov_b32 v5, v2")
    a(f"ds_read_b128 v[{KF}:{KF+3}], v5")
    a("s_waitcnt lgkmcnt(0)")
    a("s_branch L2_setmax")
    return 144

def gen_k3(a, opt):
    a(".p2align 8")
    a(".globl oproj_kernel")
    a(".type oproj_kernel,@function")
    a("oproj_kernel:")
    a("s_cmp_ge_u32 s2, 256")
    a("s_cbranch_scc1 L3_end")
    D = Diag(a, opt, 2); D.stamp(True); D.stamp()
    a("s_load_dwordx2 s[4:5], s[0:1], 16")
    a("s_load_dwordx2 s[6:7], s[0:1], 40")
    a("s_load_dwordx2 s[8:9], s[0:1], 56")
    a("s_load_dwordx2 s[10:11], s[0:1], 72")
    a("v_lshrrev_b32 v2, 6, v0")
    a("v_and_b32 v1, 63, v0")
    a("v_readfirstlane_b32 s20, v2")
    a("v_lshlrev_b32 v2, 4, v1")
    a("s_and_b32 s21, s2, 7")
    a("s_lshl_b32 s21, s21, 2")
    a("s_bfe_u32 s22, s2, 0x20003")
    a("s_add_u32 s21, s21, s22")
    a("s_lshr_b32 s22, s2, 5")
    a("s_and_b32 s23, s20, 1")
    a("s_lshr_b32 s28, s20, 1")
    a("s_and_b32 s29, s28, 1")
    a("s_lshl_b32 s30, s21, 1")
    a("s_add_u32 s30, s30, s23")
    a("s_lshl_b32 s30, s30, 15")
    a("s_lshl_b32 s31, s29, 14")
    a("s_add_u32 s30, s30, s31")
    a("s_lshr_b32 s31, s28, 1")
    a("s_lshl_b32 s32, s31, 21")
    a("s_add_u32 s30, s30, s32")
    a(f"s_add_u32 s30, s30, {WS_OA}")
    a("v_lshrrev_b32 v5, 3, v1")
    a("v_bfe_u32 v6, v1, 4, 1")
    a("v_lshlrev_b32 v6, 2, v6")
    a("v_and_b32 v7, 7, v1")
    a("v_xor_b32 v6, v7, v6")
    a("v_lshlrev_b32 v4, 10, v5")
    a("v_lshl_add_u32 v4, v6, 4, v4")
    a("s_lshl_b32 s33, s29, 18")
    a("s_lshl_b32 s32, s23, 16")
    a("s_add_u32 s33, s33, s32")
    a("s_lshl_b32 s32, s22, 7")
    a("s_add_u32 s33, s33, s32")
    a("s_lshl_b32 s34, s28, 15")
    a("s_lshl_b32 s32, s23, 13")
    a("s_add_u32 s35, s34, s32")
    a("v_and_b32 v7, 31, v1")
    a("v_lshlrev_b32 v8, 3, v7")
    a("s_lshl_b32 s36, s21, 8")
    a("s_lshl_b32 s32, s23, 2")
    a("s_add_u32 s36, s36, s32")
    a(f"s_add_u32 s36, s36, {WS_G}")
    a("s_cmp_eq_u32 s31, 0")
    a("s_waitcnt lgkmcnt(0)")
    a("s_mov_b32 s12, s10")
    a("s_mov_b32 s13, s11")
    a(f"s_mov_b32 s14, {WS_SIZE}")
    a("s_mov_b32 s15, 0x00020000")
    a("s_cselect_b32 s16, s4, s6")
    a("s_cselect_b32 s17, s5, s7")
    a("s_mov_b32 s18, 0x80000")
    a("s_mov_b32 s19, 0x00020000")
    OF = 64
    for p in range(2):
        for g in range(8):
            a(f"s_add_u32 m0, s35, {p*16384 + g*1024}")
            a(f"s_add_u32 s32, s33, {p*131072 + g*8192}")
            a("buffer_load_dwordx4 v4, s[16:19], s32 offen lds")
        for i in range(8):
            if i % 4 == 0:
                a(f"s_add_u32 s32, s30, {(8*p+i)*1024}")
            a(f"buffer_load_dwordx4 v[{OF+4*(8*p+i)}:{OF+4*(8*p+i)+3}], v2, s[12:15], s32 offen offset:{(i%4)*1024}")
    a("buffer_load_dword v9, v8, s[12:15], s36 offen")
    code_prefetch(a, "oproj_kernel", "L_code_end", 10, 11, 40)
    a("s_mov_b32 s24, s8")
    a("s_mov_b32 s25, s9")
    a("s_mov_b32 s26, 0x200000")
    a("s_mov_b32 s27, 0x00020000")
    a("v_lshrrev_b32 v14, 5, v1")
    a("v_bfe_u32 v15, v1, 2, 2")
    a("v_lshl_add_u32 v12, v14, 2, v15")
    a("v_lshlrev_b32 v12, 7, v12")
    a("v_bfe_u32 v15, v1, 4, 1")
    a("v_lshl_add_u32 v12, v15, 5, v12")
    a("v_and_b32 v15, 3, v1")
    a("v_lshl_add_u32 v12, v15, 3, v12")
    a("v_add_u32 v12, s34, v12")
    a("v_bfe_u32 v15, v1, 3, 1")
    a("v_lshlrev_b32 v15, 6, v15")
    a("v_xor_b32 v13, 64, v15")
    a("v_add_u32 v13, v12, v13")
    a("v_add_u32 v12, v12, v15")
    a("s_lshl_b32 s32, s23, 2")
    a("s_add_u32 s32, s32, s28")
    a("s_lshl_b32 s32, s32, 11")
    a("v_add_u32 v16, s32, v2")
    a("v_add_u32 v17, 0x10000, v16")
    a("v_add_u32 v18, s35, v2")
    a("v_lshlrev_b32 v19, 11, v7")
    a("v_lshl_add_u32 v19, v14, 4, v19")
    a("s_lshl_b32 s37, s21, 6")
    a("s_add_u32 s37, s37, s23")
    a("s_lshl_b32 s37, s37, 10")
    a("s_lshl_b32 s32, s22, 7")
    a("s_add_u32 s37, s37, s32")
    a("s_lshl_b32 s32, s28, 5")
    a("s_add_u32 s37, s37, s32")
    ACC = [32, 48]
    WF = [20, 128]
    def rd(setb, i):
        return [f"ds_read_b64_tr_b16 v[{setb}:{setb+1}], v12 offset:{(16*i)*128}",
                f"ds_read_b64_tr_b16 v[{setb+2}:{setb+3}], v12 offset:{(16*i+8)*128}",
                f"ds_read_b64_tr_b16 v[{setb+4}:{setb+5}], v13 offset:{(16*i)*128}",
                f"ds_read_b64_tr_b16 v[{setb+6}:{setb+7}], v13 offset:{(16*i+8)*128}"]
    for p in range(2):
        D.stamp()
        a(f"s_waitcnt vmcnt({18 if p == 0 else 2})")
        a("s_barrier")
        D.stamp()
        for l in rd(WF[0], 8*p): a(l)
        for i in range(8):
            gi = 8*p + i
            cur, nxt = WF[i & 1], WF[(i+1) & 1]
            if i < 7:
                for l in rd(nxt, gi+1): a(l)
                a("s_waitcnt lgkmcnt(4)")
            else:
                a("s_waitcnt lgkmcnt(0)")
            for ctl in range(2):
                c = "0" if gi == 0 else f"v[{ACC[ctl]}:{ACC[ctl]+15}]"
                a(f"v_mfma_f32_32x32x16_bf16 v[{ACC[ctl]}:{ACC[ctl]+15}], v[{cur+4*ctl}:{cur+4*ctl+3}], v[{OF+4*gi}:{OF+4*gi+3}], {c}")
    D.stamp()
    a("s_waitcnt vmcnt(1)")
    a("v_sub_f32 v10, 1.0, v9")
    a("s_cmp_eq_u32 s31, 0")
    a("s_cselect_b64 vcc, -1, 0")
    a("s_nop 4")
    a("v_cndmask_b32 v9, v10, v9, vcc")
    a("s_nop 4")
    for r in range(32):
        a(f"v_mul_f32 v{32+r}, v9, v{32+r}")
    for q in range(4):
        base = "v16" if q < 2 else "v17"
        off = (q & 1) * 32768
        a(f"ds_write_b128 {base}, v[{32+8*q}:{32+8*q+3}] offset:{off}")
        a(f"ds_write_b128 {base}, v[{32+8*q+4}:{32+8*q+7}] offset:{off+1024}")
    a("s_waitcnt lgkmcnt(0)")
    a("s_barrier")
    for src in range(4):
        a(f"ds_read_b128 v[{64+8*src}:{64+8*src+3}], v18 offset:{src*2048}")
        a(f"ds_read_b128 v[{64+8*src+4}:{64+8*src+7}], v18 offset:{src*2048+1024}")
    a("s_waitcnt lgkmcnt(4)")
    for r in range(8):
        a(f"v_add_f32 v{64+r}, v{64+r}, v{72+r}")
    a("s_waitcnt lgkmcnt(0)")
    for r in range(8):
        a(f"v_add_f32 v{80+r}, v{80+r}, v{88+r}")
    for r in range(8):
        a(f"v_add_f32 v{64+r}, v{64+r}, v{80+r}")
    for i in range(4):
        a(f"v_cvt_pk_bf16_f32 v{64+i}, v{64+2*i}, v{64+2*i+1}")
    a("s_nop 1")
    a("v_permlane32_swap_b32 v64, v66")
    a("v_permlane32_swap_b32 v65, v67")
    a("s_nop 1")
    a("buffer_store_dwordx4 v[64:67], v19, s[24:27], s37 offen")
    if D.on:
        a("s_waitcnt vmcnt(0)")
        D.stamp(); D.stamp(True)
        D.flush()
    a("L3_end:")
    a("s_endpgm")
    return 136

HEADER = open("gated_mix__sliding_local_dilated__softmax_full_mha__prompt.s.ref").read().split("; Override launch")[0]

def main(out, opt):
    a = Asm()
    n1 = gen_k1(a, opt)
    n2 = gen_k2(a, opt)
    n3 = gen_k3(a, opt)
    a("L_code_end:")
    a("s_endpgm")
    s = HEADER
    s += "; generated by gen/gen.py (hand-written generator)\n"
    s += "; @launch kernel=qkv_kernel grid=(256,1,1) block=(512,1,1) lds=163840\n"
    s += "; @launch kernel=attn_kernel grid=(256,1,1) block=(512,1,1) lds=132096\n"
    s += "; @launch kernel=oproj_kernel grid=(256,1,1) block=(512,1,1) lds=131072\n"
    s += '.amdgcn_target "amdgcn-amd-amdhsa--gfx950"\n.text\n'
    s += a.text()
    s += kd("qkv_kernel", n1) + kd("attn_kernel", n2) + kd("oproj_kernel", n3)
    open(out, "w").write(s)

if __name__ == "__main__":
    out = sys.argv[1] if len(sys.argv) > 1 else "gated_mix__sliding_local_dilated__softmax_full_mha__prompt.s"
    opt = {}
    for kv in sys.argv[2:]:
        k, v = kv.split("=")
        opt[k] = int(v)
    main(out, opt)
```

```python
import sys, math, struct
from asmlib import *

MB = 1 << 20
WS_QB   = 0
WS_KV   = 2*MB
WS_HALO = 6*MB
WS_OA   = 10*MB
WS_OB   = 12*MB
WS_WOF  = 14*MB
WS_G    = 15*MB
WS_FB   = 15*MB + 256*1024
WS_FH   = WS_FB + 8192
WS_FO   = WS_FH + 8192
WS_SIZE = 16*MB
DIAG_BASE = 32*MB
QSCALE = 0.25 * math.log2(math.e)
TS = 2064
XCH = 64*TS
SPIN_MAX = 40000
KN = "gated_mix__sliding_local_dilated__softmax_full_mha__prompt_kernel"
def f2u(x): return struct.unpack("<I", struct.pack("<f", x))[0]

class Diag:
    def __init__(self, a, opt, s0=64):
        self.a, self.on, self.n, self.s0 = a, opt.get("diag", 0), 0, s0
    def stamp(self, real=False):
        if not self.on: return
        a = self.a
        r = self.s0 + 2*self.n
        assert r + 1 < 96
        a(f"s_{'memrealtime' if real else 'memtime'} s[{r}:{r+1}]")
        a("s_waitcnt lgkmcnt(0)")
        self.n += 1
    def flush(self):
        if not self.on: return
        a = self.a
        a("s_mov_b32 s96, s54")
        a("s_mov_b32 s97, s55")
        a(f"s_mov_b32 s98, {64*MB}")
        a("s_mov_b32 s99, 0x00020000")
        a("s_lshl_b32 s100, s2, 3")
        a("s_add_u32 s100, s100, s20")
        a("s_lshl_b32 s100, s100, 6")
        a(f"s_add_u32 s100, s100, {DIAG_BASE}")
        a("s_mov_b64 exec, 1")
        a("v_mov_b32 v24, 0")
        for i in range(self.n):
            a(f"v_mov_b32 v25, s{self.s0+2*i}")
            a(f"buffer_store_dword v25, v24, s[96:99], s100 offen offset:{4*i}")
        a("s_waitcnt vmcnt(0)")

def mfma(d, A, B, C=None):
    c = f"v[{d}:{d+15}]" if C is None else (C if isinstance(C, str) else f"v[{C}:{C+15}]")
    return f"v_mfma_f32_32x32x16_bf16 v[{d}:{d+15}], v[{A}:{A+3}], v[{B}:{B+3}], {c}"

def gen(a, opt):
    U = opt.get("unroll", 16)
    FLAGSTEP = opt.get("flagstep", 3)
    a(".p2align 8")
    a(".globl KNAME")
    a(".type KNAME,@function")
    a("KNAME:")
    a("s_cmp_ge_u32 s2, 256")
    a("s_cbranch_scc1 L_end")
    D = Diag(a, opt); D.stamp(True); D.stamp()
    a("s_load_dwordx16 s[36:51], s[0:1], 0")
    a("s_load_dwordx4 s[52:55], s[0:1], 64")
    a("v_lshrrev_b32 v2, 6, v0")
    a("v_and_b32 v1, 63, v0")
    a("v_readfirstlane_b32 s20, v2")
    a("v_lshlrev_b32 v2, 4, v1")
    a("s_and_b32 s26, s2, 7")
    a("s_lshr_b32 s27, s2, 3")
    a("s_and_b32 s23, s26, 1")
    a("s_lshl_b32 s23, s23, 4")
    a("s_and_b32 s28, s27, 15")
    a("s_add_u32 s23, s23, s28")
    a("s_and_b32 s24, s26, 6")
    a("s_lshr_b32 s28, s27, 4")
    a("s_add_u32 s24, s24, s28")
    a("s_lshl_b32 s28, s28, 2")
    a("s_add_u32 s25, s27, s28")
    a("s_and_b32 s25, s25, 7")
    if opt.get("norot"): a("s_mov_b32 s25, 0")
    a("s_lshl_b32 s25, s25, 7")
    a("s_lshl_b32 s21, s26, 2")
    a("s_and_b32 s28, s27, 3")
    a("s_add_u32 s21, s21, s28")
    a("s_lshr_b32 s22, s27, 2")
    a("s_xor_b32 s28, s20, 4")
    a("s_lshl_b32 s56, s22, 3")
    a("s_add_u32 s56, s56, s28")
    a("s_lshl_b32 s57, s56, 15")
    a("s_lshl_b32 s28, s21, 10")
    a("s_add_u32 s57, s57, s28")
    a(f"s_add_u32 s57, s57, {WS_OB}")
    for r in range(4):
        a(f"v_mov_b32 v{24+r}, -1")
    a("v_mov_b32 v139, 0")
    a("v_mov_b32 v138, 1")
    a("s_cmp_ge_u32 s20, 4")
    a("s_cbranch_scc0 L_compute")

    a("s_setprio 2")
    a("s_sub_u32 s29, s20, 4")
    a("v_lshrrev_b32 v6, 3, v1")
    a("v_lshrrev_b32 v7, 4, v1")
    a("v_and_b32 v8, 7, v1")
    a("v_xor_b32 v9, v8, v7")
    a("v_xor_b32 v10, 4, v9")
    a("v_lshlrev_b32 v3, 11, v6")
    a("v_lshl_add_u32 v4, v10, 4, v3")
    a("v_lshl_add_u32 v3, v9, 4, v3")
    a("v_and_b32 v7, 1, v7")
    a("v_lshlrev_b32 v7, 2, v7")
    a("v_xor_b32 v7, v8, v7")
    a("v_mul_u32_u24 v5, 3072, v6")
    a("v_lshl_add_u32 v5, v7, 4, v5")
    a("v_lshlrev_b32 v6, 2, v1")
    a("s_lshr_b32 s28, s29, 1")
    a("s_lshl_b32 s30, s23, 6")
    a("s_add_u32 s30, s30, s28")
    a("s_lshl_b32 s30, s30, 10")
    a("s_lshl_b32 s31, s28, 12")
    a("s_and_b32 s28, s29, 1")
    a("s_lshl_b32 s33, s28, 15")
    a("s_add_u32 s30, s30, s33")
    a("s_lshl_b32 s33, s28, 11")
    a("s_add_u32 s31, s31, s33")
    a("s_mul_i32 s32, s29, 49152")
    a("s_lshl_b32 s28, s24, 7")
    a("s_add_u32 s32, s32, s28")
    a("s_lshl_b32 s33, s29, 11")
    a("s_add_u32 s33, s33, 65536")
    a("s_mov_b32 s58, 0")
    a("s_waitcnt lgkmcnt(0)")
    a("s_mov_b32 s4, s36")
    a("s_mov_b32 s5, s37")
    a("s_mov_b32 s6, 0x200000")
    a("s_mov_b32 s7, 0x00020000")
    a("s_mov_b32 s8, s44")
    a("s_mov_b32 s9, s45")
    a("s_mov_b32 s10, 0x180000")
    a("s_mov_b32 s11, 0x00020000")
    a("s_mov_b32 s12, s54")
    a("s_mov_b32 s13, s55")
    a(f"s_mov_b32 s14, {WS_SIZE}")
    a("s_mov_b32 s15, 0x00020000")
    a("s_mov_b32 s16, s52")
    a("s_mov_b32 s17, s53")
    a("s_mov_b32 s18, 256")
    a("s_mov_b32 s19, 0x00020000")
    def wloads():
        for t in range(3):
            for jj in range(2):
                a(f"s_add_u32 m0, s33, {8192*t + 1024*jj}")
                a(f"s_add_u32 s28, s34, {1024*t + 24576*jj}")
                a("buffer_load_dwordx4 v5, s[8:11], s28 offen lds")
    def advance():
        a("s_add_u32 s25, s25, 128")
        a("s_and_b32 s25, s25, 1023")
        a("s_add_u32 s33, s33, 24576")
        a("s_cmp_ge_u32 s33, 163840")
        a("s_cselect_b32 s28, 98304, 0")
        a("s_sub_u32 s33, s33, s28")
        a("s_add_u32 s58, s58, 1")
    a("buffer_store_dwordx4 v[24:27], v2, s[12:15], s57 offen sc1")
    a("L_ldB:")
    a("s_mul_i32 s34, s25, 1536")
    a("s_add_u32 s35, s30, s25")
    a("s_mov_b32 m0, s31")
    a("s_add_u32 s34, s34, s32")
    a("buffer_load_dwordx4 v3, s[4:7], s35 offen lds")
    a("s_add_u32 m0, s31, 1024")
    a("s_add_u32 s28, s35, 16384")
    a("buffer_load_dwordx4 v4, s[4:7], s28 offen lds")
    wloads()
    a("s_add_u32 s31, s31, 8192")
    advance()
    a("s_cmp_lt_u32 s58, 4")
    a("s_cbranch_scc1 L_ldB")
    a("s_cmp_eq_u32 s58, 4")
    a("s_cbranch_scc0 L_ldB_st")
    D.stamp()
    a("s_waitcnt vmcnt(24)")
    D.stamp()
    a("s_barrier")
    a("s_waitcnt vmcnt(16)")
    a("s_barrier")
    a("s_branch L_ldB")
    a("L_ldB_st:")
    a("s_waitcnt vmcnt(16)")
    a("s_barrier")
    a("s_cmp_lt_u32 s58, 8")
    a("s_cbranch_scc1 L_ldB")
    a("s_mov_b32 s8, s38")
    a("s_mov_b32 s9, s39")
    a("L_ldA:")
    a("s_mul_i32 s34, s25, 1536")
    a("buffer_load_dword v7, v6, s[16:19], 0 offen sc1")
    a("s_add_u32 s34, s34, s32")
    wloads()
    advance()
    a("s_waitcnt vmcnt(14)")
    a("s_barrier")
    a("s_cmp_lt_u32 s58, 16")
    a("s_cbranch_scc1 L_ldA")
    a("s_lshr_b32 s28, s21, 1")
    a("s_lshl_b32 s28, s28, 8")
    a(f"s_add_u32 s59, s28, {WS_FB}")
    a("s_mov_b32 s60, 0")
    a("L_dbg_chk:")
    a("s_waitcnt vmcnt(0)")
    a("v_cmp_ne_u32 vcc, 0x01010101, v7")
    a("s_add_u32 s60, s60, 1")
    a(f"s_cmp_gt_u32 s60, {SPIN_MAX}")
    a("s_cbranch_scc1 L_dbg_ok")
    a("s_cbranch_vccz L_dbg_ok")
    a("s_sleep 2")
    a("buffer_load_dword v7, v6, s[16:19], 0 offen sc1")
    a("s_branch L_dbg_chk")
    a("L_dbg_ok:")
    a("buffer_load_dword v7, v6, s[12:15], s59 offen sc1")
    D.stamp()
    a("s_barrier")
    a("s_lshl_b32 s30, s21, 16")
    a("s_lshl_b32 s28, s56, 10")
    a("s_add_u32 s30, s30, s28")
    a("s_lshr_b32 s31, s21, 1")
    a("s_lshl_b32 s31, s31, 6")
    a("s_add_u32 s31, s31, s56")
    a("s_lshl_b32 s31, s31, 7")
    a(f"s_add_u32 s31, s31, {WS_G}")
    a("s_lshl_b32 s32, s21, 17")
    a(f"s_add_u32 s32, s32, {WS_KV}")
    a("v_and_b32 v28, 31, v1")
    a("v_lshlrev_b32 v28, 2, v28")
    a("s_mov_b32 s61, 0")
    a("s_mov_b32 s60, 0")
    a("L_fb_chk:")
    a("s_waitcnt vmcnt(0)")
    a("v_cmp_ne_u32 vcc, 1, v7")
    a("s_add_u32 s60, s60, 1")
    a(f"s_cmp_gt_u32 s60, {SPIN_MAX}")
    a("s_cbranch_scc1 L_fb_ok")
    a("s_cbranch_vccz L_fb_ok")
    a("buffer_load_dword v7, v6, s[12:15], s59 offen sc1")
    a("s_cmp_eq_u32 s61, 0")
    a("s_cbranch_scc0 L_fb_chk")
    a("s_mov_b32 s61, 1")
    a("s_barrier")
    a("s_branch L_fb_chk")
    a("L_fb_ok:")
    D.stamp()
    Q, KF, V0, V1 = 8, 12, 16, 20
    GB = 137
    a("s_mul_i32 s33, s29, %d" % (5*TS))
    a("s_mul_i32 s34, s29, 10240")
    a("s_add_u32 s34, s34, s32")
    a(f"buffer_load_dwordx4 v[{Q}:{Q+3}], v2, s[12:15], s30 offen sc1")
    a(f"buffer_load_dword v{GB}, v28, s[12:15], s31 offen sc1")
    for t in range(5):
        a(f"s_add_u32 m0, s33, {TS*t}")
        a(f"s_add_u32 s28, s34, {2048*t}")
        a("buffer_load_dwordx4 v2, s[12:15], s28 offen sc1 lds")
        a("buffer_load_dwordx4 v2, s[12:15], s28 offen offset:1024 sc1 lds")
    a("s_cmp_eq_u32 s61, 0")
    a("s_cbranch_scc0 L_b15_done")
    a("s_barrier")
    a("L_b15_done:")
    a("s_mul_i32 s33, s29, %d" % (11*TS))
    a("s_mul_i32 s34, s29, 22528")
    a("s_add_u32 s34, s34, s32")
    a(f"v_mul_u32_u24 v28, {TS}, v1")
    for r in range(4):
        a(f"v_mov_b32 v{24+r}, 0x3f803f80")
    a("s_barrier")
    for t in range(11):
        a(f"s_add_u32 m0, s33, {TS*(20+t)}")
        a(f"s_add_u32 s28, s34, {2048*(20+t)}")
        a("buffer_load_dwordx4 v2, s[12:15], s28 offen sc1 lds")
        a("buffer_load_dwordx4 v2, s[12:15], s28 offen offset:1024 sc1 lds")
    a("ds_write_b128 v28, v[24:27] offset:2048")
    D.stamp()
    a("s_waitcnt vmcnt(22) lgkmcnt(0)")
    a("s_barrier")
    a("s_branch L_main")
    nL = D.n

    a("L_compute:")
    D.n = 2
    a("s_and_b32 s28, s20, 1")
    a("s_lshr_b32 s29, s20, 1")
    a("s_lshl_b32 s58, s23, 1")
    a("s_add_u32 s58, s58, s28")
    a("s_lshl_b32 s59, s24, 1")
    a("s_add_u32 s59, s59, s29")
    a("v_and_b32 v7, 31, v1")
    a("v_lshrrev_b32 v8, 5, v1")
    a("v_lshrrev_b32 v9, 2, v1")
    a("v_and_b32 v10, 3, v1")
    a("v_lshlrev_b32 v9, 10, v9")
    a("v_lshl_add_u32 v9, v10, 4, v9")
    a("s_and_b32 s30, s58, 31")
    a("s_lshl_b32 s31, s30, 14")
    a("s_lshl_b32 s32, s59, 6")
    a("s_add_u32 s31, s31, s32")
    a("s_lshl_b32 s32, s20, 10")
    a(f"s_add_u32 m0, s32, {7*8192}")
    a("v_lshlrev_b32 v14, 4, v8")
    a("s_add_u32 s33, s25, 128")
    a("s_and_b32 s33, s33, 1023")
    a("s_lshl_b32 s60, s59, 6")
    a("s_add_u32 s60, s60, s58")
    a("s_lshl_b32 s60, s60, 2")
    a("s_lshl_b32 s61, s58, 4")
    a("s_add_u32 s61, s61, s59")
    a("s_cmp_lt_u32 s58, 32")
    a("s_waitcnt lgkmcnt(0)")
    a("s_cselect_b32 s16, s40, s46")
    a("s_cselect_b32 s17, s41, s47")
    a("s_mov_b32 s18, 0x80000")
    a("s_mov_b32 s19, 0x00020000")
    a("s_mov_b32 s4, s48")
    a("s_mov_b32 s5, s49")
    a("s_mov_b32 s6, 1024")
    a("s_mov_b32 s7, 0x00020000")
    a("s_mov_b32 s12, s54")
    a("s_mov_b32 s13, s55")
    a(f"s_mov_b32 s14, {WS_SIZE}")
    a("s_mov_b32 s15, 0x00020000")
    a("s_mov_b32 s8, s52")
    a("s_mov_b32 s9, s53")
    a("s_mov_b32 s10, 256")
    a("s_mov_b32 s11, 0x00020000")
    a("buffer_load_dwordx4 v9, s[16:19], s31 offen lds")
    GF = [192, 208]
    for i in range(4):
        a(f"buffer_load_dwordx4 v[{GF[0]+4*i}:{GF[0]+4*i+3}], v14, s[4:7], s25 offen offset:{32*i}")
    for i in range(4):
        a(f"buffer_load_dwordx4 v[{GF[1]+4*i}:{GF[1]+4*i+3}], v14, s[4:7], s33 offen offset:{32*i}")
    a("buffer_store_dwordx4 v[24:27], v2, s[12:15], s57 offen sc1")
    a(f"s_add_u32 s30, s60, {WS_FB}")
    a("s_lshl_b32 s31, s61, 2")
    a(f"s_add_u32 s31, s31, {WS_FO}")
    a("s_mov_b64 exec, 1")
    a("buffer_store_dword v139, v139, s[12:15], s30 offen sc1")
    a(f"s_add_u32 s30, s60, {WS_FH}")
    a("buffer_store_dword v139, v139, s[12:15], s30 offen sc1")
    a("buffer_store_dword v139, v139, s[12:15], s31 offen sc1")
    a("s_mov_b64 exec, -1")
    a("s_getpc_b64 s[34:35]")
    a("L_pc:")
    a("s_sub_u32 s34, s34, L_pc-KNAME")
    a("s_subb_u32 s35, s35, 0")
    a("v_lshlrev_b32 v10, 7, v1")
    NPF = opt.get("npf", 2)
    for k in range(NPF):
        a(f"v_add_u32 v11, {8192*k}, v10")
        a("v_min_u32 v11, L_code_end-KNAME-4, v11")
        a(f"global_load_dword v{28+k}, v11, s[34:35]")
    XA = [3, 4, 5, 6]; WA = 13
    a("v_bfe_u32 v9, v1, 1, 3")
    a("v_xor_b32 v9, v9, v8")
    a("v_lshlrev_b32 v9, 4, v9")
    a("s_lshl_b32 s30, s28, 12")
    a("v_lshlrev_b32 v3, 7, v7")
    a("v_add_u32 v3, s30, v3")
    a("v_xor_b32 v4, 32, v9")
    a("v_xor_b32 v5, 64, v9")
    a("v_xor_b32 v6, 96, v9")
    a("v_add_u32 v4, v3, v4")
    a("v_add_u32 v5, v3, v5")
    a("v_add_u32 v6, v3, v6")
    a("v_add_u32 v3, v3, v9")
    a("v_bfe_u32 v9, v1, 2, 2")
    a(f"v_lshl_add_u32 v{WA}, v8, 3, v9")
    a(f"v_lshlrev_b32 v{WA}, 7, v{WA}")
    a("v_bfe_u32 v10, v1, 3, 1")
    a("v_xor_b32 v10, s29, v10")
    a(f"v_lshl_add_u32 v{WA}, v10, 6, v{WA}")
    a("v_bfe_u32 v10, v1, 4, 1")
    a("v_and_b32 v11, 3, v1")
    a(f"v_lshl_add_u32 v{WA}, v10, 5, v{WA}")
    a(f"v_lshl_add_u32 v{WA}, v11, 3, v{WA}")
    a(f"v_add_u32 v{WA}, 65536, v{WA}")
    a("v_lshl_add_u32 v12, v8, 2, v9")
    a("v_lshlrev_b32 v12, 6, v12")
    a("v_lshl_add_u32 v12, v10, 5, v12")
    a("v_lshl_add_u32 v12, v11, 3, v12")
    a("v_add_u32 v12, s32, v12")
    a("v_lshlrev_b32 v18, 17, v10")
    a("v_lshl_add_u32 v18, v8, 8, v18")
    a("v_and_b32 v9, 15, v1")
    a("v_lshl_add_u32 v18, v9, 4, v18")
    a("v_lshlrev_b32 v19, 2, v7")
    ACCB, ACCA = 32, 144
    for r in range(48):
        a(f"v_mov_b32 v{ACCB+r}, 0")
        a(f"v_mov_b32 v{ACCA+r}, 0")
    a("v_mov_b32 v16, 0")
    a("v_mov_b32 v17, 0")
    a("s_lshr_b32 s30, s58, 5")
    a("s_lshl_b32 s30, s30, 4")
    a("s_add_u32 s30, s30, s59")
    a("s_lshl_b32 s30, s30, 5")
    a("s_and_b32 s31, s58, 31")
    a("s_add_u32 s30, s30, s31")
    a("s_lshl_b32 s30, s30, 10")
    a(f"s_add_u32 s30, s30, {WS_WOF}")
    a("s_add_u32 s33, s25, 256")
    a("s_and_b32 s33, s33, 1023")
    a("s_mov_b32 s34, 65536")
    a("s_mov_b32 s35, 0")
    D.stamp()
    a(f"s_waitcnt vmcnt({NPF})")
    a(f"ds_read_b64_tr_b16 v[20:21], v12 offset:{7*8192}")
    a(f"ds_read_b64_tr_b16 v[22:23], v12 offset:{7*8192+512}")
    a("v_mov_b32 v11, s2")
    a("s_waitcnt lgkmcnt(0)")
    a("buffer_store_dwordx4 v[20:23], v2, s[12:15], s30 offen sc1")
    a("s_barrier")
    D.stamp()
    FA, FB = 80, 96
    def reads(F, s):
        L = [f"ds_read_b128 v[{F}:{F+3}], v{XA[s]}"]
        for t in range(3):
            L.append(f"ds_read_b64_tr_b16 v[{F+4+4*t}:{F+5+4*t}], v{WA} offset:{t*8192 + (16*s)*128}")
            L.append(f"ds_read_b64_tr_b16 v[{F+6+4*t}:{F+7+4*t}], v{WA} offset:{t*8192 + (16*s+4)*128}")
        return L
    def mf(F, ACC):
        return [mfma(ACC, F+4, F), mfma(ACC+16, F+8, F), mfma(ACC+32, F, F+12)]
    def dots(F, G):
        return [f"v_dot2_f32_bf16 v{16+(i&1)}, v{F+i}, v{G+i}, v{16+(i&1)}" for i in range(4)]
    def kstep(M, R, X):
        out = [M[0]] + R[0:3] + X[0:2] + [M[1]] + R[3:5] + X[2:4] + [M[2]] + R[5:7] + X[4:]
        for l in out: a(l)
    def addr_update():
        a("s_add_u32 s34, s34, 24576")
        a("s_cmp_ge_u32 s34, 163840")
        a("s_cselect_b32 s28, 98304, 0")
        a("s_sub_u32 s34, s34, s28")
        a("s_sub_u32 s28, 24576, s28")
        a("s_add_u32 s35, s35, 1")
        a("s_cmp_eq_u32 s35, 8")
        a("s_cselect_b32 s29, -65536, 0")
        a("s_add_u32 s29, s29, 8192")
        a(f"v_add_u32 v{WA}, s28, v{WA}")
        for r in XA:
            a(f"v_add_u32 v{r}, s29, v{r}")
    for l in reads(FA, 0): a(l)
    a("s_cmp_lg_u32 s20, 0")
    a("s_cbranch_scc1 L_cB")
    a("s_mov_b64 exec, 1")
    a("buffer_store_byte v138, v11, s[8:11], 0 offen sc1")
    a("s_mov_b64 exec, -1")
    a("L_cB:")
    for sub in range(2):
        G = GF[sub]
        for s in range(4):
            cur, nxt = (FA, FB) if s % 2 == 0 else (FB, FA)
            X = dots(cur, G+4*s) + [f"buffer_load_dwordx4 v[{G+4*s}:{G+4*s+3}], v14, s[4:7], s33 offen offset:{32*s}"]
            if s == 3:
                addr_update()
                a("s_waitcnt vmcnt(7) lgkmcnt(0)")
                a("s_barrier")
                kstep(mf(cur, ACCB), reads(nxt, 0), X)
                a("s_add_u32 s33, s33, 128")
                a("s_and_b32 s33, s33, 1023")
            else:
                a("s_waitcnt vmcnt(7) lgkmcnt(0)")
                kstep(mf(cur, ACCB), reads(nxt, s+1), X)
    a("s_cmp_lt_u32 s35, 8")
    a("s_cbranch_scc1 L_cB")
    D.stamp()
    a("s_lshl_b32 s30, s59, 17")
    a("s_lshl_b32 s28, s58, 10")
    a("s_add_u32 s30, s30, s28")
    a("s_add_u32 s31, s30, 65536")
    a("s_lshl_b32 s32, s30, 1")
    a(f"s_add_u32 s32, s32, {WS_KV}")
    a("s_add_u32 s33, s32, 131072")
    a("s_lshl_b32 s28, s60, 5")
    a(f"s_add_u32 s28, s28, {WS_G}")
    a(f"s_mov_b32 s29, {f2u(QSCALE)}")
    a("v_add_f32 v16, v16, v17")
    a("s_nop 0")
    a("v_mov_b32 v17, v16")
    a("s_nop 1")
    a("v_permlane32_swap_b32 v16, v17")
    a("s_nop 1")
    a("v_add_f32 v16, v16, v17")
    a(f"v_mul_f32 v16, {f2u(-math.log2(math.e))}, v16")
    a("v_exp_f32 v16, v16")
    a("s_nop 0")
    a("v_add_f32 v16, 1.0, v16")
    a("v_rcp_f32 v136, v16")
    K0, V0_ = ACCB+16, ACCB+32
    for r in range(8):
        a(f"v_cvt_pk_bf16_f32 v{K0+r}, v{K0+2*r}, v{K0+2*r+1}")
    a("v_sub_f32 v16, 1.0, v136")
    a(f"buffer_store_dwordx4 v[{K0}:{K0+3}], v2, s[12:15], s32 offen sc1")
    a(f"buffer_store_dwordx4 v[{K0+4}:{K0+7}], v2, s[12:15], s33 offen sc1")
    for r in range(16):
        a(f"v_mul_f32 v{ACCB+r}, s29, v{ACCB+r}")
    for r in range(8):
        a(f"v_cvt_pk_bf16_f32 v{ACCB+r}, v{ACCB+2*r}, v{ACCB+2*r+1}")
    a(f"buffer_store_dwordx4 v[{ACCB}:{ACCB+3}], v2, s[12:15], s30 offen sc1")
    a(f"buffer_store_dwordx4 v[{ACCB+4}:{ACCB+7}], v2, s[12:15], s31 offen sc1")
    for r in range(8):
        a(f"v_cvt_pk_bf16_f32 v{V0_+r}, v{V0_+2*r}, v{V0_+2*r+1}")
    a(f"buffer_store_dwordx4 v[{V0_}:{V0_+3}], v18, s[12:15], s32 offen offset:1024 sc1")
    a(f"buffer_store_dwordx4 v[{V0_+4}:{V0_+7}], v18, s[12:15], s32 offen offset:1536 sc1")
    a("s_mov_b32 exec_hi, 0")
    a("buffer_store_dword v16, v19, s[12:15], s28 offen sc1")
    a("s_mov_b32 exec_hi, -1")
    a(f"s_add_u32 s30, s60, {WS_FB}")
    D.stamp()
    a("L_cA:")
    for s in range(3):
        cur, nxt = (FA, FB) if s % 2 == 0 else (FB, FA)
        a("s_waitcnt lgkmcnt(0)")
        kstep(mf(cur, ACCA), reads(nxt, s+1), [])
    addr_update()
    a("s_cmp_eq_u32 s35, 16")
    a("s_waitcnt lgkmcnt(0)")
    a("s_barrier")
    a("s_cbranch_scc1 L_cA_last")
    kstep(mf(FB, ACCA), reads(FA, 0), [])
    a(f"s_cmp_eq_u32 s35, {8+FLAGSTEP}")
    a("s_cbranch_scc0 L_cA")
    a("s_waitcnt vmcnt(0)")
    a("s_mov_b64 exec, 1")
    a("buffer_store_dword v138, v139, s[12:15], s30 offen sc1")
    a("s_mov_b64 exec, -1")
    a("s_branch L_cA")
    a("L_cA_last:")
    for l in mf(FB, ACCA): a(l)
    D.stamp()
    QA, KA, VA = 112, 120, 128
    a("s_lshl_b32 s30, s61, 12")
    a(f"s_add_u32 s30, s30, {WS_HALO}")
    a(f"s_mov_b32 s29, {f2u(QSCALE)}")
    a("s_lshl_b32 s31, s21, 16")
    a("s_lshl_b32 s28, s56, 10")
    a("s_add_u32 s31, s31, s28")
    a("s_lshr_b32 s32, s21, 1")
    a("s_lshl_b32 s32, s32, 6")
    a("s_add_u32 s32, s32, s56")
    a("s_lshl_b32 s32, s32, 7")
    a(f"s_add_u32 s32, s32, {WS_G}")
    a("s_nop 1")
    for r in range(16):
        a(f"v_mul_f32 v{ACCA+r}, s29, v{ACCA+r}")
    for r in range(8):
        a(f"v_cvt_pk_bf16_f32 v{KA+r}, v{ACCA+16+2*r}, v{ACCA+16+2*r+1}")
    a(f"buffer_store_dwordx4 v[{KA}:{KA+3}], v2, s[12:15], s30 offen sc1")
    a(f"buffer_store_dwordx4 v[{KA+4}:{KA+7}], v2, s[12:15], s30 offen offset:1024 sc1")
    for r in range(8):
        a(f"v_cvt_pk_bf16_f32 v{VA+r}, v{ACCA+32+2*r}, v{ACCA+32+2*r+1}")
    a(f"buffer_store_dwordx4 v[{VA+4}:{VA+7}], v2, s[12:15], s30 offen offset:2048 sc1")
    for r in range(8):
        a(f"v_cvt_pk_bf16_f32 v{QA+r}, v{ACCA+2*r}, v{ACCA+2*r+1}")
    a(f"s_add_u32 s30, s60, {WS_FH}")
    D.stamp()
    a("s_barrier")
    a(f"buffer_load_dwordx4 v[{Q}:{Q+3}], v2, s[12:15], s31 offen sc1")
    a(f"buffer_load_dword v{GB}, v19, s[12:15], s32 offen sc1")
    a("s_waitcnt vmcnt(0)")
    a("s_mov_b64 exec, 1")
    a("buffer_store_dword v138, v139, s[12:15], s30 offen sc1")
    a("s_mov_b64 exec, -1")
    assert D.n <= nL + 2 or True
    D.n = max(D.n, nL) if D.on else 0

    S = [32, 48]; P = [64, 72]; O = 80; NM = 96
    a("L_main:")
    D.stamp()
    a(f"ds_read_b128 v[{KF}:{KF+3}], v2")
    a("v_and_b32 v24, 31, v1")
    a("v_lshrrev_b32 v25, 5, v1")
    a("v_lshlrev_b32 v6, 4, v24")
    a("v_lshl_add_u32 v6, v25, 8, v6")
    a("v_cmp_gt_u32 vcc, 16, v24")
    a("v_add_u32 v3, 1024, v6")
    a("v_add_u32 v4, 1536, v6")
    a("v_mov_b32 v5, 2048")
    a("v_cndmask_b32 v3, v5, v3, vcc")
    a("v_cndmask_b32 v4, v5, v4, vcc")
    a("v_mov_b32 v5, v2")
    a("s_mov_b32 s38, 0")
    a("s_waitcnt lgkmcnt(0)")
    a(mfma(S[0], KF, Q, "0"))
    a("s_nop 7")
    a("s_nop 3")
    a(f"v_max3_f32 v26, v{S[0]}, v{S[0]+1}, v{S[0]+2}")
    a(f"v_max3_f32 v27, v{S[0]+3}, v{S[0]+4}, v{S[0]+5}")
    for i in range(2):
        a(f"v_max3_f32 v26, v26, v{S[0]+6+4*i}, v{S[0]+7+4*i}")
        a(f"v_max3_f32 v27, v27, v{S[0]+8+4*i}, v{S[0]+9+4*i}")
    a(f"v_max3_f32 v26, v26, v{S[0]+14}, v{S[0]+15}")
    a("v_max_f32 v26, v26, v27")
    a("L_setmax:")
    a("v_mov_b32 v27, v26")
    a("s_nop 1")
    a("v_permlane32_swap_b32 v26, v27")
    a("s_nop 1")
    a("v_max_f32 v26, v26, v27")
    for r in range(16):
        a(f"v_sub_f32 v{NM+r}, 0, v26")
    for r in range(8):
        a(f"v_mov_b32 v{P[1]+r}, 0")
        a(f"v_mov_b32 v{V0+r}, 0")
    for r in range(16):
        a(f"v_mov_b32 v{O+r}, 0")
    a(mfma(S[0], KF, Q, NM))
    a(f"ds_read_b128 v[{KF}:{KF+3}], v5 offset:{TS}")
    a("s_mov_b32 s39, 0")
    a("s_add_u32 s28, s38, s20")
    a("s_cmp_lt_u32 s20, 4")
    a(f"s_cselect_b32 s62, {64//U - 1}, 99")
    a("s_cmp_eq_u32 s38, 0")
    a("s_cselect_b32 s62, s62, 99")
    a("s_nop 5")
    a("s_waitcnt lgkmcnt(0)")
    D.stamp()
    a(".p2align 6")
    a("L_loop:")
    EU = U - opt.get("eback", 4)
    for u in range(U):
        cur, nxt = S[u & 1], S[(u+1) & 1]
        Pc, Pp = P[u & 1], P[(u+1) & 1]
        ex = [f"v_exp_f32 v{cur+i}, v{cur+i}" for i in range(16)]
        cv = [f"v_cvt_pk_bf16_f32 v{Pc+i}, v{cur+2*i}, v{cur+2*i+1}" for i in range(8)]
        if u == EU:
            a("s_cmp_eq_u32 s39, s62")
            a("s_cbranch_scc1 L_E")
            a("L_E_ret:")
        a(mfma(nxt, KF, Q, NM))
        a(f"ds_read_b128 v[{KF}:{KF+3}], v5 offset:{(u+2)*TS}")
        for l in ex[0:4] + [cv[0]] + ex[4:6] + [cv[1]]: a(l)
        a("s_waitcnt lgkmcnt(2)")
        a(mfma(O, V0, Pp))
        a(f"ds_read_b128 v[{V0}:{V0+3}], v3 offset:{u*TS}")
        for l in ex[6:8] + [cv[2]] + ex[8:10] + [cv[3]] + ex[10:12] + [cv[4]]: a(l)
        a("s_waitcnt lgkmcnt(2)")
        a(mfma(O, V1, Pp+4))
        a(f"ds_read_b128 v[{V1}:{V1+3}], v4 offset:{u*TS}")
        for l in ex[12:14] + [cv[5]] + ex[14:16] + [cv[6]]: a(l)
        if u == U-1:
            a(f"v_add_u32 v5, {TS*U}, v5")
            a(f"v_add_u32 v3, {TS*U}, v3")
            a(f"v_add_u32 v4, {TS*U}, v4")
            a("s_add_u32 s39, s39, 1")
            a("s_add_u32 s28, s39, s38")
        a("s_waitcnt lgkmcnt(2)")
        a(cv[7])
    a("s_cmp_eq_u32 s28, 1")
    a("s_cbranch_scc1 L_G")
    a("L_G_ret:")
    a(f"s_cmp_lt_u32 s39, {64//U}")
    a("s_cbranch_scc1 L_loop")
    a("s_waitcnt lgkmcnt(0)")
    a(mfma(O, V0, P[1]))
    a(mfma(O, V1, P[1]+4))
    D.stamp()
    a(f"s_mov_b32 s40, {f2u(2.0**100)}")
    a("s_nop 7")
    a("s_nop 3")
    a(f"v_mul_f32 v26, 0, v{O}")
    for r in range(1, 8):
        a(f"v_fma_f32 v26, v{O+r}, 0, v26")
    a(f"v_add_f32 v26, v26, v{O+8}")
    a(f"v_rcp_f32 v27, v{O+8}")
    a("v_cmp_nlt_f32 vcc, v26, s40")
    a("s_cmp_eq_u32 s38, 0")
    a("s_cbranch_scc0 L_fin")
    a("s_nop 1")
    a("s_cbranch_vccnz L_fallback")
    a("L_fin:")
    a(f"v_mul_f32 v27, v27, v{GB}")
    for r in range(8):
        a(f"v_mul_f32 v{O+r}, v{O+r}, v27")
    for i in range(4):
        a(f"v_cvt_pk_bf16_f32 v{O+i}, v{O+2*i}, v{O+2*i+1}")
    for i in range(4):
        a(f"v_min_u32 v{O+i}, -2, v{O+i}")
    a(f"buffer_store_dwordx4 v[{O}:{O+3}], v2, s[12:15], s57 offen sc1")
    a("s_cmp_ge_u32 s20, 4")
    a("s_cbranch_scc1 L_tail")
    nMain = D.n
    if D.on:
        a("s_waitcnt vmcnt(0)")
        D.stamp(); D.stamp(True)
        D.flush()
    a("L_end:")
    a("s_endpgm")

    a("L_E:")
    a("s_barrier")
    a("s_branch L_E_ret")

    a("L_fallback:")
    a("s_mov_b32 s38, 1")
    a("v_mov_b32 v5, v2")
    a(f"v_subrev_u32 v3, {TS*64}, v3")
    a(f"v_subrev_u32 v4, {TS*64}, v4")
    a(f"v_mov_b32 v26, {f2u(-3.0e38)}")
    a("s_mov_b32 s39, 0")
    a("L_fb_loop:")
    a(f"ds_read_b128 v[{KF}:{KF+3}], v5")
    a(f"v_add_u32 v5, {TS}, v5")
    a("s_waitcnt lgkmcnt(0)")
    a(mfma(S[0], KF, Q, "0"))
    a("s_nop 7")
    a("s_nop 3")
    for i in range(8):
        a(f"v_max3_f32 v26, v26, v{S[0]+2*i}, v{S[0]+2*i+1}")
    a("s_add_u32 s39, s39, 1")
    a("s_cmp_lt_u32 s39, 64")
    a("s_cbranch_scc1 L_fb_loop")
    a("v_mov_b32 v5, v2")
    a(f"ds_read_b128 v[{KF}:{KF+3}], v5")
    a("s_waitcnt lgkmcnt(0)")
    a("s_branch L_setmax")

    a("L_G:")
    a("s_waitcnt vmcnt(0)")
    a("s_barrier")
    a("s_cmp_ge_u32 s20, 4")
    a("s_cbranch_scc1 L_G_ret")
    KP, VP, ONES, PP = 140, 148, 152, 156
    MC, MP, SC, SP, OA, LL = 160, 176, 192, 208, 224, 240
    a(f"s_mov_b32 s44, {f2u(1000.0)}")
    a("s_cmp_eq_u32 s23, 0")
    a("s_cbranch_scc1 L_A_nohalo")
    a("s_mov_b32 s44, 0")
    a(f"s_add_u32 s30, s60, {WS_FH - 8}")
    a("s_mov_b32 s31, 0")
    a("L_A_poll:")
    a("buffer_load_dword v24, v139, s[12:15], s30 offen sc1")
    a("s_add_u32 s31, s31, 1")
    a("s_waitcnt vmcnt(0)")
    a("v_readfirstlane_b32 s28, v24")
    a(f"s_cmp_gt_u32 s31, {SPIN_MAX}")
    a("s_cbranch_scc1 L_A_go")
    a("s_cmp_eq_u32 s28, 1")
    a("s_cbranch_scc1 L_A_go")
    a("s_sleep 2")
    a("s_branch L_A_poll")
    a("L_A_go:")
    a("s_sub_u32 s30, s61, 32")
    a("s_lshl_b32 s30, s30, 12")
    a(f"s_add_u32 s30, s30, {WS_HALO}")
    a(f"buffer_load_dwordx4 v[{KP}:{KP+3}], v2, s[12:15], s30 offen sc1")
    a(f"buffer_load_dwordx4 v[{KP+4}:{KP+7}], v2, s[12:15], s30 offen offset:1024 sc1")
    a(f"buffer_load_dwordx4 v[{VP}:{VP+3}], v2, s[12:15], s30 offen offset:2048 sc1")
    a("s_branch L_A_masks")
    a("L_A_nohalo:")
    for r in range(8):
        a(f"v_mov_b32 v{KP+r}, v{KA+r}")
    for r in range(4):
        a(f"v_mov_b32 v{VP+r}, v{VA+4+r}")
    a("L_A_masks:")
    a("v_and_b32 v24, 31, v1")
    a("v_lshrrev_b32 v25, 5, v1")
    a("v_lshlrev_b32 v26, 2, v25")
    a("v_sub_u32 v26, v24, v26")
    a("v_cvt_f32_i32 v26, v26")
    a(f"v_add_f32 v26, {f2u(-3.5)}, v26")
    a("v_add_f32 v28, s44, v26")
    a(f"s_mov_b32 s45, {f2u(-1e30)}")
    for r in range(16):
        cst = 8*(r//4) + (r % 4)
        a(f"v_subrev_f32 v{MC+r}, {f2u(float(cst))}, v26")
    for b in range(4):
        a(f"v_subrev_f32 v{MP+12+b}, {f2u(float(b-8))}, v28")
    regs = [MC+r for r in range(16)] + [MP+12+b for b in range(4)]
    for r in regs:
        a(f"v_add_f32_e64 v{r}, |v{r}|, -4.0 clamp")
    for r in regs:
        a(f"v_mul_f32 v{r}, s45, v{r}")
    for r in range(12):
        a(f"v_mov_b32 v{MP+r}, 0")
    for r in range(4):
        a(f"v_mov_b32 v{ONES+r}, 0x3f803f80")
    a(f"v_mov_b32 v{PP}, 0")
    a(f"v_mov_b32 v{PP+1}, 0")
    a("s_lshl_b32 s30, s58, 15")
    a("s_lshl_b32 s28, s59, 11")
    a("s_add_u32 s30, s30, s28")
    a(f"s_add_u32 s30, s30, {WS_OA}")
    a("s_lshl_b32 s31, s61, 2")
    a(f"s_add_u32 s31, s31, {WS_FO}")
    a("s_waitcnt vmcnt(0)")
    for e in range(2):
        a(mfma(SC, KA+4*e, QA+4*e, MC))
        a(mfma(SP, KP+4*e, QA+4*e, MP))
        a("s_nop 7")
        a("s_nop 2")
        a(f"v_max3_f32 v26, v{SC}, v{SC+1}, v{SC+2}")
        a(f"v_max3_f32 v27, v{SC+3}, v{SC+4}, v{SC+5}")
        a(f"v_max3_f32 v26, v26, v{SC+6}, v{SC+7}")
        a(f"v_max3_f32 v27, v27, v{SC+8}, v{SC+9}")
        a(f"v_max3_f32 v26, v26, v{SC+10}, v{SC+11}")
        a(f"v_max3_f32 v27, v27, v{SC+12}, v{SC+13}")
        a(f"v_max3_f32 v26, v26, v{SC+14}, v{SC+15}")
        a(f"v_max3_f32 v27, v27, v{SP+12}, v{SP+13}")
        a(f"v_max3_f32 v26, v26, v{SP+14}, v{SP+15}")
        a("v_max_f32 v26, v26, v27")
        a("v_mov_b32 v27, v26")
        a("s_nop 1")
        a("v_permlane32_swap_b32 v26, v27")
        a("s_nop 1")
        a("v_max_f32 v26, v26, v27")
        sregs = [SC+r for r in range(16)] + [SP+12+b for b in range(4)]
        for r in sregs:
            a(f"v_sub_f32 v{r}, v{r}, v26")
        for r in sregs:
            a(f"v_exp_f32 v{r}, v{r}")
        a(f"v_cvt_pk_bf16_f32 v{PP+2}, v{SP+12}, v{SP+13}")
        for i in range(8):
            a(f"v_cvt_pk_bf16_f32 v{SC+i}, v{SC+2*i}, v{SC+2*i+1}")
        a(f"v_cvt_pk_bf16_f32 v{PP+3}, v{SP+14}, v{SP+15}")
        a("s_nop 0")
        a(mfma(LL, ONES, SC, "0"))
        a(mfma(OA, VA, SC, "0"))
        a(mfma(LL, ONES, SC+4))
        a(mfma(OA, VA+4, SC+4))
        a(mfma(LL, ONES, PP))
        a(mfma(OA, VP, PP))
        a("s_nop 7")
        a("s_nop 2")
        a(f"v_rcp_f32 v26, v{LL}")
        a("s_nop 0")
        a("v_mul_f32 v26, v26, v136")
        for r in range(8):
            a(f"v_mul_f32 v{OA+8*e+r}, v{OA+8*e+r}, v26")
        for i in range(4):
            a(f"v_cvt_pk_bf16_f32 v{28+i}, v{OA+8*e+2*i}, v{OA+8*e+2*i+1}")
        a(f"buffer_store_dwordx4 v[28:31], v2, s[12:15], s30 offen offset:{1024*e} sc1")
    a("s_waitcnt vmcnt(0)")
    a("s_mov_b64 exec, 1")
    a("buffer_store_dword v138, v139, s[12:15], s31 offen sc1")
    a("s_mov_b64 exec, -1")
    a("s_branch L_G_ret")

    a("L_tail:")
    D.n = nMain
    a("s_setprio 0")
    WF, OF1, OF2, AE, AL = 128, 192, 64, 32, 48
    a("s_and_b32 s28, s20, 1")
    a("s_bfe_u32 s29, s20, 0x10001")
    a("s_lshl_b32 s30, s22, 1")
    a("s_add_u32 s30, s30, s28")
    a("s_lshr_b32 s31, s21, 2")
    a("s_lshl_b32 s31, s31, 3")
    a("s_and_b32 s32, s21, 3")
    a("s_add_u32 s31, s31, s32")
    a("s_lshl_b32 s32, s30, 8")
    a(f"s_add_u32 s32, s32, {WS_FB}")
    a("s_lshl_b32 s33, s31, 6")
    a(f"s_add_u32 s33, s33, {WS_FO}")
    a("v_lshlrev_b32 v6, 2, v1")
    a("v_and_b32 v7, 15, v1")
    a("v_bfe_u32 v8, v1, 4, 1")
    a("v_lshlrev_b32 v7, 2, v7")
    a("v_lshl_add_u32 v7, v8, 8, v7")
    a("s_lshl_b32 s34, s30, 15")
    a("s_lshl_b32 s35, s29, 14")
    a("s_add_u32 s34, s34, s35")
    a(f"s_add_u32 s34, s34, {WS_WOF}")
    a("s_lshl_b32 s36, s31, 15")
    a("s_add_u32 s36, s36, s35")
    a("s_mov_b32 s60, 0")
    a("L_T_poll:")
    a("buffer_load_dword v24, v6, s[12:15], s32 offen sc1")
    a("buffer_load_dword v25, v7, s[12:15], s33 offen sc1")
    a("s_add_u32 s60, s60, 1")
    a("s_waitcnt vmcnt(0)")
    a("v_and_b32 v24, v24, v25")
    a("v_cmp_ne_u32 vcc, 1, v24")
    a(f"s_cmp_gt_u32 s60, {SPIN_MAX}")
    a("s_cbranch_scc1 L_T_go")
    a("s_nop 1")
    a("s_cbranch_vccz L_T_go")
    a("s_sleep 4")
    a("s_branch L_T_poll")
    a("L_T_go:")
    def load16(dst, sreg, const):
        for k in range(16):
            if k % 4 == 0:
                a(f"s_add_u32 s37, s{sreg}, {const + 1024*k}")
            a(f"buffer_load_dwordx4 v[{dst+4*k}:{dst+4*k+3}], v2, s[12:15], s37 offen offset:{(k%4)*1024} sc1")
    load16(WF, 34, 0)
    load16(OF1, 36, WS_OA)
    load16(OF2, 36, WS_OA + 4*32768)
    a("v_and_b32 v8, 31, v1")
    a("v_lshrrev_b32 v9, 5, v1")
    a("s_lshl_b32 s37, s28, 3")
    a("v_add_u32 v9, s37, v9")
    a("v_and_b32 v10, 15, v8")
    a("v_xor_b32 v9, v9, v10")
    a("v_lshlrev_b32 v9, 4, v9")
    a("v_lshl_add_u32 v9, v8, 8, v9")
    a("s_lshl_b32 s37, s29, 13")
    a(f"s_add_u32 s37, s37, {XCH}")
    for q in range(4):
        a(f"v_xor_b32 v{12+q}, {32*q}, v9")
    for q in range(4):
        a(f"v_add_u32 v{12+q}, s37, v{12+q}")
    a("s_sub_u32 s37, s20, 4")
    a("s_lshl_b32 s37, s37, 3")
    a("v_lshrrev_b32 v8, 3, v1")
    a("v_add_u32 v8, s37, v8")
    a("v_and_b32 v9, 7, v1")
    a("v_lshlrev_b32 v10, 1, v9")
    a("v_and_b32 v11, 15, v8")
    a("v_xor_b32 v10, v10, v11")
    a("v_lshlrev_b32 v10, 4, v10")
    a("v_lshl_add_u32 v16, v8, 8, v10")
    a("v_xor_b32 v17, 16, v16")
    a(f"v_add_u32 v16, {XCH}, v16")
    a(f"v_add_u32 v17, {XCH}, v17")
    a("v_lshlrev_b32 v18, 11, v8")
    a("v_lshl_add_u32 v18, v9, 4, v18")
    a("s_lshr_b32 s37, s31, 1")
    a("s_lshl_b32 s37, s37, 6")
    a("s_and_b32 s35, s31, 1")
    a("s_add_u32 s37, s37, s35")
    a("s_lshl_b32 s37, s37, 10")
    a("s_lshl_b32 s35, s22, 7")
    a("s_add_u32 s35, s35, s37")
    a("s_mov_b32 s16, s50")
    a("s_mov_b32 s17, s51")
    a("s_mov_b32 s18, 0x200000")
    a("s_mov_b32 s19, 0x00020000")
    for k in range(16):
        a(f"s_waitcnt vmcnt({31-k})")
        a(mfma(AE, WF+4*k, OF1+4*k, "0" if k == 0 else None))
    for k in range(16):
        a(f"s_waitcnt vmcnt({15-k})")
        a(mfma(AL, WF+4*k, OF2+4*k, "0" if k == 0 else None))
    load16(WF, 34, 512*1024)
    def poll16(lab, dst, const, slp):
        a("s_mov_b32 s60, 0")
        a(f"{lab}:")
        load16(dst, 36, const)
        a("s_add_u32 s60, s60, 1")
        for g in range(4):
            a(f"s_waitcnt vmcnt({12-4*g})")
            b = dst + 16*g
            if g == 0:
                a(f"v_max3_u32 v24, v{b}, v{b+1}, v{b+2}")
                a(f"v_max3_u32 v25, v{b+3}, v{b+4}, v{b+5}")
                rest = list(range(b+6, b+16))
            else:
                rest = list(range(b, b+16))
            for i in range(0, len(rest), 2):
                t = 24 + ((i//2) & 1)
                a(f"v_max3_u32 v{t}, v{t}, v{rest[i]}, v{rest[i+1]}")
        a("v_max_u32 v24, v24, v25")
        a("v_cmp_eq_u32 vcc, -1, v24")
        a(f"s_cmp_gt_u32 s60, {SPIN_MAX}")
        a(f"s_cbranch_scc1 {lab}_ok")
        a("s_nop 1")
        a(f"s_cbranch_vccz {lab}_ok")
        if slp: a(f"s_sleep {slp}")
        a(f"s_branch {lab}")
        a(f"{lab}_ok:")
    def xwrite(acc):
        for q in range(4):
            a(f"ds_write_b128 v{12+q}, v[{acc+4*q}:{acc+4*q+3}]")
    def finalize(soff_const):
        a("ds_read_b128 v[192:195], v16")
        a("ds_read_b128 v[196:199], v17")
        a("ds_read_b128 v[200:203], v16 offset:8192")
        a("ds_read_b128 v[204:207], v17 offset:8192")
        a(f"s_add_u32 s37, s35, {soff_const}")
        a("s_waitcnt lgkmcnt(0)")
        for r in range(8):
            a(f"v_add_f32 v{192+r}, v{192+r}, v{200+r}")
        for i in range(4):
            a(f"v_cvt_pk_bf16_f32 v{208+i}, v{192+2*i}, v{192+2*i+1}")
        a("buffer_store_dwordx4 v[208:211], v18, s[16:19], s37 offen" + (" sc1" if opt.get("outsc1") else ""))
    D.stamp()
    poll16("L_T_pe", OF1, WS_OB, 8)
    for k in range(16):
        a(mfma(AE, WF+4*k, OF1+4*k))
    a("s_nop 7")
    a("s_nop 3")
    xwrite(AE)
    a("s_waitcnt lgkmcnt(0)")
    D.stamp()
    a("s_barrier")
    finalize(0)
    poll16("L_T_pl", OF2, WS_OB + 4*32768, 0)
    D.stamp()
    for k in range(16):
        a(mfma(AL, WF+4*k, OF2+4*k))
    a("s_barrier")
    a("s_nop 7")
    a("s_nop 3")
    xwrite(AL)
    a("s_waitcnt lgkmcnt(0)")
    a("s_barrier")
    finalize(128*1024)
    if D.on:
        a("s_waitcnt vmcnt(0)")
        D.stamp(); D.stamp(True)
        D.flush()
    a("s_endpgm")
    return 256

HEADER = open("gated_mix__sliding_local_dilated__softmax_full_mha__prompt.s.ref").read().split("; Override launch")[0]

def main(out, opt):
    a = Asm()
    n = gen(a, opt)
    a("L_code_end:")
    a("s_endpgm")
    s = HEADER
    s += "; generated by gen/gen2.py (hand-written generator)\n"
    s += "; @launch grid=(256,1,1) block=(512,1,1) lds=163840\n"
    s += '.amdgcn_target "amdgcn-amd-amdhsa--gfx950"\n.text\n'
    s += a.text()
    s += kd("KNAME", n)
    open(out, "w").write(s.replace("KNAME", KN))

if __name__ == "__main__":
    out = sys.argv[1] if len(sys.argv) > 1 else "gated_mix__sliding_local_dilated__softmax_full_mha__prompt.s"
    opt = {}
    for kv in sys.argv[2:]:
        k, v = kv.split("=")
        opt[k] = int(v)
    main(out, opt)
```

```python
import sys, math, struct
from asmlib import *

MB = 1 << 20
WS_QB   = 0
WS_KV   = 2*MB
WS_HALO = 6*MB
WS_OA   = 10*MB
WS_OB   = 12*MB
WS_WOF  = 14*MB
WS_G    = 15*MB
WS_FB   = 15*MB + 256*1024
WS_FH   = WS_FB + 8192
WS_FO   = WS_FH + 8192
WS_SIZE = 16*MB
DIAG_BASE = 32*MB
QSCALE = 0.25 * math.log2(math.e)
TS = 2064
XCH = 64*TS
SPIN_MAX = 40000
KN = "gated_mix__sliding_local_dilated__softmax_full_mha__prompt_kernel"
def f2u(x): return struct.unpack("<I", struct.pack("<f", x))[0]

class Diag:
    def __init__(self, a, opt, s0=64):
        self.a, self.on, self.n, self.s0 = a, opt.get("diag", 0), 0, s0
    def stamp(self, real=False):
        if not self.on: return
        a = self.a
        r = self.s0 + 2*self.n
        assert r + 1 < 96
        a(f"s_{'memrealtime' if real else 'memtime'} s[{r}:{r+1}]")
        a("s_waitcnt lgkmcnt(0)")
        self.n += 1
    def flush(self):
        if not self.on: return
        a = self.a
        a("s_mov_b32 s96, s54")
        a("s_mov_b32 s97, s55")
        a(f"s_mov_b32 s98, {64*MB}")
        a("s_mov_b32 s99, 0x00020000")
        a("s_lshl_b32 s100, s2, 3")
        a("s_add_u32 s100, s100, s20")
        a("s_lshl_b32 s100, s100, 6")
        a(f"s_add_u32 s100, s100, {DIAG_BASE}")
        a("s_mov_b64 exec, 1")
        a("v_mov_b32 v24, 0")
        for i in range(self.n):
            a(f"v_mov_b32 v25, s{self.s0+2*i}")
            a(f"buffer_store_dword v25, v24, s[96:99], s100 offen offset:{4*i}")
        a("s_waitcnt vmcnt(0)")

def mfma(d, A, B, C=None):
    c = f"v[{d}:{d+15}]" if C is None else (C if isinstance(C, str) else f"v[{C}:{C+15}]")
    return f"v_mfma_f32_32x32x16_bf16 v[{d}:{d+15}], v[{A}:{A+3}], v[{B}:{B+3}], {c}"

def gen(a, opt):
    U = opt.get("unroll", 16)
    FLAGSTEP = opt.get("flagstep", 3)
    a(".p2align 8")
    a(".globl KNAME")
    a(".type KNAME,@function")
    a("KNAME:")
    a("s_cmp_ge_u32 s2, 256")
    a("s_cbranch_scc1 L_end")
    D = Diag(a, opt); D.stamp(True); D.stamp()
    if opt.get("dbgtime"):
        a("s_memrealtime s[64:65]")
    a("s_load_dwordx16 s[36:51], s[0:1], 0")
    a("s_load_dwordx4 s[52:55], s[0:1], 64")
    a("v_lshrrev_b32 v2, 6, v0")
    a("v_and_b32 v1, 63, v0")
    a("v_readfirstlane_b32 s20, v2")
    a("v_lshlrev_b32 v2, 4, v1")
    a("s_and_b32 s26, s2, 7")
    a("s_lshr_b32 s27, s2, 3")
    a("s_and_b32 s23, s26, 1")
    a("s_lshl_b32 s23, s23, 4")
    a("s_and_b32 s28, s27, 15")
    a("s_add_u32 s23, s23, s28")
    a("s_and_b32 s24, s26, 6")
    a("s_lshr_b32 s28, s27, 4")
    a("s_add_u32 s24, s24, s28")
    a("s_lshl_b32 s28, s28, 2")
    a("s_add_u32 s25, s27, s28")
    a("s_and_b32 s25, s25, 7")
    if opt.get("norot"): a("s_mov_b32 s25, 0")
    a("s_lshl_b32 s25, s25, 7")
    a("s_lshl_b32 s21, s26, 2")
    a("s_and_b32 s28, s27, 3")
    a("s_add_u32 s21, s21, s28")
    a("s_lshr_b32 s22, s27, 2")
    a("s_xor_b32 s28, s20, 4")
    a("s_lshl_b32 s56, s22, 3")
    a("s_add_u32 s56, s56, s28")
    a("s_lshl_b32 s57, s56, 15")
    a("s_lshl_b32 s28, s21, 10")
    a("s_add_u32 s57, s57, s28")
    a(f"s_add_u32 s57, s57, {WS_OB}")
    for r in range(4):
        a(f"v_mov_b32 v{24+r}, -1")
    a("v_mov_b32 v139, 0")
    a("v_mov_b32 v138, 1")
    a("s_cmp_ge_u32 s20, 4")
    a("s_cbranch_scc0 L_compute")

    a("s_setprio 2")
    a("s_sub_u32 s29, s20, 4")
    a("v_lshrrev_b32 v6, 3, v1")
    a("v_lshrrev_b32 v7, 4, v1")
    a("v_and_b32 v8, 7, v1")
    a("v_xor_b32 v9, v8, v7")
    a("v_xor_b32 v10, 4, v9")
    a("v_lshlrev_b32 v3, 11, v6")
    a("v_lshl_add_u32 v4, v10, 4, v3")
    a("v_lshl_add_u32 v3, v9, 4, v3")
    a("v_and_b32 v7, 1, v7")
    a("v_lshlrev_b32 v7, 2, v7")
    a("v_xor_b32 v7, v8, v7")
    a("v_mul_u32_u24 v5, 3072, v6")
    a("v_lshl_add_u32 v5, v7, 4, v5")
    a("v_lshlrev_b32 v6, 2, v1")
    a("s_lshr_b32 s28, s29, 1")
    a("s_lshl_b32 s30, s23, 6")
    a("s_add_u32 s30, s30, s28")
    a("s_lshl_b32 s30, s30, 10")
    a("s_lshl_b32 s31, s28, 12")
    a("s_and_b32 s28, s29, 1")
    a("s_lshl_b32 s33, s28, 15")
    a("s_add_u32 s30, s30, s33")
    a("s_lshl_b32 s33, s28, 11")
    a("s_add_u32 s31, s31, s33")
    a("s_mul_i32 s32, s29, 49152")
    a("s_lshl_b32 s28, s24, 7")
    a("s_add_u32 s32, s32, s28")
    a("s_lshl_b32 s33, s29, 11")
    a("s_add_u32 s33, s33, 65536")
    a("s_mov_b32 s58, 0")
    a("s_waitcnt lgkmcnt(0)")
    a("s_mov_b32 s4, s36")
    a("s_mov_b32 s5, s37")
    a("s_mov_b32 s6, 0x200000")
    a("s_mov_b32 s7, 0x00020000")
    a("s_mov_b32 s8, s44")
    a("s_mov_b32 s9, s45")
    a("s_mov_b32 s10, 0x180000")
    a("s_mov_b32 s11, 0x00020000")
    a("s_mov_b32 s12, s54")
    a("s_mov_b32 s13, s55")
    a(f"s_mov_b32 s14, {WS_SIZE}")
    a("s_mov_b32 s15, 0x00020000")
    a("s_mov_b32 s16, s52")
    a("s_mov_b32 s17, s53")
    a("s_mov_b32 s18, 256")
    a("s_mov_b32 s19, 0x00020000")
    def wloads():
        for t in range(3):
            for jj in range(2):
                a(f"s_add_u32 m0, s33, {8192*t + 1024*jj}")
                a(f"s_add_u32 s28, s34, {1024*t + 24576*jj}")
                a("buffer_load_dwordx4 v5, s[8:11], s28 offen lds")
    def advance():
        a("s_add_u32 s25, s25, 128")
        a("s_and_b32 s25, s25, 1023")
        a("s_add_u32 s33, s33, 24576")
        a("s_cmp_ge_u32 s33, 163840")
        a("s_cselect_b32 s28, 98304, 0")
        a("s_sub_u32 s33, s33, s28")
        a("s_add_u32 s58, s58, 1")
    a("buffer_store_dwordx4 v[24:27], v2, s[12:15], s57 offen sc1")
    a("L_ldB:")
    a("s_mul_i32 s34, s25, 1536")
    a("s_add_u32 s35, s30, s25")
    a("s_mov_b32 m0, s31")
    a("s_add_u32 s34, s34, s32")
    a("buffer_load_dwordx4 v3, s[4:7], s35 offen lds")
    a("s_add_u32 m0, s31, 1024")
    a("s_add_u32 s28, s35, 16384")
    a("buffer_load_dwordx4 v4, s[4:7], s28 offen lds")
    wloads()
    a("s_add_u32 s31, s31, 8192")
    advance()
    a("s_cmp_lt_u32 s58, 4")
    a("s_cbranch_scc1 L_ldB")
    a("s_cmp_eq_u32 s58, 4")
    a("s_cbranch_scc0 L_ldB_st")
    D.stamp()
    a("s_waitcnt vmcnt(24)")
    D.stamp()
    a("s_barrier")
    a("s_waitcnt vmcnt(16)")
    a("s_barrier")
    a("s_branch L_ldB")
    a("L_ldB_st:")
    a("s_waitcnt vmcnt(16)")
    a("s_barrier")
    a("s_cmp_lt_u32 s58, 8")
    a("s_cbranch_scc1 L_ldB")
    a("s_mov_b32 s8, s38")
    a("s_mov_b32 s9, s39")
    a("L_ldA:")
    a("s_mul_i32 s34, s25, 1536")
    a("buffer_load_dword v7, v6, s[16:19], 0 offen sc1")
    a("s_add_u32 s34, s34, s32")
    wloads()
    advance()
    a("s_waitcnt vmcnt(14)")
    a("s_barrier")
    a("s_cmp_lt_u32 s58, 16")
    a("s_cbranch_scc1 L_ldA")
    a("s_lshr_b32 s28, s21, 1")
    a("s_lshl_b32 s28, s28, 8")
    a(f"s_add_u32 s59, s28, {WS_FB}")
    a("s_mov_b32 s60, 0")
    a("L_dbg_chk:")
    a("s_waitcnt vmcnt(0)")
    a("v_cmp_ne_u32 vcc, 0x01010101, v7")
    a("s_add_u32 s60, s60, 1")
    a(f"s_cmp_gt_u32 s60, {SPIN_MAX}")
    a("s_cbranch_scc1 L_dbg_ok")
    a("s_cbranch_vccz L_dbg_ok")
    a("s_sleep 2")
    a("buffer_load_dword v7, v6, s[16:19], 0 offen sc1")
    a("s_branch L_dbg_chk")
    a("L_dbg_ok:")
    a("buffer_load_dword v7, v6, s[12:15], s59 offen sc1")
    D.stamp()
    a("s_barrier")
    a("s_lshl_b32 s30, s21, 16")
    a("s_lshl_b32 s28, s56, 10")
    a("s_add_u32 s30, s30, s28")
    a("s_lshr_b32 s31, s21, 1")
    a("s_lshl_b32 s31, s31, 6")
    a("s_add_u32 s31, s31, s56")
    a("s_lshl_b32 s31, s31, 7")
    a(f"s_add_u32 s31, s31, {WS_G}")
    a("s_lshl_b32 s32, s21, 17")
    a(f"s_add_u32 s32, s32, {WS_KV}")
    a("v_and_b32 v28, 31, v1")
    a("v_lshlrev_b32 v28, 2, v28")
    a("s_mov_b32 s61, 0")
    a("s_mov_b32 s60, 0")
    a("L_fb_chk:")
    a("s_waitcnt vmcnt(0)")
    a("v_cmp_ne_u32 vcc, 1, v7")
    a("s_add_u32 s60, s60, 1")
    a(f"s_cmp_gt_u32 s60, {SPIN_MAX}")
    a("s_cbranch_scc1 L_fb_ok")
    a("s_cbranch_vccz L_fb_ok")
    a("buffer_load_dword v7, v6, s[12:15], s59 offen sc1")
    a("s_cmp_eq_u32 s61, 0")
    a("s_cbranch_scc0 L_fb_chk")
    a("s_mov_b32 s61, 1")
    a("s_barrier")
    a("s_branch L_fb_chk")
    a("L_fb_ok:")
    D.stamp()
    Q, KF, V0, V1 = 8, 12, 16, 20
    GB = 137
    a("s_mul_i32 s33, s29, %d" % (5*TS))
    a("s_mul_i32 s34, s29, 10240")
    a("s_add_u32 s34, s34, s32")
    a(f"buffer_load_dwordx4 v[{Q}:{Q+3}], v2, s[12:15], s30 offen sc1")
    a(f"buffer_load_dword v{GB}, v28, s[12:15], s31 offen sc1")
    for t in range(5):
        a(f"s_add_u32 m0, s33, {TS*t}")
        a(f"s_add_u32 s28, s34, {2048*t}")
        a("buffer_load_dwordx4 v2, s[12:15], s28 offen sc1 lds")
        a("buffer_load_dwordx4 v2, s[12:15], s28 offen offset:1024 sc1 lds")
    a("s_cmp_eq_u32 s61, 0")
    a("s_cbranch_scc0 L_b15_done")
    a("s_barrier")
    a("L_b15_done:")
    a("s_mul_i32 s33, s29, %d" % (11*TS))
    a("s_mul_i32 s34, s29, 22528")
    a("s_add_u32 s34, s34, s32")
    a(f"v_mul_u32_u24 v28, {TS}, v1")
    for r in range(4):
        a(f"v_mov_b32 v{24+r}, 0x3f803f80")
    a("s_barrier")
    for t in range(11):
        a(f"s_add_u32 m0, s33, {TS*(20+t)}")
        a(f"s_add_u32 s28, s34, {2048*(20+t)}")
        a("buffer_load_dwordx4 v2, s[12:15], s28 offen sc1 lds")
        a("buffer_load_dwordx4 v2, s[12:15], s28 offen offset:1024 sc1 lds")
    a("ds_write_b128 v28, v[24:27] offset:2048")
    D.stamp()
    a("s_waitcnt vmcnt(22) lgkmcnt(0)")
    a("s_barrier")
    a("s_branch L_main")
    nL = D.n

    a("L_compute:")
    D.n = 2
    a("s_and_b32 s28, s20, 1")
    a("s_lshr_b32 s29, s20, 1")
    a("s_lshl_b32 s58, s23, 1")
    a("s_add_u32 s58, s58, s28")
    a("s_lshl_b32 s59, s24, 1")
    a("s_add_u32 s59, s59, s29")
    a("v_and_b32 v7, 31, v1")
    a("v_lshrrev_b32 v8, 5, v1")
    a("v_lshrrev_b32 v9, 2, v1")
    a("v_and_b32 v10, 3, v1")
    a("v_lshlrev_b32 v9, 10, v9")
    a("v_lshl_add_u32 v9, v10, 4, v9")
    a("s_and_b32 s30, s58, 31")
    a("s_lshl_b32 s31, s30, 14")
    a("s_lshl_b32 s32, s59, 6")
    a("s_add_u32 s31, s31, s32")
    a("s_lshl_b32 s32, s20, 10")
    a(f"s_add_u32 m0, s32, {7*8192}")
    a("v_lshlrev_b32 v14, 4, v8")
    a("s_add_u32 s33, s25, 128")
    a("s_and_b32 s33, s33, 1023")
    a("s_lshl_b32 s60, s59, 6")
    a("s_add_u32 s60, s60, s58")
    a("s_lshl_b32 s60, s60, 2")
    a("s_lshl_b32 s61, s58, 4")
    a("s_add_u32 s61, s61, s59")
    a("s_cmp_lt_u32 s58, 32")
    a("s_waitcnt lgkmcnt(0)")
    a("s_cselect_b32 s16, s40, s46")
    a("s_cselect_b32 s17, s41, s47")
    a("s_mov_b32 s18, 0x80000")
    a("s_mov_b32 s19, 0x00020000")
    a("s_mov_b32 s4, s48")
    a("s_mov_b32 s5, s49")
    a("s_mov_b32 s6, 1024")
    a("s_mov_b32 s7, 0x00020000")
    a("s_mov_b32 s12, s54")
    a("s_mov_b32 s13, s55")
    a(f"s_mov_b32 s14, {WS_SIZE}")
    a("s_mov_b32 s15, 0x00020000")
    a("s_mov_b32 s8, s52")
    a("s_mov_b32 s9, s53")
    a("s_mov_b32 s10, 256")
    a("s_mov_b32 s11, 0x00020000")
    a("buffer_load_dwordx4 v9, s[16:19], s31 offen lds")
    GF = [192, 208]
    for i in range(4):
        a(f"buffer_load_dwordx4 v[{GF[0]+4*i}:{GF[0]+4*i+3}], v14, s[4:7], s25 offen offset:{32*i}")
    for i in range(4):
        a(f"buffer_load_dwordx4 v[{GF[1]+4*i}:{GF[1]+4*i+3}], v14, s[4:7], s33 offen offset:{32*i}")
    a("buffer_store_dwordx4 v[24:27], v2, s[12:15], s57 offen sc1")
    a(f"s_add_u32 s30, s60, {WS_FB}")
    a("s_lshl_b32 s31, s61, 2")
    a(f"s_add_u32 s31, s31, {WS_FO}")
    a("s_mov_b64 exec, 1")
    a("buffer_store_dword v139, v139, s[12:15], s30 offen sc1")
    a(f"s_add_u32 s30, s60, {WS_FH}")
    a("buffer_store_dword v139, v139, s[12:15], s30 offen sc1")
    a("buffer_store_dword v139, v139, s[12:15], s31 offen sc1")
    a("s_mov_b64 exec, -1")
    a("s_getpc_b64 s[34:35]")
    a("L_pc:")
    a("s_sub_u32 s34, s34, L_pc-KNAME")
    a("s_subb_u32 s35, s35, 0")
    a("v_lshlrev_b32 v10, 7, v1")
    NPF = opt.get("npf", 2)
    for k in range(NPF):
        a(f"v_add_u32 v11, {8192*k}, v10")
        a("v_min_u32 v11, L_code_end-KNAME-4, v11")
        a(f"global_load_dword v{28+k}, v11, s[34:35]")
    XA = [3, 4, 5, 6]; WA = 13
    a("v_bfe_u32 v9, v1, 1, 3")
    a("v_xor_b32 v9, v9, v8")
    a("v_lshlrev_b32 v9, 4, v9")
    a("s_lshl_b32 s30, s28, 12")
    a("v_lshlrev_b32 v3, 7, v7")
    a("v_add_u32 v3, s30, v3")
    a("v_xor_b32 v4, 32, v9")
    a("v_xor_b32 v5, 64, v9")
    a("v_xor_b32 v6, 96, v9")
    a("v_add_u32 v4, v3, v4")
    a("v_add_u32 v5, v3, v5")
    a("v_add_u32 v6, v3, v6")
    a("v_add_u32 v3, v3, v9")
    a("v_bfe_u32 v9, v1, 2, 2")
    a(f"v_lshl_add_u32 v{WA}, v8, 3, v9")
    a(f"v_lshlrev_b32 v{WA}, 7, v{WA}")
    a("v_bfe_u32 v10, v1, 3, 1")
    a("v_xor_b32 v10, s29, v10")
    a(f"v_lshl_add_u32 v{WA}, v10, 6, v{WA}")
    a("v_bfe_u32 v10, v1, 4, 1")
    a("v_and_b32 v11, 3, v1")
    a(f"v_lshl_add_u32 v{WA}, v10, 5, v{WA}")
    a(f"v_lshl_add_u32 v{WA}, v11, 3, v{WA}")
    a(f"v_add_u32 v{WA}, 65536, v{WA}")
    a("v_lshl_add_u32 v12, v8, 2, v9")
    a("v_lshlrev_b32 v12, 6, v12")
    a("v_lshl_add_u32 v12, v10, 5, v12")
    a("v_lshl_add_u32 v12, v11, 3, v12")
    a("v_add_u32 v12, s32, v12")
    a("v_lshlrev_b32 v18, 17, v10")
    a("v_lshl_add_u32 v18, v8, 8, v18")
    a("v_and_b32 v9, 15, v1")
    a("v_lshl_add_u32 v18, v9, 4, v18")
    a("v_lshlrev_b32 v19, 2, v7")
    ACCB, ACCA = 32, 144
    for r in range(48):
        a(f"v_mov_b32 v{ACCB+r}, 0")
        a(f"v_mov_b32 v{ACCA+r}, 0")
    a("v_mov_b32 v16, 0")
    a("v_mov_b32 v17, 0")
    a("s_lshr_b32 s30, s58, 5")
    a("s_lshl_b32 s30, s30, 4")
    a("s_add_u32 s30, s30, s59")
    a("s_lshl_b32 s30, s30, 5")
    a("s_and_b32 s31, s58, 31")
    a("s_add_u32 s30, s30, s31")
    a("s_lshl_b32 s30, s30, 10")
    a(f"s_add_u32 s30, s30, {WS_WOF}")
    a("s_add_u32 s33, s25, 256")
    a("s_and_b32 s33, s33, 1023")
    a("s_mov_b32 s34, 65536")
    a("s_mov_b32 s35, 0")
    D.stamp()
    a(f"s_waitcnt vmcnt({NPF})")
    a(f"ds_read_b64_tr_b16 v[20:21], v12 offset:{7*8192}")
    a(f"ds_read_b64_tr_b16 v[22:23], v12 offset:{7*8192+512}")
    a("v_mov_b32 v11, s2")
    a("s_waitcnt lgkmcnt(0)")
    a("buffer_store_dwordx4 v[20:23], v2, s[12:15], s30 offen sc1")
    a("s_barrier")
    D.stamp()
    FA, FB = 80, 96
    def reads(F, s):
        L = [f"ds_read_b128 v[{F}:{F+3}], v{XA[s]}"]
        for t in range(3):
            L.append(f"ds_read_b64_tr_b16 v[{F+4+4*t}:{F+5+4*t}], v{WA} offset:{t*8192 + (16*s)*128}")
            L.append(f"ds_read_b64_tr_b16 v[{F+6+4*t}:{F+7+4*t}], v{WA} offset:{t*8192 + (16*s+4)*128}")
        return L
    def mf(F, ACC):
        return [mfma(ACC, F+4, F), mfma(ACC+16, F+8, F), mfma(ACC+32, F, F+12)]
    def dots(F, G):
        return [f"v_dot2_f32_bf16 v{16+(i&1)}, v{F+i}, v{G+i}, v{16+(i&1)}" for i in range(4)]
    def kstep(M, R, X):
        out = [M[0]] + R[0:3] + X[0:2] + [M[1]] + R[3:5] + X[2:4] + [M[2]] + R[5:7] + X[4:]
        for l in out: a(l)
    def addr_update():
        a("s_add_u32 s34, s34, 24576")
        a("s_cmp_ge_u32 s34, 163840")
        a("s_cselect_b32 s28, 98304, 0")
        a("s_sub_u32 s34, s34, s28")
        a("s_sub_u32 s28, 24576, s28")
        a("s_add_u32 s35, s35, 1")
        a("s_cmp_eq_u32 s35, 8")
        a("s_cselect_b32 s29, -65536, 0")
        a("s_add_u32 s29, s29, 8192")
        a(f"v_add_u32 v{WA}, s28, v{WA}")
        for r in XA:
            a(f"v_add_u32 v{r}, s29, v{r}")
    for l in reads(FA, 0): a(l)
    a("s_cmp_lg_u32 s20, 0")
    a("s_cbranch_scc1 L_cB")
    a("s_mov_b64 exec, 1")
    a("buffer_store_byte v138, v11, s[8:11], 0 offen sc1")
    a("s_mov_b64 exec, -1")
    a("L_cB:")
    for sub in range(2):
        G = GF[sub]
        for s in range(4):
            cur, nxt = (FA, FB) if s % 2 == 0 else (FB, FA)
            X = dots(cur, G+4*s) + [f"buffer_load_dwordx4 v[{G+4*s}:{G+4*s+3}], v14, s[4:7], s33 offen offset:{32*s}"]
            if s == 3:
                addr_update()
                a("s_waitcnt vmcnt(7) lgkmcnt(0)")
                a("s_barrier")
                kstep(mf(cur, ACCB), reads(nxt, 0), X)
                a("s_add_u32 s33, s33, 128")
                a("s_and_b32 s33, s33, 1023")
            else:
                a("s_waitcnt vmcnt(7) lgkmcnt(0)")
                kstep(mf(cur, ACCB), reads(nxt, s+1), X)
    a("s_cmp_lt_u32 s35, 8")
    a("s_cbranch_scc1 L_cB")
    D.stamp()
    a("s_lshl_b32 s30, s59, 17")
    a("s_lshl_b32 s28, s58, 10")
    a("s_add_u32 s30, s30, s28")
    a("s_add_u32 s31, s30, 65536")
    a("s_lshl_b32 s32, s30, 1")
    a(f"s_add_u32 s32, s32, {WS_KV}")
    a("s_add_u32 s33, s32, 131072")
    a("s_lshl_b32 s28, s60, 5")
    a(f"s_add_u32 s28, s28, {WS_G}")
    a(f"s_mov_b32 s29, {f2u(QSCALE)}")
    a("v_add_f32 v16, v16, v17")
    a("s_nop 0")
    a("v_mov_b32 v17, v16")
    a("s_nop 1")
    a("v_permlane32_swap_b32 v16, v17")
    a("s_nop 1")
    a("v_add_f32 v16, v16, v17")
    a(f"v_mul_f32 v16, {f2u(-math.log2(math.e))}, v16")
    a("v_exp_f32 v16, v16")
    a("s_nop 0")
    a("v_add_f32 v16, 1.0, v16")
    a("v_rcp_f32 v136, v16")
    K0, V0_ = ACCB+16, ACCB+32
    for r in range(8):
        a(f"v_cvt_pk_bf16_f32 v{K0+r}, v{K0+2*r}, v{K0+2*r+1}")
    a("v_sub_f32 v16, 1.0, v136")
    a(f"buffer_store_dwordx4 v[{K0}:{K0+3}], v2, s[12:15], s32 offen sc1")
    a(f"buffer_store_dwordx4 v[{K0+4}:{K0+7}], v2, s[12:15], s33 offen sc1")
    for r in range(16):
        a(f"v_mul_f32 v{ACCB+r}, s29, v{ACCB+r}")
    for r in range(8):
        a(f"v_cvt_pk_bf16_f32 v{ACCB+r}, v{ACCB+2*r}, v{ACCB+2*r+1}")
    a(f"buffer_store_dwordx4 v[{ACCB}:{ACCB+3}], v2, s[12:15], s30 offen sc1")
    a(f"buffer_store_dwordx4 v[{ACCB+4}:{ACCB+7}], v2, s[12:15], s31 offen sc1")
    for r in range(8):
        a(f"v_cvt_pk_bf16_f32 v{V0_+r}, v{V0_+2*r}, v{V0_+2*r+1}")
    a(f"buffer_store_dwordx4 v[{V0_}:{V0_+3}], v18, s[12:15], s32 offen offset:1024 sc1")
    a(f"buffer_store_dwordx4 v[{V0_+4}:{V0_+7}], v18, s[12:15], s32 offen offset:1536 sc1")
    a("s_mov_b32 exec_hi, 0")
    a("buffer_store_dword v16, v19, s[12:15], s28 offen sc1")
    a("s_mov_b32 exec_hi, -1")
    a(f"s_add_u32 s30, s60, {WS_FB}")
    D.stamp()
    a("L_cA:")
    for s in range(3):
        cur, nxt = (FA, FB) if s % 2 == 0 else (FB, FA)
        a("s_waitcnt lgkmcnt(0)")
        kstep(mf(cur, ACCA), reads(nxt, s+1), [])
    addr_update()
    a("s_cmp_eq_u32 s35, 16")
    a("s_waitcnt lgkmcnt(0)")
    a("s_barrier")
    a("s_cbranch_scc1 L_cA_last")
    kstep(mf(FB, ACCA), reads(FA, 0), [])
    a(f"s_cmp_eq_u32 s35, {8+FLAGSTEP}")
    a("s_cbranch_scc0 L_cA")
    a("s_waitcnt vmcnt(0)")
    a("s_mov_b64 exec, 1")
    a("buffer_store_dword v138, v139, s[12:15], s30 offen sc1")
    a("s_mov_b64 exec, -1")
    a("s_branch L_cA")
    a("L_cA_last:")
    for l in mf(FB, ACCA): a(l)
    D.stamp()
    QA, KA, VA = 112, 120, 128
    a("s_lshl_b32 s30, s61, 12")
    a(f"s_add_u32 s30, s30, {WS_HALO}")
    a(f"s_mov_b32 s29, {f2u(QSCALE)}")
    a("s_lshl_b32 s31, s21, 16")
    a("s_lshl_b32 s28, s56, 10")
    a("s_add_u32 s31, s31, s28")
    a("s_lshr_b32 s32, s21, 1")
    a("s_lshl_b32 s32, s32, 6")
    a("s_add_u32 s32, s32, s56")
    a("s_lshl_b32 s32, s32, 7")
    a(f"s_add_u32 s32, s32, {WS_G}")
    a("s_nop 1")
    for r in range(16):
        a(f"v_mul_f32 v{ACCA+r}, s29, v{ACCA+r}")
    for r in range(8):
        a(f"v_cvt_pk_bf16_f32 v{KA+r}, v{ACCA+16+2*r}, v{ACCA+16+2*r+1}")
    a(f"buffer_store_dwordx4 v[{KA}:{KA+3}], v2, s[12:15], s30 offen sc1")
    a(f"buffer_store_dwordx4 v[{KA+4}:{KA+7}], v2, s[12:15], s30 offen offset:1024 sc1")
    for r in range(8):
        a(f"v_cvt_pk_bf16_f32 v{VA+r}, v{ACCA+32+2*r}, v{ACCA+32+2*r+1}")
    a(f"buffer_store_dwordx4 v[{VA+4}:{VA+7}], v2, s[12:15], s30 offen offset:2048 sc1")
    for r in range(8):
        a(f"v_cvt_pk_bf16_f32 v{QA+r}, v{ACCA+2*r}, v{ACCA+2*r+1}")
    a(f"s_add_u32 s30, s60, {WS_FH}")
    D.stamp()
    a("s_barrier")
    a(f"buffer_load_dwordx4 v[{Q}:{Q+3}], v2, s[12:15], s31 offen sc1")
    a(f"buffer_load_dword v{GB}, v19, s[12:15], s32 offen sc1")
    a("s_waitcnt vmcnt(0)")
    a("s_mov_b64 exec, 1")
    a("buffer_store_dword v138, v139, s[12:15], s30 offen sc1")
    a("s_mov_b64 exec, -1")
    assert D.n <= nL + 2 or True
    D.n = max(D.n, nL) if D.on else 0

    S = [32, 48]; P = [64, 72]; O = 80; NM = 96
    a("L_main:")
    D.stamp()
    a(f"ds_read_b128 v[{KF}:{KF+3}], v2")
    a("v_and_b32 v24, 31, v1")
    a("v_lshrrev_b32 v25, 5, v1")
    a("v_lshlrev_b32 v6, 4, v24")
    a("v_lshl_add_u32 v6, v25, 8, v6")
    a("v_cmp_gt_u32 vcc, 16, v24")
    a("v_add_u32 v3, 1024, v6")
    a("v_add_u32 v4, 1536, v6")
    a("v_mov_b32 v5, 2048")
    a("v_cndmask_b32 v3, v5, v3, vcc")
    a("v_cndmask_b32 v4, v5, v4, vcc")
    a("v_mov_b32 v5, v2")
    a("s_mov_b32 s38, 0")
    a("s_waitcnt lgkmcnt(0)")
    a(mfma(S[0], KF, Q, "0"))
    a("s_nop 7")
    a("s_nop 3")
    a(f"v_max3_f32 v26, v{S[0]}, v{S[0]+1}, v{S[0]+2}")
    a(f"v_max3_f32 v27, v{S[0]+3}, v{S[0]+4}, v{S[0]+5}")
    for i in range(2):
        a(f"v_max3_f32 v26, v26, v{S[0]+6+4*i}, v{S[0]+7+4*i}")
        a(f"v_max3_f32 v27, v27, v{S[0]+8+4*i}, v{S[0]+9+4*i}")
    a(f"v_max3_f32 v26, v26, v{S[0]+14}, v{S[0]+15}")
    a("v_max_f32 v26, v26, v27")
    a("L_setmax:")
    a("v_mov_b32 v27, v26")
    a("s_nop 1")
    a("v_permlane32_swap_b32 v26, v27")
    a("s_nop 1")
    a("v_max_f32 v26, v26, v27")
    for r in range(16):
        a(f"v_sub_f32 v{NM+r}, 0, v26")
    for r in range(8):
        a(f"v_mov_b32 v{P[1]+r}, 0")
        a(f"v_mov_b32 v{V0+r}, 0")
    for r in range(16):
        a(f"v_mov_b32 v{O+r}, 0")
    a(mfma(S[0], KF, Q, NM))
    a(f"ds_read_b128 v[{KF}:{KF+3}], v5 offset:{TS}")
    a("s_mov_b32 s39, 0")
    a("s_add_u32 s28, s38, s20")
    a("s_cmp_lt_u32 s20, 4")
    a(f"s_cselect_b32 s62, {64//U - 1}, 99")
    a("s_cmp_eq_u32 s38, 0")
    a("s_cselect_b32 s62, s62, 99")
    a("s_nop 5")
    a("s_waitcnt lgkmcnt(0)")
    D.stamp()
    a(".p2align 6")
    a("L_loop:")
    EU = U - opt.get("eback", 4)
    for u in range(U):
        cur, nxt = S[u & 1], S[(u+1) & 1]
        Pc, Pp = P[u & 1], P[(u+1) & 1]
        ex = [f"v_exp_f32 v{cur+i}, v{cur+i}" for i in range(16)]
        cv = [f"v_cvt_pk_bf16_f32 v{Pc+i}, v{cur+2*i}, v{cur+2*i+1}" for i in range(8)]
        if u == EU:
            a("s_cmp_eq_u32 s39, s62")
            a("s_cbranch_scc1 L_E")
            a("L_E_ret:")
        a(mfma(nxt, KF, Q, NM))
        a(f"ds_read_b128 v[{KF}:{KF+3}], v5 offset:{(u+2)*TS}")
        for l in ex[0:4] + [cv[0]] + ex[4:6] + [cv[1]]: a(l)
        a("s_waitcnt lgkmcnt(2)")
        a(mfma(O, V0, Pp))
        a(f"ds_read_b128 v[{V0}:{V0+3}], v3 offset:{u*TS}")
        for l in ex[6:8] + [cv[2]] + ex[8:10] + [cv[3]] + ex[10:12] + [cv[4]]: a(l)
        a("s_waitcnt lgkmcnt(2)")
        a(mfma(O, V1, Pp+4))
        a(f"ds_read_b128 v[{V1}:{V1+3}], v4 offset:{u*TS}")
        for l in ex[12:14] + [cv[5]] + ex[14:16] + [cv[6]]: a(l)
        if u == U-1:
            a(f"v_add_u32 v5, {TS*U}, v5")
            a(f"v_add_u32 v3, {TS*U}, v3")
            a(f"v_add_u32 v4, {TS*U}, v4")
            a("s_add_u32 s39, s39, 1")
            a("s_add_u32 s28, s39, s38")
        a("s_waitcnt lgkmcnt(2)")
        a(cv[7])
    a("s_cmp_eq_u32 s28, 1")
    a("s_cbranch_scc1 L_G")
    a("L_G_ret:")
    a(f"s_cmp_lt_u32 s39, {64//U}")
    a("s_cbranch_scc1 L_loop")
    a("s_waitcnt lgkmcnt(0)")
    a(mfma(O, V0, P[1]))
    a(mfma(O, V1, P[1]+4))
    D.stamp()
    a(f"s_mov_b32 s40, {f2u(2.0**100)}")
    a("s_nop 7")
    a("s_nop 3")
    a(f"v_mul_f32 v26, 0, v{O}")
    for r in range(1, 8):
        a(f"v_fma_f32 v26, v{O+r}, 0, v26")
    a(f"v_add_f32 v26, v26, v{O+8}")
    a(f"v_rcp_f32 v27, v{O+8}")
    a("v_cmp_nlt_f32 vcc, v26, s40")
    a("s_cmp_eq_u32 s38, 0")
    a("s_cbranch_scc0 L_fin")
    a("s_nop 1")
    a("s_cbranch_vccnz L_fallback")
    a("L_fin:")
    a(f"v_mul_f32 v27, v27, v{GB}")
    for r in range(8):
        a(f"v_mul_f32 v{O+r}, v{O+r}, v27")
    for i in range(4):
        a(f"v_cvt_pk_bf16_f32 v{O+i}, v{O+2*i}, v{O+2*i+1}")
    for i in range(4):
        a(f"v_min_u32 v{O+i}, -2, v{O+i}")
    a(f"buffer_store_dwordx4 v[{O}:{O+3}], v2, s[12:15], s57 offen sc1")
    a("s_cmp_ge_u32 s20, 4")
    a("s_cbranch_scc1 L_tail")
    nMain = D.n
    if D.on:
        a("s_waitcnt vmcnt(0)")
        D.stamp(); D.stamp(True)
        D.flush()
    a("L_end:")
    a("s_endpgm")

    a("L_E:")
    a("s_barrier")
    a("s_branch L_E_ret")

    a("L_fallback:")
    a("s_mov_b32 s38, 1")
    a("v_mov_b32 v5, v2")
    a(f"v_subrev_u32 v3, {TS*64}, v3")
    a(f"v_subrev_u32 v4, {TS*64}, v4")
    a(f"v_mov_b32 v26, {f2u(-3.0e38)}")
    a("s_mov_b32 s39, 0")
    a("L_fb_loop:")
    a(f"ds_read_b128 v[{KF}:{KF+3}], v5")
    a(f"v_add_u32 v5, {TS}, v5")
    a("s_waitcnt lgkmcnt(0)")
    a(mfma(S[0], KF, Q, "0"))
    a("s_nop 7")
    a("s_nop 3")
    for i in range(8):
        a(f"v_max3_f32 v26, v26, v{S[0]+2*i}, v{S[0]+2*i+1}")
    a("s_add_u32 s39, s39, 1")
    a("s_cmp_lt_u32 s39, 64")
    a("s_cbranch_scc1 L_fb_loop")
    a("v_mov_b32 v5, v2")
    a(f"ds_read_b128 v[{KF}:{KF+3}], v5")
    a("s_waitcnt lgkmcnt(0)")
    a("s_branch L_setmax")

    a("L_G:")
    a("s_waitcnt vmcnt(0)")
    a("s_barrier")
    a("s_cmp_ge_u32 s20, 4")
    a("s_cbranch_scc1 L_G_ret")
    KP, VP, ONES, PP = 140, 148, 152, 156
    MC, MP, SC, SP, OA, LL = 160, 176, 192, 208, 224, 240
    a(f"s_mov_b32 s44, {f2u(1000.0)}")
    a("s_cmp_eq_u32 s23, 0")
    a("s_cbranch_scc1 L_A_nohalo")
    a("s_mov_b32 s44, 0")
    a(f"s_add_u32 s30, s60, {WS_FH - 8}")
    a("s_mov_b32 s31, 0")
    a("L_A_poll:")
    a("buffer_load_dword v24, v139, s[12:15], s30 offen sc1")
    a("s_add_u32 s31, s31, 1")
    a("s_waitcnt vmcnt(0)")
    a("v_readfirstlane_b32 s28, v24")
    a(f"s_cmp_gt_u32 s31, {SPIN_MAX}")
    a("s_cbranch_scc1 L_A_go")
    a("s_cmp_eq_u32 s28, 1")
    a("s_cbranch_scc1 L_A_go")
    a("s_sleep 2")
    a("s_branch L_A_poll")
    a("L_A_go:")
    a("s_sub_u32 s30, s61, 32")
    a("s_lshl_b32 s30, s30, 12")
    a(f"s_add_u32 s30, s30, {WS_HALO}")
    a(f"buffer_load_dwordx4 v[{KP}:{KP+3}], v2, s[12:15], s30 offen sc1")
    a(f"buffer_load_dwordx4 v[{KP+4}:{KP+7}], v2, s[12:15], s30 offen offset:1024 sc1")
    a(f"buffer_load_dwordx4 v[{VP}:{VP+3}], v2, s[12:15], s30 offen offset:2048 sc1")
    a("s_branch L_A_masks")
    a("L_A_nohalo:")
    for r in range(8):
        a(f"v_mov_b32 v{KP+r}, v{KA+r}")
    for r in range(4):
        a(f"v_mov_b32 v{VP+r}, v{VA+4+r}")
    a("L_A_masks:")
    a("v_and_b32 v24, 31, v1")
    a("v_lshrrev_b32 v25, 5, v1")
    a("v_lshlrev_b32 v26, 2, v25")
    a("v_sub_u32 v26, v24, v26")
    a("v_cvt_f32_i32 v26, v26")
    a(f"v_add_f32 v26, {f2u(-3.5)}, v26")
    a("v_add_f32 v28, s44, v26")
    a(f"s_mov_b32 s45, {f2u(-1e30)}")
    for r in range(16):
        cst = 8*(r//4) + (r % 4)
        a(f"v_subrev_f32 v{MC+r}, {f2u(float(cst))}, v26")
    for b in range(4):
        a(f"v_subrev_f32 v{MP+12+b}, {f2u(float(b-8))}, v28")
    regs = [MC+r for r in range(16)] + [MP+12+b for b in range(4)]
    for r in regs:
        a(f"v_add_f32_e64 v{r}, |v{r}|, -4.0 clamp")
    for r in regs:
        a(f"v_mul_f32 v{r}, s45, v{r}")
    for r in range(12):
        a(f"v_mov_b32 v{MP+r}, 0")
    for r in range(4):
        a(f"v_mov_b32 v{ONES+r}, 0x3f803f80")
    a(f"v_mov_b32 v{PP}, 0")
    a(f"v_mov_b32 v{PP+1}, 0")
    a("s_lshl_b32 s30, s58, 15")
    a("s_lshl_b32 s28, s59, 11")
    a("s_add_u32 s30, s30, s28")
    a(f"s_add_u32 s30, s30, {WS_OA}")
    a("s_lshl_b32 s31, s61, 2")
    a(f"s_add_u32 s31, s31, {WS_FO}")
    a("s_waitcnt vmcnt(0)")
    for e in range(2):
        a(mfma(SC, KA+4*e, QA+4*e, MC))
        a(mfma(SP, KP+4*e, QA+4*e, MP))
        a("s_nop 7")
        a("s_nop 2")
        a(f"v_max3_f32 v26, v{SC}, v{SC+1}, v{SC+2}")
        a(f"v_max3_f32 v27, v{SC+3}, v{SC+4}, v{SC+5}")
        a(f"v_max3_f32 v26, v26, v{SC+6}, v{SC+7}")
        a(f"v_max3_f32 v27, v27, v{SC+8}, v{SC+9}")
        a(f"v_max3_f32 v26, v26, v{SC+10}, v{SC+11}")
        a(f"v_max3_f32 v27, v27, v{SC+12}, v{SC+13}")
        a(f"v_max3_f32 v26, v26, v{SC+14}, v{SC+15}")
        a(f"v_max3_f32 v27, v27, v{SP+12}, v{SP+13}")
        a(f"v_max3_f32 v26, v26, v{SP+14}, v{SP+15}")
        a("v_max_f32 v26, v26, v27")
        a("v_mov_b32 v27, v26")
        a("s_nop 1")
        a("v_permlane32_swap_b32 v26, v27")
        a("s_nop 1")
        a("v_max_f32 v26, v26, v27")
        sregs = [SC+r for r in range(16)] + [SP+12+b for b in range(4)]
        for r in sregs:
            a(f"v_sub_f32 v{r}, v{r}, v26")
        for r in sregs:
            a(f"v_exp_f32 v{r}, v{r}")
        a(f"v_cvt_pk_bf16_f32 v{PP+2}, v{SP+12}, v{SP+13}")
        for i in range(8):
            a(f"v_cvt_pk_bf16_f32 v{SC+i}, v{SC+2*i}, v{SC+2*i+1}")
        a(f"v_cvt_pk_bf16_f32 v{PP+3}, v{SP+14}, v{SP+15}")
        a("s_nop 0")
        a(mfma(LL, ONES, SC, "0"))
        a(mfma(OA, VA, SC, "0"))
        a(mfma(LL, ONES, SC+4))
        a(mfma(OA, VA+4, SC+4))
        a(mfma(LL, ONES, PP))
        a(mfma(OA, VP, PP))
        a("s_nop 7")
        a("s_nop 2")
        a(f"v_rcp_f32 v26, v{LL}")
        a("s_nop 0")
        a("v_mul_f32 v26, v26, v136")
        for r in range(8):
            a(f"v_mul_f32 v{OA+8*e+r}, v{OA+8*e+r}, v26")
        for i in range(4):
            a(f"v_cvt_pk_bf16_f32 v{28+i}, v{OA+8*e+2*i}, v{OA+8*e+2*i+1}")
        a(f"buffer_store_dwordx4 v[28:31], v2, s[12:15], s30 offen offset:{1024*e} sc1")
    a("s_waitcnt vmcnt(0)")
    a("s_mov_b64 exec, 1")
    a("buffer_store_dword v138, v139, s[12:15], s31 offen sc1")
    a("s_mov_b64 exec, -1")
    a("s_branch L_G_ret")

    a("L_tail:")
    D.n = nMain
    a("s_setprio 0")
    WF, OF1, OF2, AE, AL = 128, 192, 64, 32, 48
    a("s_and_b32 s28, s20, 1")
    a("s_bfe_u32 s29, s20, 0x10001")
    a("s_lshl_b32 s30, s22, 1")
    a("s_add_u32 s30, s30, s28")
    a("s_lshr_b32 s31, s21, 2")
    a("s_lshl_b32 s31, s31, 3")
    a("s_and_b32 s32, s21, 3")
    a("s_add_u32 s31, s31, s32")
    a("s_lshl_b32 s32, s30, 8")
    a(f"s_add_u32 s32, s32, {WS_FB}")
    a("s_lshl_b32 s33, s31, 6")
    a(f"s_add_u32 s33, s33, {WS_FO}")
    a("v_lshlrev_b32 v6, 2, v1")
    a("v_and_b32 v7, 15, v1")
    a("v_bfe_u32 v8, v1, 4, 1")
    a("v_lshlrev_b32 v7, 2, v7")
    a("v_lshl_add_u32 v7, v8, 8, v7")
    a("s_lshl_b32 s34, s30, 15")
    a("s_lshl_b32 s35, s29, 14")
    a("s_add_u32 s34, s34, s35")
    a(f"s_add_u32 s34, s34, {WS_WOF}")
    a("s_lshl_b32 s36, s31, 15")
    a("s_add_u32 s36, s36, s35")
    a("s_mov_b32 s60, 0")
    a("L_T_poll:")
    a("buffer_load_dword v24, v6, s[12:15], s32 offen sc1")
    a("buffer_load_dword v25, v7, s[12:15], s33 offen sc1")
    a("s_add_u32 s60, s60, 1")
    a("s_waitcnt vmcnt(0)")
    a("v_and_b32 v24, v24, v25")
    a("v_cmp_ne_u32 vcc, 1, v24")
    a(f"s_cmp_gt_u32 s60, {SPIN_MAX}")
    a("s_cbranch_scc1 L_T_go")
    a("s_nop 1")
    a("s_cbranch_vccz L_T_go")
    a("s_sleep 4")
    a("s_branch L_T_poll")
    a("L_T_go:")
    def load16(dst, sreg, const):
        for k in range(16):
            if k % 4 == 0:
                a(f"s_add_u32 s37, s{sreg}, {const + 1024*k}")
            a(f"buffer_load_dwordx4 v[{dst+4*k}:{dst+4*k+3}], v2, s[12:15], s37 offen offset:{(k%4)*1024} sc1")
    load16(WF, 34, 0)
    load16(OF1, 36, WS_OA)
    load16(OF2, 36, WS_OA + 4*32768)
    a("v_and_b32 v8, 31, v1")
    a("v_lshrrev_b32 v9, 5, v1")
    a("s_lshl_b32 s37, s28, 3")
    a("v_add_u32 v9, s37, v9")
    a("v_and_b32 v10, 15, v8")
    a("v_xor_b32 v9, v9, v10")
    a("v_lshlrev_b32 v9, 4, v9")
    a("v_lshl_add_u32 v9, v8, 8, v9")
    a("s_lshl_b32 s37, s29, 13")
    a(f"s_add_u32 s37, s37, {XCH}")
    for q in range(4):
        a(f"v_xor_b32 v{12+q}, {32*q}, v9")
    for q in range(4):
        a(f"v_add_u32 v{12+q}, s37, v{12+q}")
    a("s_sub_u32 s37, s20, 4")
    a("s_lshl_b32 s37, s37, 3")
    a("v_lshrrev_b32 v8, 3, v1")
    a("v_add_u32 v8, s37, v8")
    a("v_and_b32 v9, 7, v1")
    a("v_lshlrev_b32 v10, 1, v9")
    a("v_and_b32 v11, 15, v8")
    a("v_xor_b32 v10, v10, v11")
    a("v_lshlrev_b32 v10, 4, v10")
    a("v_lshl_add_u32 v16, v8, 8, v10")
    a("v_xor_b32 v17, 16, v16")
    a(f"v_add_u32 v16, {XCH}, v16")
    a(f"v_add_u32 v17, {XCH}, v17")
    a("v_lshlrev_b32 v18, 11, v8")
    a("v_lshl_add_u32 v18, v9, 4, v18")
    a("s_lshr_b32 s37, s31, 1")
    a("s_lshl_b32 s37, s37, 6")
    a("s_and_b32 s35, s31, 1")
    a("s_add_u32 s37, s37, s35")
    a("s_lshl_b32 s37, s37, 10")
    a("s_lshl_b32 s35, s22, 7")
    a("s_add_u32 s35, s35, s37")
    a("s_mov_b32 s16, s50")
    a("s_mov_b32 s17, s51")
    a("s_mov_b32 s18, 0x200000")
    a("s_mov_b32 s19, 0x00020000")
    for k in range(16):
        a(f"s_waitcnt vmcnt({31-k})")
        a(mfma(AE, WF+4*k, OF1+4*k, "0" if k == 0 else None))
    for k in range(16):
        a(f"s_waitcnt vmcnt({15-k})")
        a(mfma(AL, WF+4*k, OF2+4*k, "0" if k == 0 else None))
    load16(WF, 34, 512*1024)
    def poll16(lab, dst, const, slp):
        a("s_mov_b32 s60, 0")
        a(f"{lab}:")
        load16(dst, 36, const)
        a("s_add_u32 s60, s60, 1")
        for g in range(4):
            a(f"s_waitcnt vmcnt({12-4*g})")
            b = dst + 16*g
            if g == 0:
                a(f"v_max3_u32 v24, v{b}, v{b+1}, v{b+2}")
                a(f"v_max3_u32 v25, v{b+3}, v{b+4}, v{b+5}")
                rest = list(range(b+6, b+16))
            else:
                rest = list(range(b, b+16))
            for i in range(0, len(rest), 2):
                t = 24 + ((i//2) & 1)
                a(f"v_max3_u32 v{t}, v{t}, v{rest[i]}, v{rest[i+1]}")
        a("v_max_u32 v24, v24, v25")
        a("v_cmp_eq_u32 vcc, -1, v24")
        a(f"s_cmp_gt_u32 s60, {SPIN_MAX}")
        a(f"s_cbranch_scc1 {lab}_ok")
        a("s_nop 1")
        a(f"s_cbranch_vccz {lab}_ok")
        if slp: a(f"s_sleep {slp}")
        a(f"s_branch {lab}")
        a(f"{lab}_ok:")
    def xwrite(acc):
        for q in range(4):
            a(f"ds_write_b128 v{12+q}, v[{acc+4*q}:{acc+4*q+3}]")
    def finalize(soff_const):
        a("ds_read_b128 v[192:195], v16")
        a("ds_read_b128 v[196:199], v17")
        a("ds_read_b128 v[200:203], v16 offset:8192")
        a("ds_read_b128 v[204:207], v17 offset:8192")
        a(f"s_add_u32 s37, s35, {soff_const}")
        a("s_waitcnt lgkmcnt(0)")
        for r in range(8):
            a(f"v_add_f32 v{192+r}, v{192+r}, v{200+r}")
        for i in range(4):
            a(f"v_cvt_pk_bf16_f32 v{208+i}, v{192+2*i}, v{192+2*i+1}")
        a("buffer_store_dwordx4 v[208:211], v18, s[16:19], s37 offen" + (" sc1" if opt.get("outsc1") else ""))
    D.stamp()
    poll16("L_T_pe", OF1, WS_OB, 8)
    for k in range(16):
        a(mfma(AE, WF+4*k, OF1+4*k))
    a("s_nop 7")
    a("s_nop 3")
    xwrite(AE)
    a("s_waitcnt lgkmcnt(0)")
    D.stamp()
    a("s_barrier")
    finalize(0)
    poll16("L_T_pl", OF2, WS_OB + 4*32768, 0)
    D.stamp()
    for k in range(16):
        a(mfma(AL, WF+4*k, OF2+4*k))
    a("s_barrier")
    a("s_nop 7")
    a("s_nop 3")
    xwrite(AL)
    a("s_waitcnt lgkmcnt(0)")
    a("s_barrier")
    finalize(128*1024)
    if opt.get("dbgtime"):
        a("s_waitcnt vmcnt(0)")
        a("s_memrealtime s[66:67]")
        a("s_cmp_lt_u32 s2, 8")
        a("s_cbranch_scc0 L_dt_skip")
        a("s_cmp_eq_u32 s20, 4")
        a("s_cbranch_scc0 L_dt_skip")
        a("s_mov_b32 s16, s52")
        a("s_mov_b32 s17, s53")
        a("s_mov_b32 s18, 256")
        a("s_mov_b32 s19, 0x00020000")
        a("s_lshl_b32 s28, s2, 3")
        a("s_waitcnt lgkmcnt(0)")
        a("s_mov_b64 exec, 1")
        a("v_mov_b32 v24, s64")
        a("v_mov_b32 v25, s66")
        a("v_mov_b32 v26, 0")
        a("buffer_store_dwordx2 v[24:25], v26, s[16:19], s28 offen sc1")
        a("L_dt_skip:")
    if D.on:
        a("s_waitcnt vmcnt(0)")
        D.stamp(); D.stamp(True)
        D.flush()
    a("s_endpgm")
    return 256

HEADER = open("gated_mix__sliding_local_dilated__softmax_full_mha__prompt.s.ref").read().split("; Override launch")[0]

def main(out, opt):
    a = Asm()
    n = gen(a, opt)
    a("L_code_end:")
    a("s_endpgm")
    s = HEADER
    s += "; generated by gen/gen2.py (hand-written generator)\n"
    s += "; @launch grid=(256,1,1) block=(512,1,1) lds=163840\n"
    s += '.amdgcn_target "amdgcn-amd-amdhsa--gfx950"\n.text\n'
    s += a.text()
    s += kd("KNAME", n)
    open(out, "w").write(s.replace("KNAME", KN))

if __name__ == "__main__":
    out = sys.argv[1] if len(sys.argv) > 1 else "gated_mix__sliding_local_dilated__softmax_full_mha__prompt.s"
    opt = {}
    for kv in sys.argv[2:]:
        k, v = kv.split("=")
        opt[k] = int(v)
    main(out, opt)
```

```python
import sys, math, struct
from asmlib import *

MB = 1 << 20
WS_QB   = 0
WS_KV   = 2*MB
WS_HALO = 6*MB
WS_OA   = 10*MB
WS_OB   = 12*MB
WS_WOF  = 14*MB
WS_G    = 15*MB
WS_FB   = 15*MB + 256*1024
WS_FH   = WS_FB + 8192
WS_FO   = WS_FH + 8192
WS_SIZE = 16*MB
DIAG_BASE = 32*MB
QSCALE = 0.25 * math.log2(math.e)
TS = 2064
XCH = 64*TS
SPIN_MAX = 40000
KN = "gated_mix__sliding_local_dilated__softmax_full_mha__prompt_kernel"
def f2u(x): return struct.unpack("<I", struct.pack("<f", x))[0]

class Diag:
    def __init__(self, a, opt, s0=64):
        self.a, self.on, self.n, self.s0 = a, opt.get("diag", 0), 0, s0
    def stamp(self, real=False):
        if not self.on: return
        a = self.a
        r = self.s0 + 2*self.n
        assert r + 1 < 96
        a(f"s_{'memrealtime' if real else 'memtime'} s[{r}:{r+1}]")
        a("s_waitcnt lgkmcnt(0)")
        self.n += 1
    def flush(self):
        if not self.on: return
        a = self.a
        a("s_mov_b32 s96, s54")
        a("s_mov_b32 s97, s55")
        a(f"s_mov_b32 s98, {64*MB}")
        a("s_mov_b32 s99, 0x00020000")
        a("s_lshl_b32 s100, s2, 3")
        a("s_add_u32 s100, s100, s20")
        a("s_lshl_b32 s100, s100, 6")
        a(f"s_add_u32 s100, s100, {DIAG_BASE}")
        a("s_mov_b64 exec, 1")
        a("v_mov_b32 v24, 0")
        for i in range(self.n):
            a(f"v_mov_b32 v25, s{self.s0+2*i}")
            a(f"buffer_store_dword v25, v24, s[96:99], s100 offen offset:{4*i}")
        a("s_waitcnt vmcnt(0)")

def mfma(d, A, B, C=None):
    c = f"v[{d}:{d+15}]" if C is None else (C if isinstance(C, str) else f"v[{C}:{C+15}]")
    return f"v_mfma_f32_32x32x16_bf16 v[{d}:{d+15}], v[{A}:{A+3}], v[{B}:{B+3}], {c}"

def gen(a, opt):
    U = opt.get("unroll", 16)
    FLAGSTEP = opt.get("flagstep", 3)
    a(".p2align 8")
    a(".globl KNAME")
    a(".type KNAME,@function")
    a("KNAME:")
    a("s_cmp_ge_u32 s2, 256")
    a("s_cbranch_scc1 L_end")
    D = Diag(a, opt); D.stamp(True); D.stamp()
    if opt.get("dbgtime"):
        a("s_memrealtime s[64:65]")
    a("s_load_dwordx16 s[36:51], s[0:1], 0")
    a("s_load_dwordx4 s[52:55], s[0:1], 64")
    a("v_lshrrev_b32 v2, 6, v0")
    a("v_and_b32 v1, 63, v0")
    a("v_readfirstlane_b32 s20, v2")
    a("v_lshlrev_b32 v2, 4, v1")
    a("s_and_b32 s26, s2, 7")
    a("s_lshr_b32 s27, s2, 3")
    a("s_and_b32 s23, s26, 1")
    a("s_lshl_b32 s23, s23, 4")
    a("s_and_b32 s28, s27, 15")
    a("s_add_u32 s23, s23, s28")
    a("s_and_b32 s24, s26, 6")
    a("s_lshr_b32 s28, s27, 4")
    a("s_add_u32 s24, s24, s28")
    a("s_lshl_b32 s28, s28, 2")
    a("s_add_u32 s25, s27, s28")
    a("s_and_b32 s25, s25, 7")
    if opt.get("norot"): a("s_mov_b32 s25, 0")
    a("s_lshl_b32 s25, s25, 7")
    a("s_lshl_b32 s21, s26, 2")
    a("s_and_b32 s28, s27, 3")
    a("s_add_u32 s21, s21, s28")
    a("s_lshr_b32 s22, s27, 2")
    a("s_xor_b32 s28, s20, 4")
    a("s_lshl_b32 s56, s22, 3")
    a("s_add_u32 s56, s56, s28")
    a("s_lshl_b32 s57, s56, 15")
    a("s_lshl_b32 s28, s21, 10")
    a("s_add_u32 s57, s57, s28")
    a(f"s_add_u32 s57, s57, {WS_OB}")
    for r in range(4):
        a(f"v_mov_b32 v{24+r}, -1")
    a("v_mov_b32 v139, 0")
    a("v_mov_b32 v138, 1")
    a("s_cmp_ge_u32 s20, 4")
    a("s_cbranch_scc0 L_compute")

    a("s_setprio 2")
    a("s_sub_u32 s29, s20, 4")
    a("v_lshrrev_b32 v6, 3, v1")
    a("v_lshrrev_b32 v7, 4, v1")
    a("v_and_b32 v8, 7, v1")
    a("v_xor_b32 v9, v8, v7")
    a("v_xor_b32 v10, 4, v9")
    a("v_lshlrev_b32 v3, 11, v6")
    a("v_lshl_add_u32 v4, v10, 4, v3")
    a("v_lshl_add_u32 v3, v9, 4, v3")
    a("v_and_b32 v7, 1, v7")
    a("v_lshlrev_b32 v7, 2, v7")
    a("v_xor_b32 v7, v8, v7")
    a("v_mul_u32_u24 v5, 3072, v6")
    a("v_lshl_add_u32 v5, v7, 4, v5")
    a("v_lshlrev_b32 v6, 2, v1")
    a("s_lshr_b32 s28, s29, 1")
    a("s_lshl_b32 s30, s23, 6")
    a("s_add_u32 s30, s30, s28")
    a("s_lshl_b32 s30, s30, 10")
    a("s_lshl_b32 s31, s28, 12")
    a("s_and_b32 s28, s29, 1")
    a("s_lshl_b32 s33, s28, 15")
    a("s_add_u32 s30, s30, s33")
    a("s_lshl_b32 s33, s28, 11")
    a("s_add_u32 s31, s31, s33")
    a("s_mul_i32 s32, s29, 49152")
    a("s_lshl_b32 s28, s24, 7")
    a("s_add_u32 s32, s32, s28")
    a("s_lshl_b32 s33, s29, 11")
    a("s_add_u32 s33, s33, 65536")
    a("s_mov_b32 s58, 0")
    a("s_waitcnt lgkmcnt(0)")
    a("s_mov_b32 s4, s36")
    a("s_mov_b32 s5, s37")
    a("s_mov_b32 s6, 0x200000")
    a("s_mov_b32 s7, 0x00020000")
    a("s_mov_b32 s8, s44")
    a("s_mov_b32 s9, s45")
    a("s_mov_b32 s10, 0x180000")
    a("s_mov_b32 s11, 0x00020000")
    a("s_mov_b32 s12, s54")
    a("s_mov_b32 s13, s55")
    a(f"s_mov_b32 s14, {WS_SIZE}")
    a("s_mov_b32 s15, 0x00020000")
    a("s_mov_b32 s16, s52")
    a("s_mov_b32 s17, s53")
    a("s_mov_b32 s18, 256")
    a("s_mov_b32 s19, 0x00020000")
    def wloads():
        for t in range(3):
            for jj in range(2):
                a(f"s_add_u32 m0, s33, {8192*t + 1024*jj}")
                a(f"s_add_u32 s28, s34, {1024*t + 24576*jj}")
                a("buffer_load_dwordx4 v5, s[8:11], s28 offen lds")
    def advance():
        a("s_add_u32 s25, s25, 128")
        a("s_and_b32 s25, s25, 1023")
        a("s_add_u32 s33, s33, 24576")
        a("s_cmp_ge_u32 s33, 163840")
        a("s_cselect_b32 s28, 98304, 0")
        a("s_sub_u32 s33, s33, s28")
        a("s_add_u32 s58, s58, 1")
    a("buffer_store_dwordx4 v[24:27], v2, s[12:15], s57 offen sc1")
    a("L_ldB:")
    a("s_mul_i32 s34, s25, 1536")
    a("s_add_u32 s35, s30, s25")
    a("s_mov_b32 m0, s31")
    a("s_add_u32 s34, s34, s32")
    a("buffer_load_dwordx4 v3, s[4:7], s35 offen lds")
    a("s_add_u32 m0, s31, 1024")
    a("s_add_u32 s28, s35, 16384")
    a("buffer_load_dwordx4 v4, s[4:7], s28 offen lds")
    wloads()
    a("s_add_u32 s31, s31, 8192")
    advance()
    a("s_cmp_lt_u32 s58, 4")
    a("s_cbranch_scc1 L_ldB")
    a("s_cmp_eq_u32 s58, 4")
    a("s_cbranch_scc0 L_ldB_st")
    D.stamp()
    a("s_waitcnt vmcnt(24)")
    D.stamp()
    a("s_barrier")
    a("s_waitcnt vmcnt(16)")
    a("s_barrier")
    a("s_branch L_ldB")
    a("L_ldB_st:")
    a("s_waitcnt vmcnt(16)")
    a("s_barrier")
    a("s_cmp_lt_u32 s58, 8")
    a("s_cbranch_scc1 L_ldB")
    a("s_mov_b32 s8, s38")
    a("s_mov_b32 s9, s39")
    a("L_ldA:")
    a("s_mul_i32 s34, s25, 1536")
    a("buffer_load_dword v7, v6, s[16:19], 0 offen sc1")
    a("s_add_u32 s34, s34, s32")
    wloads()
    advance()
    a("s_waitcnt vmcnt(14)")
    a("s_barrier")
    a("s_cmp_lt_u32 s58, 16")
    a("s_cbranch_scc1 L_ldA")
    a("s_lshr_b32 s28, s21, 1")
    a("s_lshl_b32 s28, s28, 8")
    a(f"s_add_u32 s59, s28, {WS_FB}")
    a("s_mov_b32 s60, 0")
    a("L_dbg_chk:")
    a("s_waitcnt vmcnt(0)")
    a("v_cmp_ne_u32 vcc, 0x01010101, v7")
    a("s_add_u32 s60, s60, 1")
    a(f"s_cmp_gt_u32 s60, {SPIN_MAX}")
    a("s_cbranch_scc1 L_dbg_ok")
    a("s_cbranch_vccz L_dbg_ok")
    a("s_sleep 2")
    a("buffer_load_dword v7, v6, s[16:19], 0 offen sc1")
    a("s_branch L_dbg_chk")
    a("L_dbg_ok:")
    a("buffer_load_dword v7, v6, s[12:15], s59 offen sc1")
    D.stamp()
    a("s_barrier")
    a("s_lshl_b32 s30, s21, 16")
    a("s_lshl_b32 s28, s56, 10")
    a("s_add_u32 s30, s30, s28")
    a("s_lshr_b32 s31, s21, 1")
    a("s_lshl_b32 s31, s31, 6")
    a("s_add_u32 s31, s31, s56")
    a("s_lshl_b32 s31, s31, 7")
    a(f"s_add_u32 s31, s31, {WS_G}")
    a("s_lshl_b32 s32, s21, 17")
    a(f"s_add_u32 s32, s32, {WS_KV}")
    a("v_and_b32 v28, 31, v1")
    a("v_lshlrev_b32 v28, 2, v28")
    a("s_mov_b32 s61, 0")
    a("s_mov_b32 s60, 0")
    a("L_fb_chk:")
    a("s_waitcnt vmcnt(0)")
    a("v_cmp_ne_u32 vcc, 1, v7")
    a("s_add_u32 s60, s60, 1")
    a(f"s_cmp_gt_u32 s60, {SPIN_MAX}")
    a("s_cbranch_scc1 L_fb_ok")
    a("s_cbranch_vccz L_fb_ok")
    a("buffer_load_dword v7, v6, s[12:15], s59 offen sc1")
    a("s_cmp_eq_u32 s61, 0")
    a("s_cbranch_scc0 L_fb_chk")
    a("s_mov_b32 s61, 1")
    a("s_barrier")
    a("s_branch L_fb_chk")
    a("L_fb_ok:")
    D.stamp()
    Q, KF, V0, V1 = 8, 12, 16, 20
    GB = 137
    a("s_mul_i32 s33, s29, %d" % (5*TS))
    a("s_mul_i32 s34, s29, 10240")
    a("s_add_u32 s34, s34, s32")
    a(f"buffer_load_dwordx4 v[{Q}:{Q+3}], v2, s[12:15], s30 offen sc1")
    a(f"buffer_load_dword v{GB}, v28, s[12:15], s31 offen sc1")
    for t in range(5):
        a(f"s_add_u32 m0, s33, {TS*t}")
        a(f"s_add_u32 s28, s34, {2048*t}")
        a("buffer_load_dwordx4 v2, s[12:15], s28 offen sc1 lds")
        a("buffer_load_dwordx4 v2, s[12:15], s28 offen offset:1024 sc1 lds")
    a("s_cmp_eq_u32 s61, 0")
    a("s_cbranch_scc0 L_b15_done")
    a("s_barrier")
    a("L_b15_done:")
    a("s_mul_i32 s33, s29, %d" % (11*TS))
    a("s_mul_i32 s34, s29, 22528")
    a("s_add_u32 s34, s34, s32")
    a(f"v_mul_u32_u24 v28, {TS}, v1")
    for r in range(4):
        a(f"v_mov_b32 v{24+r}, 0x3f803f80")
    a("s_barrier")
    for t in range(11):
        a(f"s_add_u32 m0, s33, {TS*(20+t)}")
        a(f"s_add_u32 s28, s34, {2048*(20+t)}")
        a("buffer_load_dwordx4 v2, s[12:15], s28 offen sc1 lds")
        a("buffer_load_dwordx4 v2, s[12:15], s28 offen offset:1024 sc1 lds")
    a("ds_write_b128 v28, v[24:27] offset:2048")
    D.stamp()
    a("s_waitcnt vmcnt(22) lgkmcnt(0)")
    a("s_barrier")
    a("s_branch L_main")
    nL = D.n

    a("L_compute:")
    D.n = 2
    a("s_and_b32 s28, s20, 1")
    a("s_lshr_b32 s29, s20, 1")
    a("s_lshl_b32 s58, s23, 1")
    a("s_add_u32 s58, s58, s28")
    a("s_lshl_b32 s59, s24, 1")
    a("s_add_u32 s59, s59, s29")
    a("v_and_b32 v7, 31, v1")
    a("v_lshrrev_b32 v8, 5, v1")
    a("v_lshrrev_b32 v9, 2, v1")
    a("v_and_b32 v10, 3, v1")
    a("v_lshlrev_b32 v9, 10, v9")
    a("v_lshl_add_u32 v9, v10, 4, v9")
    a("s_and_b32 s30, s58, 31")
    a("s_lshl_b32 s31, s30, 14")
    a("s_lshl_b32 s32, s59, 6")
    a("s_add_u32 s31, s31, s32")
    a("s_lshl_b32 s32, s20, 10")
    a(f"s_add_u32 m0, s32, {7*8192}")
    a("v_lshlrev_b32 v14, 4, v8")
    a("s_add_u32 s33, s25, 128")
    a("s_and_b32 s33, s33, 1023")
    a("s_lshl_b32 s60, s59, 6")
    a("s_add_u32 s60, s60, s58")
    a("s_lshl_b32 s60, s60, 2")
    a("s_lshl_b32 s61, s58, 4")
    a("s_add_u32 s61, s61, s59")
    a("s_cmp_lt_u32 s58, 32")
    a("s_waitcnt lgkmcnt(0)")
    a("s_cselect_b32 s16, s40, s46")
    a("s_cselect_b32 s17, s41, s47")
    a("s_mov_b32 s18, 0x80000")
    a("s_mov_b32 s19, 0x00020000")
    a("s_mov_b32 s4, s48")
    a("s_mov_b32 s5, s49")
    a("s_mov_b32 s6, 1024")
    a("s_mov_b32 s7, 0x00020000")
    a("s_mov_b32 s12, s54")
    a("s_mov_b32 s13, s55")
    a(f"s_mov_b32 s14, {WS_SIZE}")
    a("s_mov_b32 s15, 0x00020000")
    a("s_mov_b32 s8, s52")
    a("s_mov_b32 s9, s53")
    a("s_mov_b32 s10, 256")
    a("s_mov_b32 s11, 0x00020000")
    a("buffer_load_dwordx4 v9, s[16:19], s31 offen lds")
    GF = [192, 208]
    for i in range(4):
        a(f"buffer_load_dwordx4 v[{GF[0]+4*i}:{GF[0]+4*i+3}], v14, s[4:7], s25 offen offset:{32*i}")
    for i in range(4):
        a(f"buffer_load_dwordx4 v[{GF[1]+4*i}:{GF[1]+4*i+3}], v14, s[4:7], s33 offen offset:{32*i}")
    a("buffer_store_dwordx4 v[24:27], v2, s[12:15], s57 offen sc1")
    a(f"s_add_u32 s30, s60, {WS_FB}")
    a("s_lshl_b32 s31, s61, 2")
    a(f"s_add_u32 s31, s31, {WS_FO}")
    a("s_mov_b64 exec, 1")
    a("buffer_store_dword v139, v139, s[12:15], s30 offen sc1")
    a(f"s_add_u32 s30, s60, {WS_FH}")
    a("buffer_store_dword v139, v139, s[12:15], s30 offen sc1")
    a("buffer_store_dword v139, v139, s[12:15], s31 offen sc1")
    a("s_mov_b64 exec, -1")
    a("s_getpc_b64 s[34:35]")
    a("L_pc:")
    a("s_sub_u32 s34, s34, L_pc-KNAME")
    a("s_subb_u32 s35, s35, 0")
    a("v_lshlrev_b32 v10, 7, v1")
    NPF = opt.get("npf", 2)
    for k in range(NPF):
        a(f"v_add_u32 v11, {8192*k}, v10")
        a("v_min_u32 v11, L_code_end-KNAME-4, v11")
        a(f"global_load_dword v{28+k}, v11, s[34:35]")
    XA = [3, 4, 5, 6]; WA = 13
    a("v_bfe_u32 v9, v1, 1, 3")
    a("v_xor_b32 v9, v9, v8")
    a("v_lshlrev_b32 v9, 4, v9")
    a("s_lshl_b32 s30, s28, 12")
    a("v_lshlrev_b32 v3, 7, v7")
    a("v_add_u32 v3, s30, v3")
    a("v_xor_b32 v4, 32, v9")
    a("v_xor_b32 v5, 64, v9")
    a("v_xor_b32 v6, 96, v9")
    a("v_add_u32 v4, v3, v4")
    a("v_add_u32 v5, v3, v5")
    a("v_add_u32 v6, v3, v6")
    a("v_add_u32 v3, v3, v9")
    a("v_bfe_u32 v9, v1, 2, 2")
    a(f"v_lshl_add_u32 v{WA}, v8, 3, v9")
    a(f"v_lshlrev_b32 v{WA}, 7, v{WA}")
    a("v_bfe_u32 v10, v1, 3, 1")
    a("v_xor_b32 v10, s29, v10")
    a(f"v_lshl_add_u32 v{WA}, v10, 6, v{WA}")
    a("v_bfe_u32 v10, v1, 4, 1")
    a("v_and_b32 v11, 3, v1")
    a(f"v_lshl_add_u32 v{WA}, v10, 5, v{WA}")
    a(f"v_lshl_add_u32 v{WA}, v11, 3, v{WA}")
    a(f"v_add_u32 v{WA}, 65536, v{WA}")
    a("v_lshl_add_u32 v12, v8, 2, v9")
    a("v_lshlrev_b32 v12, 6, v12")
    a("v_lshl_add_u32 v12, v10, 5, v12")
    a("v_lshl_add_u32 v12, v11, 3, v12")
    a("v_add_u32 v12, s32, v12")
    a("v_lshlrev_b32 v18, 17, v10")
    a("v_lshl_add_u32 v18, v8, 8, v18")
    a("v_and_b32 v9, 15, v1")
    a("v_lshl_add_u32 v18, v9, 4, v18")
    a("v_lshlrev_b32 v19, 2, v7")
    ACCB, ACCA = 32, 144
    for r in range(48):
        a(f"v_mov_b32 v{ACCB+r}, 0")
        a(f"v_mov_b32 v{ACCA+r}, 0")
    a("v_mov_b32 v16, 0")
    a("v_mov_b32 v17, 0")
    a("s_lshr_b32 s30, s58, 5")
    a("s_lshl_b32 s30, s30, 4")
    a("s_add_u32 s30, s30, s59")
    a("s_lshl_b32 s30, s30, 5")
    a("s_and_b32 s31, s58, 31")
    a("s_add_u32 s30, s30, s31")
    a("s_lshl_b32 s30, s30, 10")
    a(f"s_add_u32 s30, s30, {WS_WOF}")
    a("s_add_u32 s33, s25, 256")
    a("s_and_b32 s33, s33, 1023")
    a("s_mov_b32 s34, 65536")
    a("s_mov_b32 s35, 0")
    D.stamp()
    a(f"s_waitcnt vmcnt({NPF})")
    a(f"ds_read_b64_tr_b16 v[20:21], v12 offset:{7*8192}")
    a(f"ds_read_b64_tr_b16 v[22:23], v12 offset:{7*8192+512}")
    a("v_mov_b32 v11, s2")
    a("s_waitcnt lgkmcnt(0)")
    a("buffer_store_dwordx4 v[20:23], v2, s[12:15], s30 offen sc1")
    a("s_barrier")
    D.stamp()
    FA, FB = 80, 96
    def reads(F, s):
        L = [f"ds_read_b128 v[{F}:{F+3}], v{XA[s]}"]
        for t in range(3):
            L.append(f"ds_read_b64_tr_b16 v[{F+4+4*t}:{F+5+4*t}], v{WA} offset:{t*8192 + (16*s)*128}")
            L.append(f"ds_read_b64_tr_b16 v[{F+6+4*t}:{F+7+4*t}], v{WA} offset:{t*8192 + (16*s+4)*128}")
        return L
    def mf(F, ACC):
        return [mfma(ACC, F+4, F), mfma(ACC+16, F+8, F), mfma(ACC+32, F, F+12)]
    def dots(F, G):
        return [f"v_dot2_f32_bf16 v{16+(i&1)}, v{F+i}, v{G+i}, v{16+(i&1)}" for i in range(4)]
    def kstep(M, R, X):
        out = [M[0]] + R[0:3] + X[0:2] + [M[1]] + R[3:5] + X[2:4] + [M[2]] + R[5:7] + X[4:]
        for l in out: a(l)
    def addr_update():
        a("s_add_u32 s34, s34, 24576")
        a("s_cmp_ge_u32 s34, 163840")
        a("s_cselect_b32 s28, 98304, 0")
        a("s_sub_u32 s34, s34, s28")
        a("s_sub_u32 s28, 24576, s28")
        a("s_add_u32 s35, s35, 1")
        a("s_cmp_eq_u32 s35, 8")
        a("s_cselect_b32 s29, -65536, 0")
        a("s_add_u32 s29, s29, 8192")
        a(f"v_add_u32 v{WA}, s28, v{WA}")
        for r in XA:
            a(f"v_add_u32 v{r}, s29, v{r}")
    for l in reads(FA, 0): a(l)
    a("s_cmp_lg_u32 s20, 0")
    a("s_cbranch_scc1 L_cB")
    a("s_mov_b64 exec, 1")
    a("buffer_store_byte v138, v11, s[8:11], 0 offen sc1")
    a("s_mov_b64 exec, -1")
    a("L_cB:")
    for sub in range(2):
        G = GF[sub]
        for s in range(4):
            cur, nxt = (FA, FB) if s % 2 == 0 else (FB, FA)
            X = dots(cur, G+4*s) + [f"buffer_load_dwordx4 v[{G+4*s}:{G+4*s+3}], v14, s[4:7], s33 offen offset:{32*s}"]
            if s == 3:
                addr_update()
                a("s_waitcnt vmcnt(7) lgkmcnt(0)")
                a("s_barrier")
                kstep(mf(cur, ACCB), reads(nxt, 0), X)
                a("s_add_u32 s33, s33, 128")
                a("s_and_b32 s33, s33, 1023")
            else:
                a("s_waitcnt vmcnt(7) lgkmcnt(0)")
                kstep(mf(cur, ACCB), reads(nxt, s+1), X)
    a("s_cmp_lt_u32 s35, 8")
    a("s_cbranch_scc1 L_cB")
    D.stamp()
    a("s_lshl_b32 s30, s59, 17")
    a("s_lshl_b32 s28, s58, 10")
    a("s_add_u32 s30, s30, s28")
    a("s_add_u32 s31, s30, 65536")
    a("s_lshl_b32 s32, s30, 1")
    a(f"s_add_u32 s32, s32, {WS_KV}")
    a("s_add_u32 s33, s32, 131072")
    a("s_lshl_b32 s28, s60, 5")
    a(f"s_add_u32 s28, s28, {WS_G}")
    a(f"s_mov_b32 s29, {f2u(QSCALE)}")
    a("v_add_f32 v16, v16, v17")
    a("s_nop 0")
    a("v_mov_b32 v17, v16")
    a("s_nop 1")
    a("v_permlane32_swap_b32 v16, v17")
    a("s_nop 1")
    a("v_add_f32 v16, v16, v17")
    a(f"v_mul_f32 v16, {f2u(-math.log2(math.e))}, v16")
    a("v_exp_f32 v16, v16")
    a("s_nop 0")
    a("v_add_f32 v16, 1.0, v16")
    a("v_rcp_f32 v136, v16")
    K0, V0_ = ACCB+16, ACCB+32
    for r in range(8):
        a(f"v_cvt_pk_bf16_f32 v{K0+r}, v{K0+2*r}, v{K0+2*r+1}")
    a("v_sub_f32 v16, 1.0, v136")
    a(f"buffer_store_dwordx4 v[{K0}:{K0+3}], v2, s[12:15], s32 offen sc1")
    a(f"buffer_store_dwordx4 v[{K0+4}:{K0+7}], v2, s[12:15], s33 offen sc1")
    for r in range(16):
        a(f"v_mul_f32 v{ACCB+r}, s29, v{ACCB+r}")
    for r in range(8):
        a(f"v_cvt_pk_bf16_f32 v{ACCB+r}, v{ACCB+2*r}, v{ACCB+2*r+1}")
    a(f"buffer_store_dwordx4 v[{ACCB}:{ACCB+3}], v2, s[12:15], s30 offen sc1")
    a(f"buffer_store_dwordx4 v[{ACCB+4}:{ACCB+7}], v2, s[12:15], s31 offen sc1")
    for r in range(8):
        a(f"v_cvt_pk_bf16_f32 v{V0_+r}, v{V0_+2*r}, v{V0_+2*r+1}")
    a(f"buffer_store_dwordx4 v[{V0_}:{V0_+3}], v18, s[12:15], s32 offen offset:1024 sc1")
    a(f"buffer_store_dwordx4 v[{V0_+4}:{V0_+7}], v18, s[12:15], s32 offen offset:1536 sc1")
    a("s_mov_b32 exec_hi, 0")
    a("buffer_store_dword v16, v19, s[12:15], s28 offen sc1")
    a("s_mov_b32 exec_hi, -1")
    a(f"s_add_u32 s30, s60, {WS_FB}")
    D.stamp()
    a("L_cA:")
    for s in range(3):
        cur, nxt = (FA, FB) if s % 2 == 0 else (FB, FA)
        a("s_waitcnt lgkmcnt(0)")
        kstep(mf(cur, ACCA), reads(nxt, s+1), [])
    addr_update()
    a("s_cmp_eq_u32 s35, 16")
    a("s_waitcnt lgkmcnt(0)")
    a("s_barrier")
    a("s_cbranch_scc1 L_cA_last")
    kstep(mf(FB, ACCA), reads(FA, 0), [])
    a(f"s_cmp_eq_u32 s35, {8+FLAGSTEP}")
    a("s_cbranch_scc0 L_cA")
    a("s_waitcnt vmcnt(0)")
    a("s_mov_b64 exec, 1")
    a("buffer_store_dword v138, v139, s[12:15], s30 offen sc1")
    a("s_mov_b64 exec, -1")
    a("s_branch L_cA")
    a("L_cA_last:")
    for l in mf(FB, ACCA): a(l)
    D.stamp()
    QA, KA, VA = 112, 120, 128
    a("s_lshl_b32 s30, s61, 12")
    a(f"s_add_u32 s30, s30, {WS_HALO}")
    a(f"s_mov_b32 s29, {f2u(QSCALE)}")
    a("s_lshl_b32 s31, s21, 16")
    a("s_lshl_b32 s28, s56, 10")
    a("s_add_u32 s31, s31, s28")
    a("s_lshr_b32 s32, s21, 1")
    a("s_lshl_b32 s32, s32, 6")
    a("s_add_u32 s32, s32, s56")
    a("s_lshl_b32 s32, s32, 7")
    a(f"s_add_u32 s32, s32, {WS_G}")
    a("s_nop 1")
    for r in range(16):
        a(f"v_mul_f32 v{ACCA+r}, s29, v{ACCA+r}")
    for r in range(8):
        a(f"v_cvt_pk_bf16_f32 v{KA+r}, v{ACCA+16+2*r}, v{ACCA+16+2*r+1}")
    a(f"buffer_store_dwordx4 v[{KA}:{KA+3}], v2, s[12:15], s30 offen sc1")
    a(f"buffer_store_dwordx4 v[{KA+4}:{KA+7}], v2, s[12:15], s30 offen offset:1024 sc1")
    for r in range(8):
        a(f"v_cvt_pk_bf16_f32 v{VA+r}, v{ACCA+32+2*r}, v{ACCA+32+2*r+1}")
    a(f"buffer_store_dwordx4 v[{VA+4}:{VA+7}], v2, s[12:15], s30 offen offset:2048 sc1")
    for r in range(8):
        a(f"v_cvt_pk_bf16_f32 v{QA+r}, v{ACCA+2*r}, v{ACCA+2*r+1}")
    a(f"s_add_u32 s30, s60, {WS_FH}")
    D.stamp()
    a("s_barrier")
    a(f"buffer_load_dwordx4 v[{Q}:{Q+3}], v2, s[12:15], s31 offen sc1")
    a(f"buffer_load_dword v{GB}, v19, s[12:15], s32 offen sc1")
    a("s_waitcnt vmcnt(0)")
    a("s_mov_b64 exec, 1")
    a("buffer_store_dword v138, v139, s[12:15], s30 offen sc1")
    a("s_mov_b64 exec, -1")
    assert D.n <= nL + 2 or True
    D.n = max(D.n, nL) if D.on else 0

    S = [32, 48]; P = [64, 72]; O = 80; NM = 96
    a("L_main:")
    D.stamp()
    a(f"ds_read_b128 v[{KF}:{KF+3}], v2")
    a("v_and_b32 v24, 31, v1")
    a("v_lshrrev_b32 v25, 5, v1")
    a("v_lshlrev_b32 v6, 4, v24")
    a("v_lshl_add_u32 v6, v25, 8, v6")
    a("v_cmp_gt_u32 vcc, 16, v24")
    a("v_add_u32 v3, 1024, v6")
    a("v_add_u32 v4, 1536, v6")
    a("v_mov_b32 v5, 2048")
    a("v_cndmask_b32 v3, v5, v3, vcc")
    a("v_cndmask_b32 v4, v5, v4, vcc")
    a("v_mov_b32 v5, v2")
    a("s_mov_b32 s38, 0")
    a("s_waitcnt lgkmcnt(0)")
    a(mfma(S[0], KF, Q, "0"))
    a("s_nop 7")
    a("s_nop 3")
    a(f"v_max3_f32 v26, v{S[0]}, v{S[0]+1}, v{S[0]+2}")
    a(f"v_max3_f32 v27, v{S[0]+3}, v{S[0]+4}, v{S[0]+5}")
    for i in range(2):
        a(f"v_max3_f32 v26, v26, v{S[0]+6+4*i}, v{S[0]+7+4*i}")
        a(f"v_max3_f32 v27, v27, v{S[0]+8+4*i}, v{S[0]+9+4*i}")
    a(f"v_max3_f32 v26, v26, v{S[0]+14}, v{S[0]+15}")
    a("v_max_f32 v26, v26, v27")
    a("L_setmax:")
    a("v_mov_b32 v27, v26")
    a("s_nop 1")
    a("v_permlane32_swap_b32 v26, v27")
    a("s_nop 1")
    a("v_max_f32 v26, v26, v27")
    for r in range(16):
        a(f"v_sub_f32 v{NM+r}, 0, v26")
    for r in range(8):
        a(f"v_mov_b32 v{P[1]+r}, 0")
        a(f"v_mov_b32 v{V0+r}, 0")
    for r in range(16):
        a(f"v_mov_b32 v{O+r}, 0")
    a(mfma(S[0], KF, Q, NM))
    a(f"ds_read_b128 v[{KF}:{KF+3}], v5 offset:{TS}")
    a("s_mov_b32 s39, 0")
    a("s_add_u32 s28, s38, s20")
    a("s_cmp_lt_u32 s20, 4")
    a(f"s_cselect_b32 s62, {64//U - 1}, 99")
    a("s_cmp_eq_u32 s38, 0")
    a("s_cselect_b32 s62, s62, 99")
    a("s_nop 5")
    a("s_waitcnt lgkmcnt(0)")
    D.stamp()
    a(".p2align 6")
    a("L_loop:")
    EU = U - opt.get("eback", 4)
    for u in range(U):
        cur, nxt = S[u & 1], S[(u+1) & 1]
        Pc, Pp = P[u & 1], P[(u+1) & 1]
        ex = [f"v_exp_f32 v{cur+i}, v{cur+i}" for i in range(16)]
        cv = [f"v_cvt_pk_bf16_f32 v{Pc+i}, v{cur+2*i}, v{cur+2*i+1}" for i in range(8)]
        if u == EU:
            a("s_cmp_eq_u32 s39, s62")
            a("s_cbranch_scc1 L_E")
            a("L_E_ret:")
        a(mfma(nxt, KF, Q, NM))
        a(f"ds_read_b128 v[{KF}:{KF+3}], v5 offset:{(u+2)*TS}")
        for l in ex[0:4] + [cv[0]] + ex[4:6] + [cv[1]]: a(l)
        a("s_waitcnt lgkmcnt(2)")
        a(mfma(O, V0, Pp))
        a(f"ds_read_b128 v[{V0}:{V0+3}], v3 offset:{u*TS}")
        for l in ex[6:8] + [cv[2]] + ex[8:10] + [cv[3]] + ex[10:12] + [cv[4]]: a(l)
        a("s_waitcnt lgkmcnt(2)")
        a(mfma(O, V1, Pp+4))
        a(f"ds_read_b128 v[{V1}:{V1+3}], v4 offset:{u*TS}")
        for l in ex[12:14] + [cv[5]] + ex[14:16] + [cv[6]]: a(l)
        if u == U-1:
            a(f"v_add_u32 v5, {TS*U}, v5")
            a(f"v_add_u32 v3, {TS*U}, v3")
            a(f"v_add_u32 v4, {TS*U}, v4")
            a("s_add_u32 s39, s39, 1")
            a("s_add_u32 s28, s39, s38")
        a("s_waitcnt lgkmcnt(2)")
        a(cv[7])
    a("s_cmp_eq_u32 s28, 1")
    a("s_cbranch_scc1 L_G")
    a("L_G_ret:")
    a(f"s_cmp_lt_u32 s39, {64//U}")
    a("s_cbranch_scc1 L_loop")
    a("s_waitcnt lgkmcnt(0)")
    a(mfma(O, V0, P[1]))
    a(mfma(O, V1, P[1]+4))
    D.stamp()
    a(f"s_mov_b32 s40, {f2u(2.0**100)}")
    a("s_nop 7")
    a("s_nop 3")
    a(f"v_mul_f32 v26, 0, v{O}")
    for r in range(1, 8):
        a(f"v_fma_f32 v26, v{O+r}, 0, v26")
    a(f"v_add_f32 v26, v26, v{O+8}")
    a(f"v_rcp_f32 v27, v{O+8}")
    a("v_cmp_nlt_f32 vcc, v26, s40")
    a("s_cmp_eq_u32 s38, 0")
    a("s_cbranch_scc0 L_fin")
    a("s_nop 1")
    a("s_cbranch_vccnz L_fallback")
    a("L_fin:")
    a(f"v_mul_f32 v27, v27, v{GB}")
    for r in range(8):
        a(f"v_mul_f32 v{O+r}, v{O+r}, v27")
    for i in range(4):
        a(f"v_cvt_pk_bf16_f32 v{O+i}, v{O+2*i}, v{O+2*i+1}")
    for i in range(4):
        a(f"v_min_u32 v{O+i}, -2, v{O+i}")
    a(f"buffer_store_dwordx4 v[{O}:{O+3}], v2, s[12:15], s57 offen sc1")
    a("s_cmp_ge_u32 s20, 4")
    a("s_cbranch_scc1 L_tail")
    nMain = D.n
    if D.on:
        a("s_waitcnt vmcnt(0)")
        D.stamp(); D.stamp(True)
        D.flush()
    a("L_end:")
    a("s_endpgm")

    a("L_E:")
    a("s_barrier")
    a("s_branch L_E_ret")

    a("L_fallback:")
    a("s_mov_b32 s38, 1")
    a("v_mov_b32 v5, v2")
    a(f"v_subrev_u32 v3, {TS*64}, v3")
    a(f"v_subrev_u32 v4, {TS*64}, v4")
    a(f"v_mov_b32 v26, {f2u(-3.0e38)}")
    a("s_mov_b32 s39, 0")
    a("L_fb_loop:")
    a(f"ds_read_b128 v[{KF}:{KF+3}], v5")
    a(f"v_add_u32 v5, {TS}, v5")
    a("s_waitcnt lgkmcnt(0)")
    a(mfma(S[0], KF, Q, "0"))
    a("s_nop 7")
    a("s_nop 3")
    for i in range(8):
        a(f"v_max3_f32 v26, v26, v{S[0]+2*i}, v{S[0]+2*i+1}")
    a("s_add_u32 s39, s39, 1")
    a("s_cmp_lt_u32 s39, 64")
    a("s_cbranch_scc1 L_fb_loop")
    a("v_mov_b32 v5, v2")
    a(f"ds_read_b128 v[{KF}:{KF+3}], v5")
    a("s_waitcnt lgkmcnt(0)")
    a("s_branch L_setmax")

    a("L_G:")
    a("s_waitcnt vmcnt(0)")
    a("s_barrier")
    a("s_cmp_ge_u32 s20, 4")
    a("s_cbranch_scc1 L_G_ret")
    KP, VP, ONES, PP = 140, 148, 152, 156
    MC, MP, SC, SP, OA, LL = 160, 176, 192, 208, 224, 240
    a(f"s_mov_b32 s44, {f2u(1000.0)}")
    a("s_cmp_eq_u32 s23, 0")
    a("s_cbranch_scc1 L_A_nohalo")
    a("s_mov_b32 s44, 0")
    a(f"s_add_u32 s30, s60, {WS_FH - 8}")
    a("s_mov_b32 s31, 0")
    a("L_A_poll:")
    a("buffer_load_dword v24, v139, s[12:15], s30 offen sc1")
    a("s_add_u32 s31, s31, 1")
    a("s_waitcnt vmcnt(0)")
    a("v_readfirstlane_b32 s28, v24")
    a(f"s_cmp_gt_u32 s31, {SPIN_MAX}")
    a("s_cbranch_scc1 L_A_go")
    a("s_cmp_eq_u32 s28, 1")
    a("s_cbranch_scc1 L_A_go")
    a("s_sleep 2")
    a("s_branch L_A_poll")
    a("L_A_go:")
    a("s_sub_u32 s30, s61, 32")
    a("s_lshl_b32 s30, s30, 12")
    a(f"s_add_u32 s30, s30, {WS_HALO}")
    a(f"buffer_load_dwordx4 v[{KP}:{KP+3}], v2, s[12:15], s30 offen sc1")
    a(f"buffer_load_dwordx4 v[{KP+4}:{KP+7}], v2, s[12:15], s30 offen offset:1024 sc1")
    a(f"buffer_load_dwordx4 v[{VP}:{VP+3}], v2, s[12:15], s30 offen offset:2048 sc1")
    a("s_branch L_A_masks")
    a("L_A_nohalo:")
    for r in range(8):
        a(f"v_mov_b32 v{KP+r}, v{KA+r}")
    for r in range(4):
        a(f"v_mov_b32 v{VP+r}, v{VA+4+r}")
    a("L_A_masks:")
    a("v_and_b32 v24, 31, v1")
    a("v_lshrrev_b32 v25, 5, v1")
    a("v_lshlrev_b32 v26, 2, v25")
    a("v_sub_u32 v26, v24, v26")
    a("v_cvt_f32_i32 v26, v26")
    a(f"v_add_f32 v26, {f2u(-3.5)}, v26")
    a("v_add_f32 v28, s44, v26")
    a(f"s_mov_b32 s45, {f2u(-1e30)}")
    for r in range(16):
        cst = 8*(r//4) + (r % 4)
        a(f"v_subrev_f32 v{MC+r}, {f2u(float(cst))}, v26")
    for b in range(4):
        a(f"v_subrev_f32 v{MP+12+b}, {f2u(float(b-8))}, v28")
    regs = [MC+r for r in range(16)] + [MP+12+b for b in range(4)]
    for r in regs:
        a(f"v_add_f32_e64 v{r}, |v{r}|, -4.0 clamp")
    for r in regs:
        a(f"v_mul_f32 v{r}, s45, v{r}")
    for r in range(12):
        a(f"v_mov_b32 v{MP+r}, 0")
    for r in range(4):
        a(f"v_mov_b32 v{ONES+r}, 0x3f803f80")
    a(f"v_mov_b32 v{PP}, 0")
    a(f"v_mov_b32 v{PP+1}, 0")
    a("s_lshl_b32 s30, s58, 15")
    a("s_lshl_b32 s28, s59, 11")
    a("s_add_u32 s30, s30, s28")
    a(f"s_add_u32 s30, s30, {WS_OA}")
    a("s_lshl_b32 s31, s61, 2")
    a(f"s_add_u32 s31, s31, {WS_FO}")
    a("s_waitcnt vmcnt(0)")
    for e in range(2):
        a(mfma(SC, KA+4*e, QA+4*e, MC))
        a(mfma(SP, KP+4*e, QA+4*e, MP))
        a("s_nop 7")
        a("s_nop 2")
        a(f"v_max3_f32 v26, v{SC}, v{SC+1}, v{SC+2}")
        a(f"v_max3_f32 v27, v{SC+3}, v{SC+4}, v{SC+5}")
        a(f"v_max3_f32 v26, v26, v{SC+6}, v{SC+7}")
        a(f"v_max3_f32 v27, v27, v{SC+8}, v{SC+9}")
        a(f"v_max3_f32 v26, v26, v{SC+10}, v{SC+11}")
        a(f"v_max3_f32 v27, v27, v{SC+12}, v{SC+13}")
        a(f"v_max3_f32 v26, v26, v{SC+14}, v{SC+15}")
        a(f"v_max3_f32 v27, v27, v{SP+12}, v{SP+13}")
        a(f"v_max3_f32 v26, v26, v{SP+14}, v{SP+15}")
        a("v_max_f32 v26, v26, v27")
        a("v_mov_b32 v27, v26")
        a("s_nop 1")
        a("v_permlane32_swap_b32 v26, v27")
        a("s_nop 1")
        a("v_max_f32 v26, v26, v27")
        sregs = [SC+r for r in range(16)] + [SP+12+b for b in range(4)]
        for r in sregs:
            a(f"v_sub_f32 v{r}, v{r}, v26")
        for r in sregs:
            a(f"v_exp_f32 v{r}, v{r}")
        a(f"v_cvt_pk_bf16_f32 v{PP+2}, v{SP+12}, v{SP+13}")
        for i in range(8):
            a(f"v_cvt_pk_bf16_f32 v{SC+i}, v{SC+2*i}, v{SC+2*i+1}")
        a(f"v_cvt_pk_bf16_f32 v{PP+3}, v{SP+14}, v{SP+15}")
        a("s_nop 0")
        a(mfma(LL, ONES, SC, "0"))
        a(mfma(OA, VA, SC, "0"))
        a(mfma(LL, ONES, SC+4))
        a(mfma(OA, VA+4, SC+4))
        a(mfma(LL, ONES, PP))
        a(mfma(OA, VP, PP))
        a("s_nop 7")
        a("s_nop 2")
        a(f"v_rcp_f32 v26, v{LL}")
        a("s_nop 0")
        a("v_mul_f32 v26, v26, v136")
        for r in range(8):
            a(f"v_mul_f32 v{OA+8*e+r}, v{OA+8*e+r}, v26")
        for i in range(4):
            a(f"v_cvt_pk_bf16_f32 v{28+i}, v{OA+8*e+2*i}, v{OA+8*e+2*i+1}")
        a(f"buffer_store_dwordx4 v[28:31], v2, s[12:15], s30 offen offset:{1024*e} sc1")
    a("s_waitcnt vmcnt(0)")
    a("s_mov_b64 exec, 1")
    a("buffer_store_dword v138, v139, s[12:15], s31 offen sc1")
    a("s_mov_b64 exec, -1")
    a("s_branch L_G_ret")

    a("L_tail:")
    D.n = nMain
    a("s_setprio 0")
    WF, OF1, OF2, AE, AL = 128, 192, 64, 32, 48
    a("s_and_b32 s28, s20, 1")
    a("s_bfe_u32 s29, s20, 0x10001")
    a("s_lshl_b32 s30, s22, 1")
    a("s_add_u32 s30, s30, s28")
    a("s_lshr_b32 s31, s21, 2")
    a("s_lshl_b32 s31, s31, 3")
    a("s_and_b32 s32, s21, 3")
    a("s_add_u32 s31, s31, s32")
    a("s_lshl_b32 s32, s30, 8")
    a(f"s_add_u32 s32, s32, {WS_FB}")
    a("s_lshl_b32 s33, s31, 6")
    a(f"s_add_u32 s33, s33, {WS_FO}")
    a("v_lshlrev_b32 v6, 2, v1")
    a("v_and_b32 v7, 15, v1")
    a("v_bfe_u32 v8, v1, 4, 1")
    a("v_lshlrev_b32 v7, 2, v7")
    a("v_lshl_add_u32 v7, v8, 8, v7")
    a("s_lshl_b32 s34, s30, 15")
    a("s_lshl_b32 s35, s29, 14")
    a("s_add_u32 s34, s34, s35")
    a(f"s_add_u32 s34, s34, {WS_WOF}")
    a("s_lshl_b32 s36, s31, 15")
    a("s_add_u32 s36, s36, s35")
    a("s_mov_b32 s60, 0")
    a("L_T_poll:")
    a("buffer_load_dword v24, v6, s[12:15], s32 offen sc1")
    a("buffer_load_dword v25, v7, s[12:15], s33 offen sc1")
    a("s_add_u32 s60, s60, 1")
    a("s_waitcnt vmcnt(0)")
    a("v_and_b32 v24, v24, v25")
    a("v_cmp_ne_u32 vcc, 1, v24")
    a(f"s_cmp_gt_u32 s60, {SPIN_MAX}")
    a("s_cbranch_scc1 L_T_go")
    a("s_nop 1")
    a("s_cbranch_vccz L_T_go")
    a("s_sleep 4")
    a("s_branch L_T_poll")
    a("L_T_go:")
    def load16(dst, sreg, const):
        for k in range(16):
            if k % 4 == 0:
                a(f"s_add_u32 s37, s{sreg}, {const + 1024*k}")
            a(f"buffer_load_dwordx4 v[{dst+4*k}:{dst+4*k+3}], v2, s[12:15], s37 offen offset:{(k%4)*1024} sc1")
    load16(WF, 34, 0)
    load16(OF1, 36, WS_OA)
    load16(OF2, 36, WS_OA + 4*32768)
    a("v_and_b32 v8, 31, v1")
    a("v_lshrrev_b32 v9, 5, v1")
    a("s_lshl_b32 s37, s28, 3")
    a("v_add_u32 v9, s37, v9")
    a("v_and_b32 v10, 15, v8")
    a("v_xor_b32 v9, v9, v10")
    a("v_lshlrev_b32 v9, 4, v9")
    a("v_lshl_add_u32 v9, v8, 8, v9")
    a("s_lshl_b32 s37, s29, 13")
    a(f"s_add_u32 s37, s37, {XCH}")
    for q in range(4):
        a(f"v_xor_b32 v{12+q}, {32*q}, v9")
    for q in range(4):
        a(f"v_add_u32 v{12+q}, s37, v{12+q}")
    a("s_sub_u32 s37, s20, 4")
    a("s_lshl_b32 s37, s37, 3")
    a("v_lshrrev_b32 v8, 3, v1")
    a("v_add_u32 v8, s37, v8")
    a("v_and_b32 v9, 7, v1")
    a("v_lshlrev_b32 v10, 1, v9")
    a("v_and_b32 v11, 15, v8")
    a("v_xor_b32 v10, v10, v11")
    a("v_lshlrev_b32 v10, 4, v10")
    a("v_lshl_add_u32 v16, v8, 8, v10")
    a("v_xor_b32 v17, 16, v16")
    a(f"v_add_u32 v16, {XCH}, v16")
    a(f"v_add_u32 v17, {XCH}, v17")
    a("v_lshlrev_b32 v18, 11, v8")
    a("v_lshl_add_u32 v18, v9, 4, v18")
    a("s_lshr_b32 s37, s31, 1")
    a("s_lshl_b32 s37, s37, 6")
    a("s_and_b32 s35, s31, 1")
    a("s_add_u32 s37, s37, s35")
    a("s_lshl_b32 s37, s37, 10")
    a("s_lshl_b32 s35, s22, 7")
    a("s_add_u32 s35, s35, s37")
    a("s_mov_b32 s16, s50")
    a("s_mov_b32 s17, s51")
    a("s_mov_b32 s18, 0x200000")
    a("s_mov_b32 s19, 0x00020000")
    for k in range(16):
        a(f"s_waitcnt vmcnt({31-k})")
        a(mfma(AE, WF+4*k, OF1+4*k, "0" if k == 0 else None))
    for k in range(16):
        a(f"s_waitcnt vmcnt({15-k})")
        a(mfma(AL, WF+4*k, OF2+4*k, "0" if k == 0 else None))
    load16(WF, 34, 512*1024)
    def poll16(lab, dst, const, slp):
        a("s_mov_b32 s60, 0")
        a(f"{lab}:")
        load16(dst, 36, const)
        a("s_add_u32 s60, s60, 1")
        for g in range(4):
            a(f"s_waitcnt vmcnt({12-4*g})")
            b = dst + 16*g
            if g == 0:
                a(f"v_max3_u32 v24, v{b}, v{b+1}, v{b+2}")
                a(f"v_max3_u32 v25, v{b+3}, v{b+4}, v{b+5}")
                rest = list(range(b+6, b+16))
            else:
                rest = list(range(b, b+16))
            for i in range(0, len(rest), 2):
                t = 24 + ((i//2) & 1)
                a(f"v_max3_u32 v{t}, v{t}, v{rest[i]}, v{rest[i+1]}")
        a("v_max_u32 v24, v24, v25")
        a("v_cmp_eq_u32 vcc, -1, v24")
        a(f"s_cmp_gt_u32 s60, {SPIN_MAX}")
        a(f"s_cbranch_scc1 {lab}_ok")
        a("s_nop 1")
        a(f"s_cbranch_vccz {lab}_ok")
        if slp: a(f"s_sleep {slp}")
        a(f"s_branch {lab}")
        a(f"{lab}_ok:")
    def xwrite(acc):
        for q in range(4):
            a(f"ds_write_b128 v{12+q}, v[{acc+4*q}:{acc+4*q+3}]")
    def finalize(soff_const):
        a("ds_read_b128 v[192:195], v16")
        a("ds_read_b128 v[196:199], v17")
        a("ds_read_b128 v[200:203], v16 offset:8192")
        a("ds_read_b128 v[204:207], v17 offset:8192")
        a(f"s_add_u32 s37, s35, {soff_const}")
        a("s_waitcnt lgkmcnt(0)")
        for r in range(8):
            a(f"v_add_f32 v{192+r}, v{192+r}, v{200+r}")
        for i in range(4):
            a(f"v_cvt_pk_bf16_f32 v{208+i}, v{192+2*i}, v{192+2*i+1}")
        a("buffer_store_dwordx4 v[208:211], v18, s[16:19], s37 offen" + (" sc1" if opt.get("outsc1") else ""))
    D.stamp()
    poll16("L_T_pe", OF1, WS_OB, 8)
    for k in range(16):
        a(mfma(AE, WF+4*k, OF1+4*k))
    a("s_nop 7")
    a("s_nop 3")
    xwrite(AE)
    a("s_waitcnt lgkmcnt(0)")
    D.stamp()
    a("s_barrier")
    finalize(0)
    poll16("L_T_pl", OF2, WS_OB + 4*32768, 0)
    D.stamp()
    for k in range(16):
        a(mfma(AL, WF+4*k, OF2+4*k))
    a("s_barrier")
    a("s_nop 7")
    a("s_nop 3")
    xwrite(AL)
    a("s_waitcnt lgkmcnt(0)")
    a("s_barrier")
    finalize(128*1024)
    if opt.get("dbgtime"):
        a("s_waitcnt vmcnt(0)")
        a("s_memrealtime s[66:67]")
        a("s_cmp_lt_u32 s2, 8")
        a("s_cbranch_scc0 L_dt_skip")
        a("s_cmp_eq_u32 s20, 4")
        a("s_cbranch_scc0 L_dt_skip")
        a("s_mov_b32 s16, s52")
        a("s_mov_b32 s17, s53")
        a("s_mov_b32 s18, 256")
        a("s_mov_b32 s19, 0x00020000")
        a("s_lshl_b32 s28, s2, 3")
        a("s_waitcnt lgkmcnt(0)")
        if opt.get("padto"):
            a("L_pad:")
            a("s_memrealtime s[68:69]")
            a("s_waitcnt lgkmcnt(0)")
            a("s_sub_u32 s70, s68, s64")
            a(f"s_cmp_lt_u32 s70, {opt['padto']}")
            a("s_cbranch_scc1 L_pad")
        a("s_mov_b64 exec, 1")
        a("v_mov_b32 v24, s64")
        a("v_mov_b32 v25, s66")
        a("v_mov_b32 v26, 0")
        a("buffer_store_dwordx2 v[24:25], v26, s[16:19], s28 offen sc1")
        a("L_dt_skip:")
    if D.on:
        a("s_waitcnt vmcnt(0)")
        D.stamp(); D.stamp(True)
        D.flush()
    a("s_endpgm")
    return 256

HEADER = open("gated_mix__sliding_local_dilated__softmax_full_mha__prompt.s.ref").read().split("; Override launch")[0]

def main(out, opt):
    a = Asm()
    n = gen(a, opt)
    a("L_code_end:")
    a("s_endpgm")
    s = HEADER
    s += "; generated by gen/gen2.py (hand-written generator)\n"
    s += "; @launch grid=(256,1,1) block=(512,1,1) lds=163840\n"
    s += '.amdgcn_target "amdgcn-amd-amdhsa--gfx950"\n.text\n'
    s += a.text()
    s += kd("KNAME", n)
    open(out, "w").write(s.replace("KNAME", KN))

if __name__ == "__main__":
    out = sys.argv[1] if len(sys.argv) > 1 else "gated_mix__sliding_local_dilated__softmax_full_mha__prompt.s"
    opt = {}
    for kv in sys.argv[2:]:
        k, v = kv.split("=")
        opt[k] = int(v)
    main(out, opt)
```

```python
import sys, math, struct, json
from asmlib import *

MB = 1 << 20
WS_QB   = 0
WS_KV   = 2*MB
WS_HALO = 6*MB
WS_OA   = 10*MB
WS_OB   = 12*MB
WS_WOF  = 14*MB
WS_G    = 15*MB
WS_F    = 15*MB + 256*1024
WS_SIZE = 16*MB
DIAG_BASE = 32*MB
QSCALE = 0.25 * math.log2(math.e)
TS = 2064
XCH = 64*TS
SCR = XCH + 24576
SPIN_MAX = 40000
KN = "gated_mix__sliding_local_dilated__softmax_full_mha__prompt_kernel"
def f2u(x): return struct.unpack("<I", struct.pack("<f", x))[0]

class Diag:
    def __init__(self, a, opt, s0=64):
        self.a, self.on, self.n, self.s0 = a, opt.get("diag", 0), 0, s0
        self.names = {}
    def stamp(self, name, real=False, slot=None):
        if not self.on: return
        a = self.a
        n = self.n if slot is None else slot
        r = self.s0 + 2*n
        assert r + 1 < 96, name
        self.names.setdefault(n, []).append(name)
        a(f"s_{'memrealtime' if real else 'memtime'} s[{r}:{r+1}]")
        a("s_waitcnt lgkmcnt(0)")
        if slot is None: self.n += 1
    def flush(self):
        if not self.on: return
        a = self.a
        a("s_mov_b32 s96, s54")
        a("s_mov_b32 s97, s55")
        a(f"s_mov_b32 s98, {64*MB}")
        a("s_mov_b32 s99, 0x00020000")
        a("s_lshl_b32 s100, s2, 3")
        a("s_add_u32 s100, s100, s20")
        a("s_lshl_b32 s100, s100, 6")
        a(f"s_add_u32 s100, s100, {DIAG_BASE}")
        a("s_mov_b64 exec, 1")
        a("v_mov_b32 v24, 0")
        for i in range(16):
            a(f"v_mov_b32 v25, s{self.s0+2*i}")
            a(f"buffer_store_dword v25, v24, s[96:99], s100 offen offset:{4*i}")
        a("s_waitcnt vmcnt(0)")

def mfma(d, A, B, C=None):
    c = f"v[{d}:{d+15}]" if C is None else (C if isinstance(C, str) else f"v[{C}:{C+15}]")
    return f"v_mfma_f32_32x32x16_bf16 v[{d}:{d+15}], v[{A}:{A+3}], v[{B}:{B+3}], {c}"

def gen(a, opt):
    U = 8
    FMAX = opt.get("fmax", 4)
    a(".p2align 8")
    a(".globl KNAME")
    a(".type KNAME,@function")
    a("KNAME:")
    a("s_cmp_ge_u32 s2, 256")
    a("s_cbranch_scc1 L_end")
    D = Diag(a, opt)
    if D.on:
        for i in range(32): a(f"s_mov_b32 s{64+i}, 0")
    D.stamp("rt0", True); D.stamp("t0")
    a("s_load_dwordx16 s[36:51], s[0:1], 0")
    a("s_load_dwordx4 s[52:55], s[0:1], 64")
    a("v_lshrrev_b32 v2, 6, v0")
    a("v_and_b32 v1, 63, v0")
    a("v_readfirstlane_b32 s20, v2")
    a("v_lshlrev_b32 v2, 4, v1")
    a("s_and_b32 s26, s2, 7")
    a("s_lshr_b32 s27, s2, 3")
    a("s_and_b32 s23, s26, 1")
    a("s_lshl_b32 s23, s23, 4")
    a("s_and_b32 s28, s27, 15")
    a("s_add_u32 s23, s23, s28")
    a("s_and_b32 s24, s26, 6")
    a("s_lshr_b32 s28, s27, 4")
    a("s_add_u32 s24, s24, s28")
    a("s_lshl_b32 s28, s28, 2")
    a("s_add_u32 s25, s27, s28")
    a("s_and_b32 s25, s25, 7")
    a("s_lshl_b32 s25, s25, 7")
    a("s_lshl_b32 s21, s26, 2")
    a("s_and_b32 s28, s27, 3")
    a("s_add_u32 s21, s21, s28")
    a("s_lshr_b32 s22, s27, 2")
    a("s_lshl_b32 s56, s22, 3")
    a("s_add_u32 s56, s56, s20")
    a("s_lshl_b32 s57, s56, 15")
    a("s_lshl_b32 s28, s21, 10")
    a("s_add_u32 s57, s57, s28")
    a(f"s_add_u32 s57, s57, {WS_OB}")
    a("v_mov_b32 v139, 0")
    a("s_cmp_ge_u32 s20, 4")
    a("s_cbranch_scc0 L_compute")
    Q, KF, V0, V1 = 8, 12, 16, 20
    GB = 137
    def qg_offsets(sq, sg):
        a(f"s_lshl_b32 s{sq}, s21, 16")
        a("s_lshl_b32 s28, s56, 10")
        a(f"s_add_u32 s{sq}, s{sq}, s28")
        a(f"s_lshr_b32 s{sg}, s21, 1")
        a(f"s_lshl_b32 s{sg}, s{sg}, 6")
        a(f"s_add_u32 s{sg}, s{sg}, s56")
        a(f"s_lshl_b32 s{sg}, s{sg}, 7")
        a(f"s_add_u32 s{sg}, s{sg}, {WS_G}")

    a("s_setprio 2")
    a("s_sub_u32 s29, s20, 4")
    a("v_lshrrev_b32 v6, 3, v1")
    a("v_lshrrev_b32 v7, 4, v1")
    a("v_and_b32 v8, 7, v1")
    a("v_xor_b32 v9, v8, v7")
    a("v_xor_b32 v10, 4, v9")
    a("v_lshlrev_b32 v3, 11, v6")
    a("v_lshl_add_u32 v4, v10, 4, v3")
    a("v_lshl_add_u32 v3, v9, 4, v3")
    a("v_and_b32 v7, 1, v7")
    a("v_lshlrev_b32 v7, 2, v7")
    a("v_xor_b32 v7, v8, v7")
    a("v_mul_u32_u24 v5, 3072, v6")
    a("v_lshl_add_u32 v5, v7, 4, v5")
    a("s_lshr_b32 s28, s29, 1")
    a("s_lshl_b32 s30, s23, 6")
    a("s_add_u32 s30, s30, s28")
    a("s_lshl_b32 s30, s30, 10")
    a("s_lshl_b32 s31, s28, 12")
    a("s_and_b32 s28, s29, 1")
    a("s_lshl_b32 s33, s28, 15")
    a("s_add_u32 s30, s30, s33")
    a("s_lshl_b32 s33, s28, 11")
    a("s_add_u32 s31, s31, s33")
    a("s_mul_i32 s32, s29, 49152")
    a("s_lshl_b32 s28, s24, 7")
    a("s_add_u32 s32, s32, s28")
    a("s_lshl_b32 s33, s29, 11")
    a("s_add_u32 s33, s33, 65536")
    a("s_mov_b32 s58, 0")
    a("s_mov_b32 s6, 0x200000")
    a("s_mov_b32 s7, 0x00020000")
    a("s_mov_b32 s10, 0x180000")
    a("s_mov_b32 s11, 0x00020000")
    a(f"s_mov_b32 s14, {WS_SIZE}")
    a("s_mov_b32 s15, 0x00020000")
    a("s_waitcnt lgkmcnt(0)")
    a("s_mov_b32 s4, s36")
    a("s_mov_b32 s5, s37")
    a("s_mov_b32 s8, s44")
    a("s_mov_b32 s9, s45")
    a("s_mov_b32 s12, s54")
    a("s_mov_b32 s13, s55")
    a("s_mov_b32 s16, s50")
    a("s_mov_b32 s17, s51")
    a("s_mov_b32 s18, 0x200000")
    a("s_mov_b32 s19, 0x00020000")
    def wloads():
        for t in range(3):
            for jj in range(2):
                a(f"s_add_u32 m0, s33, {8192*t + 1024*jj}")
                a(f"s_add_u32 s28, s34, {1024*t + 24576*jj}")
                a("buffer_load_dwordx4 v5, s[8:11], s28 offen lds")
    def advance():
        a("s_add_u32 s25, s25, 128")
        a("s_and_b32 s25, s25, 1023")
        a("s_add_u32 s33, s33, 24576")
        a("s_cmp_ge_u32 s33, 163840")
        a("s_cselect_b32 s28, 98304, 0")
        a("s_sub_u32 s33, s33, s28")
        a("s_add_u32 s58, s58, 1")
    def dbg_switch():
        a("v_and_b32 v24, 0x01010101, v14")
        a("v_cmp_ne_u32 vcc, 0x01010101, v24")
        a("s_nop 0")
        a("s_cmp_eq_u64 vcc, 0")
        a("s_cselect_b32 s4, s12, s4")
        a("s_cselect_b32 s5, s13, s5")
        a("s_cselect_b32 s6, s14, s6")
        a("s_cselect_b32 s44, s45, s44")
    def flag_check():
        a("v_add_u32 v24, -1, v14")
        a("v_cmp_le_u32 vcc, 3, v24")
    def snap():
        a("s_mov_b32 exec_lo, s46")
        a("s_mov_b32 exec_hi, s46")
        a("buffer_load_dword v14, v12, s[4:7], s44 offen sc1")
        a("s_mov_b64 exec, -1")
    a("L_ldB:")
    a("s_mul_i32 s34, s25, 1536")
    a("s_add_u32 s35, s30, s25")
    a("s_mov_b32 m0, s31")
    a("s_add_u32 s34, s34, s32")
    a("buffer_load_dwordx4 v3, s[4:7], s35 offen lds")
    a("s_add_u32 m0, s31, 1024")
    a("s_add_u32 s28, s35, 16384")
    a("buffer_load_dwordx4 v4, s[4:7], s28 offen lds")
    wloads()
    a("s_add_u32 s31, s31, 8192")
    advance()
    a("s_cmp_lt_u32 s58, 3")
    a("s_cbranch_scc1 L_ldB")
    a("s_waitcnt vmcnt(16)")
    a("s_barrier")
    a("s_cmp_lt_u32 s58, 8")
    a("s_cbranch_scc1 L_ldB")
    D.stamp("b5")
    a("s_mov_b32 s8, s38")
    a("s_mov_b32 s9, s39")
    qg_offsets(30, 31)
    a("v_and_b32 v28, 31, v1")
    a("v_lshlrev_b32 v28, 2, v28")
    def read_go():
        a("ds_read_b32 v10, v139 offset:2048")
        a("s_waitcnt lgkmcnt(0)")
        a("v_readfirstlane_b32 s28, v10")
        a("s_cmp_lg_u32 s28, 0")
        a("s_cbranch_scc1 L_dog")
    a("L_ldA:")
    a("s_mul_i32 s34, s25, 1536")
    a("s_add_u32 s34, s34, s32")
    wloads()
    advance()
    a("s_waitcnt vmcnt(12)")
    a("s_barrier")
    a("s_cmp_lt_u32 s58, 16")
    a("s_cbranch_scc1 L_ldA")
    D.stamp("b13")
    a("s_lshl_b32 s32, s21, 17")
    a("s_lshl_b32 s28, s29, 10")
    a("s_add_u32 s32, s32, s28")
    a(f"s_add_u32 s32, s32, {WS_KV}")
    a("s_lshr_b32 s33, s29, 1")
    a("s_lshl_b32 s33, s33, 4")
    a("s_add_u32 s33, s33, s28")
    a("s_mov_b32 s61, 2")
    read_go()
    a("s_waitcnt vmcnt(6)")
    a("s_barrier")
    a("s_mov_b32 s61, 1")
    read_go()
    a("s_waitcnt vmcnt(0)")
    a("s_barrier")
    a("s_mov_b32 s61, 0")
    read_go()
    a("s_mov_b32 s61, -1")
    a("s_barrier")
    a("L_dog:")
    D.stamp("dog")
    a(f"buffer_load_dwordx4 v[{Q}:{Q+3}], v2, s[12:15], s30 offen sc1")
    a(f"buffer_load_dword v{GB}, v28, s[12:15], s31 offen sc1")
    def pieces(i0, i1):
        for i in range(i0, i1):
            a(f"s_add_u32 m0, s33, {4128*i}")
            a(f"s_add_u32 s28, s32, {4096*i}")
            a("buffer_load_dwordx4 v2, s[12:15], s28 offen sc1 lds")
    pieces(0, 9)
    a(f"v_mul_u32_u24 v28, {TS}, v1")
    for r in range(4):
        a(f"v_mov_b32 v{24+r}, 0x3f803f80")
    a("s_cmp_eq_u32 s61, 2")
    a("s_cbranch_scc0 L_j14")
    a("s_waitcnt vmcnt(17)")
    a("s_barrier")
    a("L_j14:")
    a("s_cmp_ge_i32 s61, 1")
    a("s_cbranch_scc0 L_j15")
    a("s_waitcnt vmcnt(11)")
    a("s_barrier")
    a("L_j15:")
    a("s_cmp_ge_i32 s61, 0")
    a("s_cbranch_scc0 L_jF1")
    a("s_barrier")
    a("L_jF1:")
    D.stamp("F1")
    pieces(9, 32)
    a("ds_write_b128 v28, v[24:27] offset:2048")
    for r in range(4):
        a(f"v_mov_b32 v{32+r}, -1")
    a("buffer_store_dwordx4 v[32:35], v2, s[12:15], s57 offen sc1")
    a("s_mov_b32 s62, 5")
    D.stamp("lateiss")
    a("s_waitcnt vmcnt(24) lgkmcnt(0)")
    a("s_barrier")
    a("s_branch L_main")
    nL = D.n

    a("L_compute:")
    D.n = 2
    a("s_and_b32 s28, s20, 1")
    a("s_lshr_b32 s29, s20, 1")
    a("s_lshl_b32 s58, s23, 1")
    a("s_add_u32 s58, s58, s28")
    a("s_lshl_b32 s59, s24, 1")
    a("s_add_u32 s59, s59, s29")
    a("v_and_b32 v7, 31, v1")
    a("v_lshrrev_b32 v8, 5, v1")
    a("v_lshl_add_u32 v14, v1, 2, s25")
    a("s_lshl_b32 s60, s59, 6")
    a("s_add_u32 s60, s60, s58")
    a("s_lshl_b32 s60, s60, 2")
    a("s_lshl_b32 s61, s58, 4")
    a("s_add_u32 s61, s61, s59")
    a("v_lshrrev_b32 v9, 1, v1")
    a("v_and_b32 v10, 1, v1")
    a("v_lshlrev_b32 v9, 8, v9")
    a("v_lshl_add_u32 v9, v10, 2, v9")
    a(f"s_add_u32 s30, s60, {WS_F}")
    a("s_mov_b32 s18, 0x80000")
    a("s_mov_b32 s19, 0x00020000")
    a("s_mov_b32 s6, 1024")
    a("s_mov_b32 s7, 0x00020000")
    a(f"s_mov_b32 s14, {WS_SIZE}")
    a("s_mov_b32 s15, 0x00020000")
    a("s_mov_b32 s10, 256")
    a("s_mov_b32 s11, 0x00020000")
    a("s_cmp_lt_u32 s58, 32")
    a("s_waitcnt lgkmcnt(0)")
    a("s_cselect_b32 s16, s40, s46")
    a("s_cselect_b32 s17, s41, s47")
    a("s_mov_b32 s4, s48")
    a("s_mov_b32 s5, s49")
    a("s_mov_b32 s12, s54")
    a("s_mov_b32 s13, s55")
    a("s_mov_b32 s8, s52")
    a("s_mov_b32 s9, s53")
    a("s_cmp_eq_u32 s20, 0")
    a("s_cselect_b32 exec_lo, 15, 0")
    a("s_mov_b32 exec_hi, 0")
    a("buffer_store_dword v139, v9, s[12:15], s30 offen sc1")
    a("s_mov_b64 exec, -1")
    GV = 20
    for i in range(4):
        a(f"v_add_u32 v15, {256*i}, v14")
        a("v_and_b32 v15, 1023, v15")
        a(f"buffer_load_dword v{GV+i}, v15, s[4:7], 0 offen")
    a("s_getpc_b64 s[34:35]")
    a("L_pc:")
    a("s_sub_u32 s34, s34, L_pc-KNAME")
    a("s_subb_u32 s35, s35, 0")
    a("v_lshlrev_b32 v10, 7, v1")
    NPF = opt.get("npf", 2)
    for k in range(NPF):
        a(f"v_add_u32 v11, {8192*k}, v10")
        a("v_min_u32 v11, L_code_end-KNAME-4, v11")
        a(f"global_load_dword v{28+k}, v11, s[34:35]")
    a("v_lshrrev_b32 v9, 2, v1")
    a("v_and_b32 v10, 3, v1")
    a("v_lshlrev_b32 v9, 10, v9")
    a("v_lshl_add_u32 v138, v10, 4, v9")
    a("s_and_b32 s30, s58, 31")
    a("s_lshl_b32 s48, s30, 14")
    a("s_lshl_b32 s32, s59, 6")
    a("s_add_u32 s48, s48, s32")
    a("s_lshl_b32 s49, s20, 10")
    a(f"s_add_u32 s49, s49, {SCR}")
    XA = [3, 4, 5, 6]; WA = 13
    a("v_bfe_u32 v9, v1, 1, 3")
    a("v_xor_b32 v9, v9, v8")
    a("v_lshlrev_b32 v9, 4, v9")
    a("s_lshl_b32 s30, s28, 12")
    a("v_lshlrev_b32 v3, 7, v7")
    a("v_add_u32 v3, s30, v3")
    a("v_xor_b32 v4, 32, v9")
    a("v_xor_b32 v5, 64, v9")
    a("v_xor_b32 v6, 96, v9")
    a("v_add_u32 v4, v3, v4")
    a("v_add_u32 v5, v3, v5")
    a("v_add_u32 v6, v3, v6")
    a("v_add_u32 v3, v3, v9")
    a("v_bfe_u32 v9, v1, 2, 2")
    a(f"v_lshl_add_u32 v{WA}, v8, 3, v9")
    a(f"v_lshlrev_b32 v{WA}, 7, v{WA}")
    a("v_bfe_u32 v10, v1, 3, 1")
    a("v_xor_b32 v10, s29, v10")
    a(f"v_lshl_add_u32 v{WA}, v10, 6, v{WA}")
    a("v_bfe_u32 v10, v1, 4, 1")
    a("v_and_b32 v11, 3, v1")
    a(f"v_lshl_add_u32 v{WA}, v10, 5, v{WA}")
    a(f"v_lshl_add_u32 v{WA}, v11, 3, v{WA}")
    a(f"v_add_u32 v{WA}, 65536, v{WA}")
    a("v_lshl_add_u32 v12, v8, 2, v9")
    a("v_lshlrev_b32 v12, 6, v12")
    a("v_lshl_add_u32 v12, v10, 5, v12")
    a("v_lshl_add_u32 v12, v11, 3, v12")
    a("v_add_u32 v140, s49, v12")
    a("v_lshlrev_b32 v18, 17, v10")
    a("v_lshl_add_u32 v18, v8, 8, v18")
    a("v_and_b32 v9, 15, v1")
    a("v_lshl_add_u32 v18, v9, 4, v18")
    a("v_lshlrev_b32 v19, 2, v7")
    ACCB, ACCA = 32, 144
    for r in range(48):
        a(f"v_mov_b32 v{ACCB+r}, 0")
        a(f"v_mov_b32 v{ACCA+r}, 0")
    a("v_mov_b32 v16, 0")
    a("v_mov_b32 v17, 0")
    a("s_lshr_b32 s47, s58, 5")
    a("s_lshl_b32 s47, s47, 4")
    a("s_add_u32 s47, s47, s59")
    a("s_lshl_b32 s47, s47, 5")
    a("s_and_b32 s31, s58, 31")
    a("s_add_u32 s47, s47, s31")
    a("s_lshl_b32 s47, s47, 10")
    a(f"s_add_u32 s47, s47, {WS_WOF}")
    a("s_mov_b32 s34, 65536")
    a("s_mov_b32 s35, 0")
    a("v_mov_b32 v11, s2")
    a("v_mov_b32 v12, 1")
    a("s_cmp_eq_u32 s20, 0")
    a("s_cselect_b32 exec_lo, 1, 0")
    a("s_mov_b32 exec_hi, 0")
    a(f"s_waitcnt vmcnt({NPF})")
    a("buffer_store_byte v12, v11, s[8:11], 0 offen sc1")
    a("s_mov_b64 exec, -1")
    a("s_cselect_b32 s46, -1, 0")
    a("s_mov_b32 s4, s8")
    a("s_mov_b32 s5, s9")
    a("s_mov_b32 s6, 256")
    a("s_mov_b32 s44, 0")
    a("s_lshr_b32 s45, s21, 1")
    a("s_lshl_b32 s45, s45, 8")
    a(f"s_add_u32 s45, s45, {WS_F}")
    a("v_mov_b32 v14, 0")
    a("v_lshlrev_b32 v12, 2, v1")
    D.stamp("setup")
    a("s_barrier")
    D.stamp("b0")
    FA, FB = 80, 96
    def reads(F, s):
        L = [f"ds_read_b128 v[{F}:{F+3}], v{XA[s]}"]
        for t in range(3):
            L.append(f"ds_read_b64_tr_b16 v[{F+4+4*t}:{F+5+4*t}], v{WA} offset:{t*8192 + (16*s)*128}")
            L.append(f"ds_read_b64_tr_b16 v[{F+6+4*t}:{F+7+4*t}], v{WA} offset:{t*8192 + (16*s+4)*128}")
        return L
    def mf(F, ACC):
        return [mfma(ACC, F+4, F), mfma(ACC+16, F+8, F), mfma(ACC+32, F, F+12)]
    def gate_ops(F, d0):
        RL = [f"v_readlane_b32 s{36+i}, v{GV}, {d0+i}" for i in range(8)]
        DT = []
        for i in range(4):
            DT.append(f"v_dot2_f32_bf16 v16, v{F+i}, s{36+i}, v16")
            DT.append(f"v_dot2_f32_bf16 v17, v{F+i}, s{40+i}, v17")
        return RL, DT
    def kstep(M, R, X, Y=[]):
        out = [M[0]] + R[0:3] + X + [M[1]] + R[3:5] + Y[0:4] + [M[2]] + R[5:] + Y[4:]
        if opt.get("nolds"): out = [l for l in out if not l.startswith("ds_read_b128") and not l.startswith("ds_read_b64")]
        if opt.get("nomfma"): out = [l for l in out if not l.startswith("v_mfma")]
        if opt.get("nogate"): out = [l for l in out if not l.startswith("v_dot2") and not l.startswith("v_readlane")]
        for l in out: a(l)
    def addr_update():
        a("s_add_u32 s34, s34, 24576")
        a("s_cmp_ge_u32 s34, 163840")
        a("s_cselect_b32 s28, 98304, 0")
        a("s_sub_u32 s34, s34, s28")
        a("s_sub_u32 s28, 24576, s28")
        a("s_add_u32 s35, s35, 1")
        a("s_cmp_eq_u32 s35, 8")
        a("s_cselect_b32 s29, -65536, 0")
        a("s_add_u32 s29, s29, 8192")
        a(f"v_add_u32 v{WA}, s28, v{WA}")
        for r in XA:
            a(f"v_add_u32 v{r}, s29, v{r}")
    for l in reads(FA, 0): a(l)
    a("L_cB:")
    for sub in range(2):
        for s in range(4):
            cur, nxt = (FA, FB) if s % 2 == 0 else (FB, FA)
            RL, DT = gate_ops(cur, 32*sub + 8*s)
            if s == 3:
                addr_update()
                a("s_waitcnt lgkmcnt(0)")
                a("s_barrier")
                kstep(mf(cur, ACCB), reads(nxt, 0), RL, DT)
            else:
                a("s_waitcnt lgkmcnt(0)")
                kstep(mf(cur, ACCB), reads(nxt, s+1), RL, DT)
    for i in range(3):
        a(f"v_mov_b32 v{GV+i}, v{GV+i+1}")
    dbg_switch()
    snap()
    a("s_cmp_lt_u32 s35, 8")
    a("s_cbranch_scc1 L_cB")
    D.stamp("Bend")
    a("s_lshl_b32 s30, s59, 17")
    a("s_lshl_b32 s28, s58, 10")
    a("s_add_u32 s30, s30, s28")
    a("s_add_u32 s31, s30, 65536")
    a("s_lshl_b32 s32, s30, 1")
    a(f"s_add_u32 s32, s32, {WS_KV}")
    a("s_add_u32 s33, s32, 131072")
    a("s_lshl_b32 s28, s60, 5")
    a(f"s_add_u32 s28, s28, {WS_G}")
    a(f"s_mov_b32 s29, {f2u(QSCALE)}")
    a("s_mov_b32 exec_lo, 0")
    a("v_mov_b32 v16, v17")
    a("s_mov_b32 exec_lo, -1")
    a("v_mov_b32 v17, v16")
    a("s_nop 1")
    a("v_permlane32_swap_b32 v16, v17")
    a("s_nop 1")
    a("v_add_f32 v16, v16, v17")
    a(f"v_mul_f32 v16, {f2u(-math.log2(math.e))}, v16")
    a("v_exp_f32 v16, v16")
    a("s_nop 0")
    a("v_add_f32 v16, 1.0, v16")
    a("v_rcp_f32 v136, v16")
    K0, V0_ = ACCB+16, ACCB+32
    for r in range(8):
        a(f"v_cvt_pk_bf16_f32 v{K0+r}, v{K0+2*r}, v{K0+2*r+1}")
    a("v_sub_f32 v16, 1.0, v136")
    if not opt.get("nost"): a(f"buffer_store_dwordx4 v[{K0}:{K0+3}], v2, s[12:15], s32 offen sc1")
    if not opt.get("nost"): a(f"buffer_store_dwordx4 v[{K0+4}:{K0+7}], v2, s[12:15], s33 offen sc1")
    for r in range(16):
        a(f"v_mul_f32 v{ACCB+r}, s29, v{ACCB+r}")
    for r in range(8):
        a(f"v_cvt_pk_bf16_f32 v{ACCB+r}, v{ACCB+2*r}, v{ACCB+2*r+1}")
    if not opt.get("nost"): a(f"buffer_store_dwordx4 v[{ACCB}:{ACCB+3}], v2, s[12:15], s30 offen sc1")
    if not opt.get("nost"): a(f"buffer_store_dwordx4 v[{ACCB+4}:{ACCB+7}], v2, s[12:15], s31 offen sc1")
    for r in range(8):
        a(f"v_cvt_pk_bf16_f32 v{V0_+r}, v{V0_+2*r}, v{V0_+2*r+1}")
    if not opt.get("nost"): a(f"buffer_store_dwordx4 v[{V0_}:{V0_+3}], v18, s[12:15], s32 offen offset:1024 sc1")
    if not opt.get("nost"): a(f"buffer_store_dwordx4 v[{V0_+4}:{V0_+7}], v18, s[12:15], s32 offen offset:1536 sc1")
    a("s_mov_b32 exec_hi, 0")
    a("buffer_store_dword v16, v19, s[12:15], s28 offen sc1")
    a("s_mov_b32 exec_hi, -1")
    a(f"s_add_u32 s60, s60, {WS_F}")
    qg_offsets(31, 32)
    a("s_mov_b32 s62, 0")
    a("v_mov_b32 v16, 1")
    D.stamp("Bepi")
    a("L_cA:")
    for s in range(3):
        cur, nxt = (FA, FB) if s % 2 == 0 else (FB, FA)
        a("s_waitcnt lgkmcnt(0)")
        kstep(mf(cur, ACCA), reads(nxt, s+1), [])
    addr_update()
    a("s_cmp_eq_u32 s35, 16")
    a("s_cbranch_scc1 L_preF1")
    a("s_waitcnt lgkmcnt(0)")
    a("s_barrier")
    kstep(mf(FB, ACCA), reads(FA, 0) + ["ds_read_b32 v15, v139 offset:2048"], [])
    a("s_cmp_lt_u32 s62, 2")
    a("s_cbranch_scc0 L_cA")
    a("s_cmp_eq_u32 s35, 9")
    a("s_cselect_b32 exec_lo, s46, 0")
    a("s_mov_b32 exec_hi, 0")
    a("ds_write_b32 v139, v139 offset:2048")
    a("s_mov_b64 exec, -1")
    a("s_cmp_eq_u32 s62, 0")
    a("s_cbranch_scc0 L_side2")
    a("s_getreg_b32 s28, hwreg(HW_REG_IB_STS)")
    a("s_and_b32 s28, s28, 0xc0000f")
    a(f"s_cmp_ge_u32 s35, {8+FMAX}")
    a("s_cselect_b32 s28, 0, s28")
    a("s_cmp_eq_u32 s28, 0")
    a("s_cbranch_scc0 L_cA")
    a("s_waitcnt vmcnt(0)")
    a("s_mov_b64 exec, 1")
    a("buffer_store_dword v16, v139, s[12:15], s60 offen sc1")
    a("s_mov_b64 exec, -1")
    a("s_mov_b32 s62, 1")
    D.stamp("flag1")
    a("L_side2:")
    flag_check()
    a("s_nop 0")
    a("s_cbranch_vccz L_setgo")
    dbg_switch()
    snap()
    a("s_cmp_lt_u32 s35, 13")
    a("s_cbranch_scc1 L_cA")
    a("s_waitcnt lgkmcnt(0)")
    a("v_readfirstlane_b32 s28, v15")
    a("s_cmp_eq_u32 s28, 0")
    a("s_cbranch_scc1 L_cA")
    a("L_setgo:")
    a("ds_write_b32 v139, v16 offset:2048")
    a(f"buffer_load_dwordx4 v[{Q}:{Q+3}], v2, s[12:15], s31 offen sc1")
    a(f"buffer_load_dword v{GB}, v19, s[12:15], s32 offen sc1")
    a("s_mov_b32 s62, 2")
    a("s_branch L_cA")
    a("L_preF1:")
    a("s_cmp_eq_u32 s62, 2")
    a("s_cselect_b32 s28, 0, s46")
    a("s_cmp_eq_u32 s28, 0")
    a("s_cbranch_scc1 L_spin_end")
    a("s_mov_b32 s29, 0")
    a("L_spin:")
    a("s_waitcnt vmcnt(0)")
    flag_check()
    a("s_add_u32 s29, s29, 1")
    a(f"s_cmp_gt_u32 s29, {SPIN_MAX}")
    a("s_cbranch_scc1 L_spin_end")
    a("s_cbranch_vccz L_spin_end")
    dbg_switch()
    a(f"s_sleep {opt.get('psleep', 2)}")
    a("buffer_load_dword v14, v12, s[4:7], s44 offen sc1")
    a("s_branch L_spin")
    a("L_spin_end:")
    a("s_waitcnt lgkmcnt(0)")
    a("s_barrier")
    a("L_cA_last:")
    for l in mf(FB, ACCA): a(l)
    a("s_cmp_eq_u32 s62, 2")
    a("s_cbranch_scc1 L_qdone")
    a(f"buffer_load_dwordx4 v[{Q}:{Q+3}], v2, s[12:15], s31 offen sc1")
    a(f"buffer_load_dword v{GB}, v19, s[12:15], s32 offen sc1")
    a("L_qdone:")
    D.stamp("Aend")
    QA, KA, VA = 112, 120, 128
    a("s_lshl_b32 s30, s61, 12")
    a(f"s_add_u32 s30, s30, {WS_HALO}")
    a(f"s_mov_b32 s29, {f2u(QSCALE)}")
    a("s_mov_b32 m0, s49")
    for r in range(4):
        a(f"v_mov_b32 v{28+r}, -1")
    a("s_nop 3")
    for r in range(8):
        a(f"v_cvt_pk_bf16_f32 v{KA+r}, v{ACCA+16+2*r}, v{ACCA+16+2*r+1}")
    a(f"buffer_store_dwordx4 v[{KA}:{KA+3}], v2, s[12:15], s30 offen sc1")
    a(f"buffer_store_dwordx4 v[{KA+4}:{KA+7}], v2, s[12:15], s30 offen offset:1024 sc1")
    for r in range(8):
        a(f"v_cvt_pk_bf16_f32 v{VA+r}, v{ACCA+32+2*r}, v{ACCA+32+2*r+1}")
    a(f"buffer_store_dwordx4 v[{VA+4}:{VA+7}], v2, s[12:15], s30 offen offset:2048 sc1")
    a("buffer_load_dwordx4 v138, s[16:19], s48 offen lds")
    a("buffer_store_dwordx4 v[28:31], v2, s[12:15], s57 offen sc1")
    for r in range(16):
        a(f"v_mul_f32 v{ACCA+r}, s29, v{ACCA+r}")
    for r in range(8):
        a(f"v_cvt_pk_bf16_f32 v{QA+r}, v{ACCA+2*r}, v{ACCA+2*r+1}")
    a("s_mov_b32 s62, 0")
    D.stamp("Aepi")
    a("s_waitcnt vmcnt(5)")
    a("s_barrier")
    D.n = max(D.n, nL) if D.on else 0

    S = [32, 48]; P = [64, 72]; O = 80; NM = 96
    a("L_main:")
    a("s_setprio 3")
    D.stamp("main")
    a(f"ds_read_b128 v[{KF}:{KF+3}], v2")
    a("v_and_b32 v24, 31, v1")
    a("v_lshrrev_b32 v25, 5, v1")
    a("v_lshlrev_b32 v6, 4, v24")
    a("v_lshl_add_u32 v6, v25, 8, v6")
    a("v_cmp_gt_u32 vcc, 16, v24")
    a("v_add_u32 v3, 1024, v6")
    a("v_add_u32 v4, 1536, v6")
    a("v_mov_b32 v5, 2048")
    a("v_cndmask_b32 v3, v5, v3, vcc")
    a("v_cndmask_b32 v4, v5, v4, vcc")
    a("v_mov_b32 v5, v2")
    a("s_mov_b32 s38, 0")
    a("s_mov_b32 s63, 2")
    a("s_waitcnt lgkmcnt(0)")
    a(mfma(S[0], KF, Q, "0"))
    a("s_nop 7")
    a("s_nop 3")
    a(f"v_max3_f32 v26, v{S[0]}, v{S[0]+1}, v{S[0]+2}")
    a(f"v_max3_f32 v27, v{S[0]+3}, v{S[0]+4}, v{S[0]+5}")
    for i in range(2):
        a(f"v_max3_f32 v26, v26, v{S[0]+6+4*i}, v{S[0]+7+4*i}")
        a(f"v_max3_f32 v27, v27, v{S[0]+8+4*i}, v{S[0]+9+4*i}")
    a(f"v_max3_f32 v26, v26, v{S[0]+14}, v{S[0]+15}")
    a("v_max_f32 v26, v26, v27")
    a("L_setmax:")
    a("v_mov_b32 v27, v26")
    a("s_nop 1")
    a("v_permlane32_swap_b32 v26, v27")
    a("s_nop 1")
    a("v_max_f32 v26, v26, v27")
    for r in range(16):
        a(f"v_sub_f32 v{NM+r}, 0, v26")
    for r in range(8):
        a(f"v_mov_b32 v{P[1]+r}, 0")
        a(f"v_mov_b32 v{V0+r}, 0")
    for r in range(16):
        a(f"v_mov_b32 v{O+r}, 0")
    a(mfma(S[0], KF, Q, NM))
    a(f"ds_read_b128 v[{KF}:{KF+3}], v5 offset:{TS}")
    a("s_mov_b32 s39, 0")
    a("s_nop 7")
    a("s_nop 1")
    a("s_waitcnt lgkmcnt(0)")
    D.stamp("loop")
    a(".p2align 6")
    a("L_loop:")
    for u in range(U):
        cur, nxt = S[u & 1], S[(u+1) & 1]
        Pc, Pp = P[u & 1], P[(u+1) & 1]
        ex = [f"v_exp_f32 v{cur+i}, v{cur+i}" for i in range(16)]
        cv = [f"v_cvt_pk_bf16_f32 v{Pc+i}, v{cur+2*i}, v{cur+2*i+1}" for i in range(8)]
        if u == U//2:
            a("s_cmp_eq_u32 s39, s62")
            a("s_cbranch_scc1 L_mid")
            a("L_mid_ret:")
        a(mfma(nxt, KF, Q, NM))
        a(f"ds_read_b128 v[{KF}:{KF+3}], v5 offset:{(u+2)*TS}")
        for l in ex[0:4] + [cv[0]] + ex[4:6] + [cv[1]]: a(l)
        a("s_waitcnt lgkmcnt(2)")
        a(mfma(O, V0, Pp))
        a(f"ds_read_b128 v[{V0}:{V0+3}], v3 offset:{u*TS}")
        for l in ex[6:8] + [cv[2]] + ex[8:10] + [cv[3]] + ex[10:12] + [cv[4]]: a(l)
        a("s_waitcnt lgkmcnt(2)")
        a(mfma(O, V1, Pp+4))
        a(f"ds_read_b128 v[{V1}:{V1+3}], v4 offset:{u*TS}")
        for l in ex[12:14] + [cv[5]] + ex[14:16] + [cv[6]]: a(l)
        if u == U-1:
            a(f"v_add_u32 v5, {TS*U}, v5")
            a(f"v_add_u32 v3, {TS*U}, v3")
            a(f"v_add_u32 v4, {TS*U}, v4")
            a("s_add_u32 s39, s39, 1")
            a("s_cmp_eq_u32 s39, s63")
        a("s_waitcnt lgkmcnt(2)")
        a(cv[7])
    a("s_cbranch_scc1 L_endh")
    a("L_endh_ret:")
    a(f"s_cmp_lt_u32 s39, {64//U}")
    a("s_cbranch_scc1 L_loop")
    a("s_waitcnt lgkmcnt(0)")
    a(mfma(O, V0, P[1]))
    a(mfma(O, V1, P[1]+4))
    D.stamp("loopend")
    a(f"s_mov_b32 s40, {f2u(2.0**100)}")
    a("s_nop 7")
    a("s_nop 3")
    a(f"v_mul_f32 v26, 0, v{O}")
    for r in range(1, 8):
        a(f"v_fma_f32 v26, v{O+r}, 0, v26")
    a(f"v_add_f32 v26, v26, v{O+8}")
    a(f"v_rcp_f32 v27, v{O+8}")
    a("v_cmp_nlt_f32 vcc, v26, s40")
    a("s_cmp_eq_u32 s38, 0")
    a("s_cbranch_scc0 L_fin")
    a("s_nop 1")
    a("s_cbranch_vccnz L_fallback")
    a("L_fin:")
    a(f"v_mul_f32 v27, v27, v{GB}")
    for r in range(8):
        a(f"v_mul_f32 v{O+r}, v{O+r}, v27")
    for i in range(4):
        a(f"v_cvt_pk_bf16_f32 v{O+i}, v{O+2*i}, v{O+2*i+1}")
    for i in range(4):
        a(f"v_min_u32 v{O+i}, -2, v{O+i}")
    a(f"buffer_store_dwordx4 v[{O}:{O+3}], v2, s[12:15], s57 offen sc1")

    AC = [144, 160]; WF = 176
    OF = [112, 116, 120, 124, 128, 132, 240, 244]
    a("s_cmp_ge_u32 s20, 4")
    a("s_cbranch_scc0 L_t0")
    a("s_barrier")
    a("L_t0:")
    a(f"s_add_u32 s30, s44, {WS_OB}")
    a(f"s_add_u32 s31, s44, {WS_OB + 4096}")
    a("s_mov_b32 s33, 0")
    def oload(k):
        a(f"buffer_load_dwordx4 v[{OF[k]}:{OF[k]+3}], v2, s[12:15], s{30 + k//4} offen offset:{(k%4)*1024} sc1")
    for k in range(8):
        a(f"L_rp{k}:")
        oload(k)
    a("s_cmp_eq_u32 s33, 0")
    a("s_cbranch_scc1 L_ck0")
    a("s_setpc_b64 s[34:35]")
    for k in range(8):
        a(f"L_ck{k}:")
        a(f"s_waitcnt vmcnt({7-k})")
        a(f"v_max3_u32 v24, v{OF[k]}, v{OF[k]+1}, v{OF[k]+2}")
        a(f"v_max_u32 v24, v24, v{OF[k]+3}")
        a("v_cmp_eq_u32 vcc, -1, v24")
        a("s_nop 0")
        a(f"s_cbranch_vccnz L_re{k}")
        a(f"L_go{k}:")
        a(mfma(AC[0], WF+4*k, OF[k]))
        a(mfma(AC[1], WF+32+4*k, OF[k]))
    D.stamp("polled")
    a("s_nop 7")
    a("s_nop 3")
    for p in range(1, 4):
        for part in range(2):
            r = AC[0] + 8*p + 4*part
            a(f"ds_write_b128 v{27+p}, v[{r}:{r+3}] offset:{1024*part}")
    a("s_cmp_ge_u32 s20, 4")
    a("s_waitcnt lgkmcnt(0)")
    a("s_cbranch_scc1 L_t1")
    a("s_barrier")
    a("L_t1:")
    a("s_barrier")
    for i in range(6):
        a(f"ds_read_b128 v[{32+4*i}:{35+4*i}], v31 offset:{1024*i}")
    for p in range(3):
        a(f"s_waitcnt lgkmcnt({4-2*p})")
        for r in range(8):
            a(f"v_add_f32 v{AC[0]+r}, v{AC[0]+r}, v{32+8*p+r}")
    for i in range(4):
        a(f"v_cvt_pk_bf16_f32 v{32+i}, v{AC[0]+2*i}, v{AC[0]+2*i+1}")
    a("s_nop 1")
    a("v_permlane32_swap_b32 v32, v34")
    a("v_permlane32_swap_b32 v33, v35")
    a("s_nop 1")
    a("buffer_store_dwordx4 v[32:35], v6, s[16:19], s45 offen" + (" sc1" if opt.get("outsc1") else ""))
    if D.on:
        a("s_waitcnt vmcnt(0)")
        D.stamp("end"); D.stamp("rtend", True, slot=15)
        D.flush()
    a("L_end:")
    a("s_endpgm")
    for k in range(8):
        a(f"L_re{k}:")
        a("s_add_u32 s33, s33, 1")
        a(f"s_cmp_gt_u32 s33, {SPIN_MAX}")
        a(f"s_cbranch_scc1 L_go{k}")
        if opt.get("tsleep", 1): a(f"s_sleep {opt.get('tsleep', 1)}")
        a("s_getpc_b64 s[34:35]")
        a(f"L_rpc{k}:")
        a(f"s_sub_u32 s34, s34, L_rpc{k}-L_ck{k}")
        a("s_subb_u32 s35, s35, 0")
        a(f"s_branch L_rp{k}")

    a("L_fallback:")
    a("s_mov_b32 s38, 1")
    a("v_mov_b32 v5, v2")
    a(f"v_subrev_u32 v3, {TS*64}, v3")
    a(f"v_subrev_u32 v4, {TS*64}, v4")
    a(f"v_mov_b32 v26, {f2u(-3.0e38)}")
    a("s_mov_b32 s39, 0")
    a("L_fb_loop:")
    a(f"ds_read_b128 v[{KF}:{KF+3}], v5")
    a(f"v_add_u32 v5, {TS}, v5")
    a("s_waitcnt lgkmcnt(0)")
    a(mfma(S[0], KF, Q, "0"))
    a("s_nop 7")
    a("s_nop 3")
    for i in range(8):
        a(f"v_max3_f32 v26, v26, v{S[0]+2*i}, v{S[0]+2*i+1}")
    a("s_add_u32 s39, s39, 1")
    a("s_cmp_lt_u32 s39, 64")
    a("s_cbranch_scc1 L_fb_loop")
    a("v_mov_b32 v5, v2")
    a(f"ds_read_b128 v[{KF}:{KF+3}], v5")
    a("s_waitcnt lgkmcnt(0)")
    a("s_branch L_setmax")

    def setflag(val):
        a("s_mov_b64 exec, 1")
        a(f"v_mov_b32 v28, {val}")
        a("buffer_store_dword v28, v139, s[12:15], s60 offen sc1")
        a("s_mov_b64 exec, -1")
    a("L_mid:")
    a("s_cmp_eq_u32 s39, 5")
    a("s_cbranch_scc1 L_H1")
    a("s_cmp_eq_u32 s39, 0")
    a("s_waitcnt vmcnt(0)")
    a("s_cbranch_scc0 L_HW2")
    a("ds_read_b64_tr_b16 v[24:25], v140")
    a("ds_read_b64_tr_b16 v[26:27], v140 offset:512")
    setflag(2)
    a("s_mov_b32 s62, 2")
    a("s_waitcnt lgkmcnt(0)")
    a("buffer_store_dwordx4 v[24:27], v2, s[12:15], s47 offen sc1")
    a("s_branch L_mid_ret")
    a("L_HW2:")
    setflag(3)
    a("s_mov_b32 s62, 5")
    a("s_branch L_mid_ret")
    a("L_H1:")
    a("s_mov_b32 s62, 99")
    a("s_and_b32 s28, s20, 3")
    a("s_lshr_b32 s29, s21, 2")
    a("s_lshl_b32 s30, s29, 3")
    a("s_and_b32 s31, s21, 3")
    a("s_add_u32 s30, s30, s31")
    a("s_and_b32 s31, s20, 4")
    a("s_add_u32 s30, s30, s31")
    a("s_lshr_b32 s31, s28, 1")
    a("s_lshl_b32 s32, s22, 1")
    a("s_add_u32 s42, s32, s31")
    a("s_xor_b32 s43, s42, 1")
    a("s_lshl_b32 s33, s28, 13")
    a("s_lshl_b32 s42, s42, 15")
    a("s_lshl_b32 s43, s43, 15")
    a("s_add_u32 s42, s42, s33")
    a("s_add_u32 s43, s43, s33")
    a(f"s_add_u32 s42, s42, {WS_WOF}")
    a(f"s_add_u32 s43, s43, {WS_WOF}")
    a("s_lshl_b32 s44, s30, 15")
    a("s_add_u32 s44, s44, s33")
    a("v_cmp_gt_u32 vcc, 32, v1")
    a("v_bfe_u32 v26, v1, 4, 1")
    a("v_add_u32 v26, s32, v26")
    a("v_lshlrev_b32 v26, 6, v26")
    a("v_bfe_u32 v27, v1, 3, 1")
    a("v_lshl_add_u32 v26, v27, 5, v26")
    a("v_and_b32 v27, 7, v1")
    a("v_add_u32 v26, v26, v27")
    a("s_lshl_b32 s33, s28, 3")
    a("v_add_u32 v26, s33, v26")
    a("v_and_b32 v27, 3, v1")
    a("s_lshl_b32 s33, s28, 2")
    a("v_add_u32 v27, s33, v27")
    a("v_lshlrev_b32 v27, 6, v27")
    a("v_add_u32 v27, s30, v27")
    a("v_cndmask_b32 v26, v27, v26, vcc")
    a("v_lshlrev_b32 v26, 2, v26")
    a("v_and_b32 v27, 7, v1")
    a("v_lshlrev_b32 v27, 2, v27")
    a("s_lshl_b32 s46, s29, 5")
    a("s_mov_b32 s8, s52")
    a("s_mov_b32 s9, s53")
    a("s_mov_b32 s10, 256")
    a("s_mov_b32 s11, 0x00020000")
    a(f"s_mov_b32 s41, {WS_F}")
    a("buffer_load_dword v24, v26, s[12:15], s41 offen sc1")
    a("buffer_load_dword v25, v27, s[8:11], s46 offen sc1")
    a("s_and_b32 s33, s28, 1")
    a("s_lshl_b32 s33, s33, 8")
    a("v_xor_b32 v7, s33, v2")
    a("s_cmp_lt_u32 s20, 4")
    a(f"s_cselect_b32 s29, {XCH}, 0")
    for p in range(1, 4):
        a(f"s_xor_b32 s33, s28, {p}")
        a("s_mul_i32 s33, s33, 6144")
        a("s_add_u32 s33, s33, s29")
        a(f"s_add_u32 s33, s33, {(p-1)*2048}")
        a(f"v_add_u32 v{27+p}, s33, v2")
    a("s_mul_i32 s33, s28, 6144")
    a("s_add_u32 s33, s33, s29")
    a("v_add_u32 v31, s33, v2")
    a("v_and_b32 v6, 31, v1")
    a("v_lshlrev_b32 v6, 11, v6")
    a("v_lshrrev_b32 v138, 5, v1")
    a("v_lshl_add_u32 v6, v138, 4, v6")
    a("s_lshr_b32 s33, s30, 1")
    a("s_lshl_b32 s33, s33, 6")
    a("s_and_b32 s45, s30, 1")
    a("s_add_u32 s33, s33, s45")
    a("s_lshl_b32 s33, s33, 10")
    a("s_lshl_b32 s45, s22, 7")
    a("s_add_u32 s45, s45, s33")
    a("s_lshl_b32 s33, s28, 5")
    a("s_add_u32 s45, s45, s33")
    a("s_mov_b32 s16, s50")
    a("s_mov_b32 s17, s51")
    a("s_mov_b32 s18, 0x200000")
    a("s_mov_b32 s19, 0x00020000")
    a("s_branch L_mid_ret")

    a("L_endh:")
    a("s_cmp_eq_u32 s39, 2")
    a("s_cbranch_scc1 L_G")
    a("s_cmp_eq_u32 s39, 6")
    a("s_cbranch_scc1 L_H2")
    a("s_cmp_eq_u32 s39, 7")
    a("s_cbranch_scc1 L_H3")
    a("s_setprio 2")
    a("s_mov_b32 s63, 6")
    a("s_branch L_endh_ret")
    def wload(br):
        for pct in range(2):
            for k in range(8):
                if k % 4 == 0:
                    a(f"s_add_u32 s33, s{42+pct}, {br*512*1024 + 1024*k}")
                r = WF + 32*pct + 4*k
                a(f"buffer_load_dwordx4 v[{r}:{r+3}], v7, s[12:15], s33 offen offset:{(k%4)*1024} sc1")
    a("L_H2:")
    a("s_setprio 1")
    a("s_mov_b32 s63, 7")
    a("s_mov_b32 s33, 0")
    a("L_H2_chk:")
    a("s_waitcnt vmcnt(0)")
    a("v_xor_b32 v248, 3, v24")
    a("v_xor_b32 v249, 0x03030303, v25")
    a("v_or_b32 v248, v248, v249")
    a("v_cmp_ne_u32 vcc, 0, v248")
    a("s_add_u32 s33, s33, 1")
    a(f"s_cmp_gt_u32 s33, {SPIN_MAX}")
    a("s_cbranch_scc1 L_H2_go")
    a("s_cbranch_vccz L_H2_go")
    a("s_sleep 2")
    a("buffer_load_dword v24, v26, s[12:15], s41 offen sc1")
    a("buffer_load_dword v25, v27, s[8:11], s46 offen sc1")
    a("s_branch L_H2_chk")
    a("L_H2_go:")
    a(f"s_add_u32 s30, s44, {WS_OA}")
    a(f"s_add_u32 s31, s44, {WS_OA + 4096}")
    for k in range(8): oload(k)
    wload(0)
    a("s_branch L_endh_ret")
    a("L_H3:")
    a("s_setprio 0")
    a("s_mov_b32 s63, 99")
    a("s_waitcnt vmcnt(0)")
    for k in range(8):
        a(mfma(AC[0], WF+4*k, OF[k], "0" if k == 0 else None))
        a(mfma(AC[1], WF+32+4*k, OF[k], "0" if k == 0 else None))
    wload(1)
    a("s_branch L_endh_ret")

    a("L_G:")
    a("s_mov_b32 s63, 4")
    a("s_waitcnt vmcnt(0)")
    a("s_barrier")
    a("s_cmp_ge_u32 s20, 4")
    a("s_cbranch_scc1 L_endh_ret")
    a("s_cmp_eq_u32 s20, 0")
    a("s_cselect_b32 exec_lo, 1, 0")
    a("s_mov_b32 exec_hi, 0")
    a("v_mov_b32 v24, s2")
    a("v_mov_b32 v25, 3")
    a("buffer_store_byte v25, v24, s[8:11], 0 offen sc1")
    a("s_mov_b64 exec, -1")
    KP, VP, ONES, PP = 140, 148, 152, 156
    MC, MP, SC, SP, OA, LL = 160, 176, 192, 208, 224, 240
    a(f"s_mov_b32 s44, {f2u(1000.0)}")
    a("s_cmp_eq_u32 s23, 0")
    a("s_cbranch_scc1 L_A_nohalo")
    a("s_mov_b32 s44, 0")
    a("s_sub_u32 s30, s60, 8")
    a("s_mov_b32 s31, 0")
    a("L_A_poll:")
    a("buffer_load_dword v24, v139, s[12:15], s30 offen sc1")
    a("s_add_u32 s31, s31, 1")
    a("s_waitcnt vmcnt(0)")
    a("v_readfirstlane_b32 s28, v24")
    a(f"s_cmp_gt_u32 s31, {SPIN_MAX}")
    a("s_cbranch_scc1 L_A_go")
    a("s_cmp_ge_u32 s28, 2")
    a("s_cbranch_scc1 L_A_go")
    a("s_sleep 2")
    a("s_branch L_A_poll")
    a("L_A_go:")
    a("s_sub_u32 s30, s61, 32")
    a("s_lshl_b32 s30, s30, 12")
    a(f"s_add_u32 s30, s30, {WS_HALO}")
    a(f"buffer_load_dwordx4 v[{KP}:{KP+3}], v2, s[12:15], s30 offen sc1")
    a(f"buffer_load_dwordx4 v[{KP+4}:{KP+7}], v2, s[12:15], s30 offen offset:1024 sc1")
    a(f"buffer_load_dwordx4 v[{VP}:{VP+3}], v2, s[12:15], s30 offen offset:2048 sc1")
    a("s_branch L_A_masks")
    a("L_A_nohalo:")
    for r in range(8):
        a(f"v_mov_b32 v{KP+r}, v{KA+r}")
    for r in range(4):
        a(f"v_mov_b32 v{VP+r}, v{VA+4+r}")
    a("L_A_masks:")
    a("v_and_b32 v24, 31, v1")
    a("v_lshrrev_b32 v25, 5, v1")
    a("v_lshlrev_b32 v26, 2, v25")
    a("v_sub_u32 v26, v24, v26")
    a("v_cvt_f32_i32 v26, v26")
    a(f"v_add_f32 v26, {f2u(-3.5)}, v26")
    a("v_add_f32 v28, s44, v26")
    a(f"s_mov_b32 s45, {f2u(-1e30)}")
    for r in range(16):
        cst = 8*(r//4) + (r % 4)
        a(f"v_subrev_f32 v{MC+r}, {f2u(float(cst))}, v26")
    for b in range(4):
        a(f"v_subrev_f32 v{MP+12+b}, {f2u(float(b-8))}, v28")
    regs = [MC+r for r in range(16)] + [MP+12+b for b in range(4)]
    for r in regs:
        a(f"v_add_f32_e64 v{r}, |v{r}|, -4.0 clamp")
    for r in regs:
        a(f"v_mul_f32 v{r}, s45, v{r}")
    for r in range(12):
        a(f"v_mov_b32 v{MP+r}, 0")
    for r in range(4):
        a(f"v_mov_b32 v{ONES+r}, 0x3f803f80")
    a(f"v_mov_b32 v{PP}, 0")
    a(f"v_mov_b32 v{PP+1}, 0")
    a("s_lshl_b32 s30, s58, 15")
    a("s_lshl_b32 s28, s59, 11")
    a("s_add_u32 s30, s30, s28")
    a(f"s_add_u32 s30, s30, {WS_OA}")
    a("s_waitcnt vmcnt(0)")
    for e in range(2):
        a(mfma(SC, KA+4*e, QA+4*e, MC))
        a(mfma(SP, KP+4*e, QA+4*e, MP))
        a("s_nop 7")
        a("s_nop 2")
        a(f"v_max3_f32 v26, v{SC}, v{SC+1}, v{SC+2}")
        a(f"v_max3_f32 v27, v{SC+3}, v{SC+4}, v{SC+5}")
        a(f"v_max3_f32 v26, v26, v{SC+6}, v{SC+7}")
        a(f"v_max3_f32 v27, v27, v{SC+8}, v{SC+9}")
        a(f"v_max3_f32 v26, v26, v{SC+10}, v{SC+11}")
        a(f"v_max3_f32 v27, v27, v{SC+12}, v{SC+13}")
        a(f"v_max3_f32 v26, v26, v{SC+14}, v{SC+15}")
        a(f"v_max3_f32 v27, v27, v{SP+12}, v{SP+13}")
        a(f"v_max3_f32 v26, v26, v{SP+14}, v{SP+15}")
        a("v_max_f32 v26, v26, v27")
        a("v_mov_b32 v27, v26")
        a("s_nop 1")
        a("v_permlane32_swap_b32 v26, v27")
        a("s_nop 1")
        a("v_max_f32 v26, v26, v27")
        sregs = [SC+r for r in range(16)] + [SP+12+b for b in range(4)]
        for r in sregs:
            a(f"v_sub_f32 v{r}, v{r}, v26")
        for r in sregs:
            a(f"v_exp_f32 v{r}, v{r}")
        a(f"v_cvt_pk_bf16_f32 v{PP+2}, v{SP+12}, v{SP+13}")
        for i in range(8):
            a(f"v_cvt_pk_bf16_f32 v{SC+i}, v{SC+2*i}, v{SC+2*i+1}")
        a(f"v_cvt_pk_bf16_f32 v{PP+3}, v{SP+14}, v{SP+15}")
        a("s_nop 0")
        a(mfma(LL, ONES, SC, "0"))
        a(mfma(OA, VA, SC, "0"))
        a(mfma(LL, ONES, SC+4))
        a(mfma(OA, VA+4, SC+4))
        a(mfma(LL, ONES, PP))
        a(mfma(OA, VP, PP))
        a("s_nop 7")
        a("s_nop 2")
        a(f"v_rcp_f32 v26, v{LL}")
        a("s_nop 0")
        a("v_mul_f32 v26, v26, v136")
        for r in range(8):
            a(f"v_mul_f32 v{OA+8*e+r}, v{OA+8*e+r}, v26")
        for i in range(4):
            a(f"v_cvt_pk_bf16_f32 v{28+i}, v{OA+8*e+2*i}, v{OA+8*e+2*i+1}")
        a(f"buffer_store_dwordx4 v[28:31], v2, s[12:15], s30 offen offset:{1024*e} sc1")
    D.stamp("Aattn", slot=14)
    a("s_branch L_endh_ret")
    if D.on:
        json.dump({str(k): v for k, v in D.names.items()}, open("names3.json", "w"))
    return 256

HEADER = open("gated_mix__sliding_local_dilated__softmax_full_mha__prompt.s.ref").read().split("; Override launch")[0]

def main(out, opt):
    a = Asm()
    n = gen(a, opt)
    a("L_code_end:")
    a("s_endpgm")
    s = HEADER
    s += "; generated by gen/gen3.py (hand-written generator)\n"
    s += "; @launch grid=(256,1,1) block=(512,1,1) lds=163840\n"
    s += '.amdgcn_target "amdgcn-amd-amdhsa--gfx950"\n.text\n'
    s += a.text()
    s += kd("KNAME", n)
    open(out, "w").write(s.replace("KNAME", KN))

if __name__ == "__main__":
    out = sys.argv[1] if len(sys.argv) > 1 else "gated_mix__sliding_local_dilated__softmax_full_mha__prompt.s"
    opt = {}
    for kv in sys.argv[2:]:
        k, v = kv.split("=")
        opt[k] = int(v)
    main(out, opt)
```

```python
import sys, math, struct, json
from asmlib import *

MB = 1 << 20
WS_QB   = 0
WS_KV   = 2*MB
WS_HALO = 6*MB
WS_OA   = 10*MB
WS_OB   = 12*MB
WS_WOF  = 14*MB
WS_G    = 15*MB
WS_F    = 15*MB + 256*1024
WS_SIZE = 16*MB
DIAG_BASE = 32*MB
QSCALE = 0.25 * math.log2(math.e)
TS = 2064
XCH = 64*TS
SCR = XCH + 24576
SPIN_MAX = 40000
KN = "gated_mix__sliding_local_dilated__softmax_full_mha__prompt_kernel"
def f2u(x): return struct.unpack("<I", struct.pack("<f", x))[0]

class Diag:
    def __init__(self, a, opt):
        self.a, self.on = a, opt.get("diag", 0)
        self.names = {}
        self.n = 16
    def stamp(self, name, real=False, slot=None, dyn=None):
        if not self.on: return
        a = self.a
        if dyn is None:
            if slot is None:
                if name not in self.names:
                    self.names[name] = self.n; self.n += 1
                slot = self.names[name]
            else:
                self.names[name] = slot
            assert slot < 64
        a(f"s_{'memrealtime' if real else 'memtime'} s[64:65]")
        if dyn is not None: a(dyn)
        a("s_waitcnt lgkmcnt(0)")
        a(f"v_writelane_b32 v0, s64, {'m0' if dyn is not None else slot}")
    def flush(self):
        if not self.on: return
        a = self.a
        a("s_mov_b32 s96, s54")
        a("s_mov_b32 s97, s55")
        a(f"s_mov_b32 s98, {64*MB}")
        a("s_mov_b32 s99, 0x00020000")
        a("s_lshl_b32 s100, s2, 3")
        a("s_add_u32 s100, s100, s20")
        a("s_lshl_b32 s100, s100, 8")
        a(f"s_add_u32 s100, s100, {DIAG_BASE}")
        a("s_mov_b64 exec, -1")
        a("v_lshlrev_b32 v24, 2, v1")
        a("buffer_store_dword v0, v24, s[96:99], s100 offen")
        a("s_waitcnt vmcnt(0)")

def mfma(d, A, B, C=None):
    c = f"v[{d}:{d+15}]" if C is None else (C if isinstance(C, str) else f"v[{C}:{C+15}]")
    return f"v_mfma_f32_32x32x16_bf16 v[{d}:{d+15}], v[{A}:{A+3}], v[{B}:{B+3}], {c}"

def gen(a, opt):
    U = 8
    FMAX = opt.get("fmax", 4)
    a(".p2align 8")
    a(".globl KNAME")
    a(".type KNAME,@function")
    a("KNAME:")
    a("s_cmp_ge_u32 s2, 256")
    a("s_cbranch_scc1 L_end")
    D = Diag(a, opt)
    if D.on:
        a("s_memrealtime s[66:67]")
        a("s_memtime s[68:69]")
        a("s_waitcnt lgkmcnt(0)")
    a("s_load_dwordx16 s[36:51], s[0:1], 0")
    a("s_load_dwordx4 s[52:55], s[0:1], 64")
    a("v_lshrrev_b32 v2, 6, v0")
    a("v_and_b32 v1, 63, v0")
    if D.on:
        a("v_mov_b32 v0, 0")
        a("v_writelane_b32 v0, s66, 62")
        a("v_writelane_b32 v0, s68, 61")
    a("v_readfirstlane_b32 s20, v2")
    a("v_lshlrev_b32 v2, 4, v1")
    a("s_and_b32 s26, s2, 7")
    a("s_lshr_b32 s27, s2, 3")
    a("s_and_b32 s23, s26, 1")
    a("s_lshl_b32 s23, s23, 4")
    a("s_and_b32 s28, s27, 15")
    a("s_add_u32 s23, s23, s28")
    a("s_and_b32 s24, s26, 6")
    a("s_lshr_b32 s28, s27, 4")
    a("s_add_u32 s24, s24, s28")
    a("s_lshl_b32 s28, s28, 2")
    a("s_add_u32 s25, s27, s28")
    a("s_and_b32 s25, s25, 7")
    a("s_lshl_b32 s25, s25, 7")
    a("s_lshl_b32 s21, s26, 2")
    a("s_and_b32 s28, s27, 3")
    a("s_add_u32 s21, s21, s28")
    a("s_lshr_b32 s22, s27, 2")
    a("s_lshl_b32 s56, s22, 3")
    a("s_add_u32 s56, s56, s20")
    a("s_lshl_b32 s57, s56, 15")
    a("s_lshl_b32 s28, s21, 10")
    a("s_add_u32 s57, s57, s28")
    a(f"s_add_u32 s57, s57, {WS_OB}")
    a("v_mov_b32 v139, 0")
    a("s_getpc_b64 s[98:99]")
    a("L_pc:")
    a("s_sub_u32 s98, s98, L_pc-KNAME")
    a("s_subb_u32 s99, s99, 0")
    a("s_and_b32 s100, s2, 0xf8")
    a("s_add_u32 s100, s100, s20")
    a("s_lshl_b32 s100, s100, 7")
    a("s_min_u32 s100, s100, L_code_end-KNAME-4")
    def code_pf():
        if opt.get("npf", 1): a("s_load_dword s101, s[98:99], s100")
    a("s_cmp_ge_u32 s20, 4")
    a("s_cbranch_scc0 L_compute")
    Q, KF, V0, V1 = 8, 12, 16, 20
    GB = 137
    def qg_offsets(sq, sg):
        a(f"s_lshl_b32 s{sq}, s21, 16")
        a("s_lshl_b32 s28, s56, 10")
        a(f"s_add_u32 s{sq}, s{sq}, s28")
        a(f"s_lshr_b32 s{sg}, s21, 1")
        a(f"s_lshl_b32 s{sg}, s{sg}, 6")
        a(f"s_add_u32 s{sg}, s{sg}, s56")
        a(f"s_lshl_b32 s{sg}, s{sg}, 7")
        a(f"s_add_u32 s{sg}, s{sg}, {WS_G}")

    a("s_setprio 2")
    a("s_sub_u32 s29, s20, 4")
    a("v_lshrrev_b32 v6, 3, v1")
    a("v_lshrrev_b32 v7, 4, v1")
    a("v_and_b32 v8, 7, v1")
    a("v_xor_b32 v9, v8, v7")
    a("v_xor_b32 v10, 4, v9")
    a("v_lshlrev_b32 v3, 11, v6")
    a("v_lshl_add_u32 v4, v10, 4, v3")
    a("v_lshl_add_u32 v3, v9, 4, v3")
    a("v_and_b32 v7, 1, v7")
    a("v_lshlrev_b32 v7, 2, v7")
    a("v_xor_b32 v7, v8, v7")
    a("v_mul_u32_u24 v5, 3072, v6")
    a("v_lshl_add_u32 v5, v7, 4, v5")
    a("s_lshr_b32 s28, s29, 1")
    a("s_lshl_b32 s30, s23, 6")
    a("s_add_u32 s30, s30, s28")
    a("s_lshl_b32 s30, s30, 10")
    a("s_lshl_b32 s31, s28, 12")
    a("s_and_b32 s28, s29, 1")
    a("s_lshl_b32 s33, s28, 15")
    a("s_add_u32 s30, s30, s33")
    a("s_lshl_b32 s33, s28, 11")
    a("s_add_u32 s31, s31, s33")
    a("s_mul_i32 s32, s29, 49152")
    a("s_lshl_b32 s28, s24, 7")
    a("s_add_u32 s32, s32, s28")
    a("s_lshl_b32 s33, s29, 11")
    a("s_add_u32 s33, s33, 65536")
    a("s_mov_b32 s58, 0")
    a("s_mov_b32 s6, 0x200000")
    a("s_mov_b32 s7, 0x00020000")
    a("s_mov_b32 s10, 0x180000")
    a("s_mov_b32 s11, 0x00020000")
    a(f"s_mov_b32 s14, {WS_SIZE}")
    a("s_mov_b32 s15, 0x00020000")
    a("s_waitcnt lgkmcnt(0)")
    a("s_mov_b32 s4, s36")
    a("s_mov_b32 s5, s37")
    a("s_mov_b32 s8, s44")
    a("s_mov_b32 s9, s45")
    a("s_mov_b32 s12, s54")
    a("s_mov_b32 s13, s55")
    a("s_mov_b32 s16, s50")
    a("s_mov_b32 s17, s51")
    a("s_mov_b32 s18, 0x200000")
    a("s_mov_b32 s19, 0x00020000")
    D.stamp("karg")
    code_pf()
    def wloads():
        for t in range(3):
            for jj in range(2):
                a(f"s_add_u32 m0, s33, {8192*t + 1024*jj}")
                a(f"s_add_u32 s28, s34, {1024*t + 24576*jj}")
                a("buffer_load_dwordx4 v5, s[8:11], s28 offen lds")
    def advance():
        a("s_add_u32 s25, s25, 128")
        a("s_and_b32 s25, s25, 1023")
        a("s_add_u32 s33, s33, 24576")
        a("s_cmp_ge_u32 s33, 163840")
        a("s_cselect_b32 s28, 98304, 0")
        a("s_sub_u32 s33, s33, s28")
        a("s_add_u32 s58, s58, 1")
    def flag_check():
        a("v_add_u32 v24, -1, v14")
        a("v_cmp_le_u32 vcc, 3, v24")
    def snap():
        a("s_mov_b32 exec_lo, s46")
        a("s_mov_b32 exec_hi, s46")
        a("buffer_load_dword v14, v12, s[12:15], s45 offen sc1")
        a("s_mov_b64 exec, -1")
    a("L_ldB:")
    a("s_mul_i32 s34, s25, 1536")
    a("s_add_u32 s35, s30, s25")
    a("s_mov_b32 m0, s31")
    a("s_add_u32 s34, s34, s32")
    a("buffer_load_dwordx4 v3, s[4:7], s35 offen lds")
    a("s_add_u32 m0, s31, 1024")
    a("s_add_u32 s28, s35, 16384")
    a("buffer_load_dwordx4 v4, s[4:7], s28 offen lds")
    wloads()
    a("s_add_u32 s31, s31, 8192")
    advance()
    a("s_cmp_lt_u32 s58, 3")
    a("s_cbranch_scc1 L_ldB")
    a("s_waitcnt vmcnt(16)")
    if opt.get("diag", 0) > 1: D.stamp("w", dyn="s_add_u32 m0, s58, 37")
    a("s_barrier")
    D.stamp("b", dyn="s_sub_u32 m0, s58, 3")
    a("s_cmp_lt_u32 s58, 8")
    a("s_cbranch_scc1 L_ldB")
    a("s_mov_b32 s8, s38")
    a("s_mov_b32 s9, s39")
    qg_offsets(30, 31)
    a("v_and_b32 v28, 31, v1")
    a("v_lshlrev_b32 v28, 2, v28")
    def read_go():
        a("ds_read_b32 v10, v139 offset:2048")
        a("s_waitcnt lgkmcnt(0)")
        a("v_readfirstlane_b32 s28, v10")
        a("s_cmp_lg_u32 s28, 0")
        a("s_cbranch_scc1 L_dog")
    a("L_ldA:")
    a("s_mul_i32 s34, s25, 1536")
    a("s_add_u32 s34, s34, s32")
    wloads()
    advance()
    a("s_waitcnt vmcnt(12)")
    if opt.get("diag", 0) > 1: D.stamp("w", dyn="s_add_u32 m0, s58, 37")
    a("s_barrier")
    D.stamp("b", dyn="s_sub_u32 m0, s58, 3")
    a("s_cmp_lt_u32 s58, 16")
    a("s_cbranch_scc1 L_ldA")
    a("s_lshl_b32 s32, s21, 17")
    a("s_lshl_b32 s28, s29, 10")
    a("s_add_u32 s32, s32, s28")
    a(f"s_add_u32 s32, s32, {WS_KV}")
    a("s_lshr_b32 s33, s29, 1")
    a("s_lshl_b32 s33, s33, 4")
    a("s_add_u32 s33, s33, s28")
    a("s_mov_b32 s61, 2")
    read_go()
    a("s_waitcnt vmcnt(6)")
    a("s_barrier")
    a("s_mov_b32 s61, 1")
    read_go()
    a("s_waitcnt vmcnt(0)")
    a("s_barrier")
    a("s_mov_b32 s61, 0")
    read_go()
    a("s_mov_b32 s61, -1")
    a("s_barrier")
    a("L_dog:")
    D.stamp("dog")
    a(f"buffer_load_dwordx4 v[{Q}:{Q+3}], v2, s[12:15], s30 offen sc1")
    a(f"buffer_load_dword v{GB}, v28, s[12:15], s31 offen sc1")
    def pieces(i0, i1):
        for i in range(i0, i1):
            a(f"s_add_u32 m0, s33, {4128*i}")
            a(f"s_add_u32 s28, s32, {4096*i}")
            a("buffer_load_dwordx4 v2, s[12:15], s28 offen sc1 lds")
    pieces(0, 9)
    a(f"v_mul_u32_u24 v28, {TS}, v1")
    for r in range(4):
        a(f"v_mov_b32 v{24+r}, 0x3f803f80")
    a("s_cmp_eq_u32 s61, 2")
    a("s_cbranch_scc0 L_j14")
    a("s_waitcnt vmcnt(17)")
    a("s_barrier")
    a("L_j14:")
    a("s_cmp_ge_i32 s61, 1")
    a("s_cbranch_scc0 L_j15")
    a("s_waitcnt vmcnt(11)")
    a("s_barrier")
    a("L_j15:")
    a("s_cmp_ge_i32 s61, 0")
    a("s_cbranch_scc0 L_jF1")
    a("s_barrier")
    a("L_jF1:")
    D.stamp("F1")
    a("ds_write_b128 v28, v[24:27] offset:2048")
    for r in range(4):
        a(f"v_mov_b32 v{32+r}, -1")
    a("s_mov_b32 s62, 5")
    a("s_mov_b32 s63, 2")
    a("s_mov_b32 s37, 1")
    a("s_waitcnt vmcnt(0) lgkmcnt(0)")
    a("s_barrier")
    D.stamp("F2")
    a("buffer_store_dwordx4 v[32:35], v2, s[12:15], s57 offen sc1")
    a("s_branch L_main")

    a("L_compute:")
    a("s_and_b32 s28, s20, 1")
    a("s_lshr_b32 s29, s20, 1")
    a("s_lshl_b32 s58, s23, 1")
    a("s_add_u32 s58, s58, s28")
    a("s_lshl_b32 s59, s24, 1")
    a("s_add_u32 s59, s59, s29")
    a("v_and_b32 v7, 31, v1")
    a("v_lshrrev_b32 v8, 5, v1")
    a("v_and_b32 v14, 7, v1")
    a("v_lshl_add_u32 v14, v14, 5, s25")
    a("s_lshl_b32 s60, s59, 6")
    a("s_add_u32 s60, s60, s58")
    a("s_lshl_b32 s60, s60, 2")
    a("s_lshl_b32 s61, s58, 4")
    a("s_add_u32 s61, s61, s59")
    a("s_lshl_b32 s30, s2, 12")
    a(f"s_add_u32 s30, s30, {WS_F}")
    for r in range(4): a(f"v_mov_b32 v{24+r}, 0")
    a("s_mov_b32 s18, 0x80000")
    a("s_mov_b32 s19, 0x00020000")
    a("s_mov_b32 s6, 1024")
    a("s_mov_b32 s7, 0x00020000")
    a(f"s_mov_b32 s14, {WS_SIZE}")
    a("s_mov_b32 s15, 0x00020000")
    a("s_mov_b32 s10, 256")
    a("s_mov_b32 s11, 0x00020000")
    a("s_cmp_lt_u32 s58, 32")
    a("s_waitcnt lgkmcnt(0)")
    a("s_cselect_b32 s16, s40, s46")
    a("s_cselect_b32 s17, s41, s47")
    a("s_mov_b32 s4, s48")
    a("s_mov_b32 s5, s49")
    a("s_mov_b32 s12, s54")
    a("s_mov_b32 s13, s55")
    a("s_mov_b32 s8, s52")
    a("s_mov_b32 s9, s53")
    code_pf()
    GV = 224
    for i in range(4):
        a(f"v_add_u32 v15, {256*i}, v14")
        a("v_and_b32 v15, 1023, v15")
        a("v_lshl_add_u32 v15, v8, 4, v15")
        a(f"buffer_load_dwordx4 v[{GV+4*i+4}:{GV+4*i+7}], v15, s[4:7], 0 offen")
    a("s_lshl_b32 s31, s20, 8")
    a("s_add_u32 s31, s31, s2")
    a("s_sub_u32 s31, s31, 256")
    a("s_cmp_lt_u32 s31, 8")
    a("s_cselect_b32 s63, 1, 0")
    a("s_cbranch_scc0 L_noinit")
    for q in range(4):
        a(f"buffer_store_dwordx4 v[24:27], v2, s[12:15], s30 offen offset:{1024*q} sc1")
    a("v_mov_b32 v12, 1")
    a("s_lshl_b32 s31, s2, 2")
    a("s_mov_b64 exec, 1")
    a("s_waitcnt vmcnt(0)")
    a("buffer_store_dword v12, v139, s[8:11], s31 offen sc1")
    a("s_mov_b64 exec, -1")
    a("L_noinit:")
    a("v_lshrrev_b32 v9, 2, v1")
    a("v_and_b32 v10, 3, v1")
    a("v_lshlrev_b32 v9, 10, v9")
    a("v_lshl_add_u32 v138, v10, 4, v9")
    a("s_and_b32 s30, s58, 31")
    a("s_lshl_b32 s48, s30, 14")
    a("s_lshl_b32 s32, s59, 6")
    a("s_add_u32 s48, s48, s32")
    a("s_lshl_b32 s49, s20, 10")
    a(f"s_add_u32 s49, s49, {SCR}")
    XA = [3, 4, 5, 6]; WA = 13
    a("v_bfe_u32 v9, v1, 1, 3")
    a("v_xor_b32 v9, v9, v8")
    a("v_lshlrev_b32 v9, 4, v9")
    a("s_lshl_b32 s30, s28, 12")
    a("v_lshlrev_b32 v3, 7, v7")
    a("v_add_u32 v3, s30, v3")
    a("v_xor_b32 v4, 32, v9")
    a("v_xor_b32 v5, 64, v9")
    a("v_xor_b32 v6, 96, v9")
    a("v_add_u32 v4, v3, v4")
    a("v_add_u32 v5, v3, v5")
    a("v_add_u32 v6, v3, v6")
    a("v_add_u32 v3, v3, v9")
    a("v_bfe_u32 v9, v1, 2, 2")
    a(f"v_lshl_add_u32 v{WA}, v8, 3, v9")
    a(f"v_lshlrev_b32 v{WA}, 7, v{WA}")
    a("v_bfe_u32 v10, v1, 3, 1")
    a("v_xor_b32 v10, s29, v10")
    a(f"v_lshl_add_u32 v{WA}, v10, 6, v{WA}")
    a("v_bfe_u32 v10, v1, 4, 1")
    a("v_and_b32 v11, 3, v1")
    a(f"v_lshl_add_u32 v{WA}, v10, 5, v{WA}")
    a(f"v_lshl_add_u32 v{WA}, v11, 3, v{WA}")
    a(f"v_add_u32 v{WA}, 65536, v{WA}")
    a("v_lshl_add_u32 v12, v8, 2, v9")
    a("v_lshlrev_b32 v12, 6, v12")
    a("v_lshl_add_u32 v12, v10, 5, v12")
    a("v_lshl_add_u32 v12, v11, 3, v12")
    a("v_add_u32 v140, s49, v12")
    a("v_lshlrev_b32 v18, 17, v10")
    a("v_lshl_add_u32 v18, v8, 8, v18")
    a("v_and_b32 v9, 15, v1")
    a("v_lshl_add_u32 v18, v9, 4, v18")
    a("v_lshlrev_b32 v19, 2, v7")
    ACCB, ACCA = 32, 144
    for r in range(48):
        a(f"v_mov_b32 v{ACCB+r}, 0")
        a(f"v_mov_b32 v{ACCA+r}, 0")
    a("v_mov_b32 v16, 0")
    a("v_mov_b32 v17, 0")
    a("s_lshr_b32 s47, s58, 5")
    a("s_lshl_b32 s47, s47, 4")
    a("s_add_u32 s47, s47, s59")
    a("s_lshl_b32 s47, s47, 5")
    a("s_and_b32 s31, s58, 31")
    a("s_add_u32 s47, s47, s31")
    a("s_lshl_b32 s47, s47, 10")
    a(f"s_add_u32 s47, s47, {WS_WOF}")
    a("s_mov_b32 s34, 65536")
    a("s_mov_b32 s35, 0")
    a("s_cmp_eq_u32 s20, 0")
    a("s_cselect_b32 s46, -1, 0")
    a("s_and_b32 s45, s26, 6")
    a("s_and_b32 s31, s26, 1")
    a("s_lshl_b32 s31, s31, 7")
    a("s_add_u32 s45, s45, s31")
    a("s_lshl_b32 s45, s45, 7")
    a("s_and_b32 s31, s21, 2")
    a("s_lshl_b32 s31, s31, 2")
    a("s_add_u32 s45, s45, s31")
    a(f"s_add_u32 s45, s45, {WS_F}")
    a("v_bfe_u32 v12, v1, 1, 4")
    a("v_lshlrev_b32 v12, 10, v12")
    a("v_lshl_add_u32 v12, v8, 7, v12")
    a("v_and_b32 v11, 1, v1")
    a("v_lshl_add_u32 v12, v11, 2, v12")
    a("v_and_b32 v11, 7, v1")
    a("v_lshlrev_b32 v11, 2, v11")
    a("v_mov_b32 v14, 0")
    D.stamp("setup")
    a("s_barrier")
    D.stamp("b0", slot=0)
    F = [80, 96, 192, 208]
    GD = [240, 112]
    def reads(s):
        f = F[s]
        L = [f"ds_read_b128 v[{f}:{f+3}], v{XA[s]}"]
        for t in range(3):
            L.append(f"ds_read_b64_tr_b16 v[{f+4+4*t}:{f+5+4*t}], v{WA} offset:{t*8192 + (16*s)*128}")
            L.append(f"ds_read_b64_tr_b16 v[{f+6+4*t}:{f+7+4*t}], v{WA} offset:{t*8192 + (16*s+4)*128}")
        return L
    def mf(s, ACC):
        f = F[s]
        return [mfma(ACC+16, f+8, f), mfma(ACC+32, f, f+12), mfma(ACC, f+4, f)]
    def emit(out):
        if opt.get("nolds"): out = [l for l in out if not l.startswith("ds_read_b128") and not l.startswith("ds_read_b64")]
        if opt.get("nomfma"): out = [l for l in out if not l.startswith("v_mfma")]
        if opt.get("nost"): out = [l for l in out if not l.startswith("buffer_store_dwordx4")]
        for l in out: a(l)
    def kstep(M, R, X=[[], [], []]):
        emit([M[0]] + R[0:4] + X[0] + [M[1]] + R[4:] + X[1] + [M[2]] + X[2] + M[3:])
    def addr_update():
        return ["s_add_u32 s34, s34, 24576",
                "s_cmp_ge_u32 s34, 163840",
                "s_cselect_b32 s28, 98304, 0",
                "s_sub_u32 s34, s34, s28",
                "s_sub_u32 s28, 24576, s28",
                "s_add_u32 s35, s35, 1",
                "s_cmp_eq_u32 s35, 8",
                "s_cselect_b32 s29, -65536, 0",
                "s_add_u32 s29, s29, 8192",
                f"v_add_u32 v{WA}, s28, v{WA}"] + [f"v_add_u32 v{r}, s29, v{r}" for r in XA]
    emit(reads(0) + reads(1))
    for r in range(4):
        a(f"v_mov_b32 v{GD[1]+r}, 0")
    a("s_cmp_eq_u32 s63, 1")
    a("s_cbranch_scc1 L_cB")
    a("s_waitcnt vmcnt(0)")
    D.stamp("gate")
    a("L_cB:")
    for sub in range(2):
        for s in range(4):
            m = 4*sub + s
            pm = (m - 1) % 8
            G = [mfma(GD[m & 1], GV, F[s], "0")]
            gadd = [f"v_add_f32 v{16 + (pm >> 2)}, v{16 + (pm >> 2)}, v{GD[pm & 1] + (pm & 3)}"]
            if s == 2:
                a("s_waitcnt lgkmcnt(0)")
                a("s_barrier")
            elif s < 2:
                a("s_waitcnt lgkmcnt(7)")
            X = [[], addr_update() if s == 1 else [], gadd]
            if m == 0:
                sh = [f"v_mov_b32 v{GV+i}, v{GV+i+4}" for i in range(16)]
                X = [sh[0:5], sh[5:11], sh[11:16] + gadd]
            kstep(mf(s, ACCB) + G, reads((s + 2) % 4), X)
    a(f"s_cmp_eq_u32 s35, {opt.get('ichk', 4)}")
    a("s_cbranch_scc1 L_dbgld")
    a("L_dbgld_ret:")
    a("s_cmp_lt_u32 s35, 8")
    a("s_cbranch_scc1 L_cB")
    D.stamp("Bend")
    K0, V0_ = ACCB+16, ACCB+32
    E = ["s_lshl_b32 s30, s59, 17",
         "s_lshl_b32 s36, s58, 10",
         "s_add_u32 s30, s30, s36",
         "s_add_u32 s31, s30, 65536",
         "s_lshl_b32 s32, s30, 1",
         f"s_add_u32 s32, s32, {WS_KV}",
         "s_add_u32 s33, s32, 131072",
         "s_lshl_b32 s36, s60, 5",
         f"s_add_u32 s36, s36, {WS_G}",
         f"s_mov_b32 s37, {f2u(QSCALE)}"]
    for l in E: a(l)
    E = [f"v_cvt_pk_bf16_f32 v{K0+r}, v{K0+2*r}, v{K0+2*r+1}" for r in range(4)]
    E += [f"buffer_store_dwordx4 v[{K0}:{K0+3}], v2, s[12:15], s32 offen sc1"]
    E += [f"v_cvt_pk_bf16_f32 v{K0+r}, v{K0+2*r}, v{K0+2*r+1}" for r in range(4, 8)]
    E += [f"buffer_store_dwordx4 v[{K0+4}:{K0+7}], v2, s[12:15], s33 offen sc1"]
    E += [f"v_cvt_pk_bf16_f32 v{V0_+r}, v{V0_+2*r}, v{V0_+2*r+1}" for r in range(4)]
    E += [f"buffer_store_dwordx4 v[{V0_}:{V0_+3}], v18, s[12:15], s32 offen offset:1024 sc1"]
    E += [f"v_cvt_pk_bf16_f32 v{V0_+r}, v{V0_+2*r}, v{V0_+2*r+1}" for r in range(4, 8)]
    E += [f"buffer_store_dwordx4 v[{V0_+4}:{V0_+7}], v18, s[12:15], s32 offen offset:1536 sc1"]
    for hf in range(2):
        E += [f"v_mul_f32 v{ACCB+r}, s37, v{ACCB+r}" for r in range(8*hf, 8*hf+8)]
        E += [f"v_cvt_pk_bf16_f32 v{ACCB+r}, v{ACCB+2*r}, v{ACCB+2*r+1}" for r in range(4*hf, 4*hf+4)]
        E += [f"buffer_store_dwordx4 v[{ACCB+4*hf}:{ACCB+4*hf+3}], v2, s[12:15], s{30+hf} offen sc1"]
    E += [f"v_add_f32 v17, v17, v{GD[1]+3}",
          "s_mov_b32 exec_lo, 0",
          "v_mov_b32 v16, v17",
          "s_mov_b32 exec_lo, -1",
          "v_mov_b32 v17, v16",
          "s_nop 1",
          "v_permlane32_swap_b32 v16, v17",
          "s_nop 1",
          "v_add_f32 v16, v16, v17",
          f"v_mul_f32 v16, {f2u(-math.log2(math.e))}, v16",
          "v_exp_f32 v16, v16",
          "s_nop 0",
          "v_add_f32 v16, 1.0, v16",
          "v_rcp_f32 v136, v16",
          "s_nop 0",
          "v_sub_f32 v16, 1.0, v136",
          "s_mov_b32 exec_hi, 0",
          "buffer_store_dword v16, v19, s[12:15], s36 offen sc1",
          "s_mov_b32 exec_hi, -1"]
    ng = len(E) - 19
    per = opt.get("eper", 8)
    gaps = [E[per*i:per*i+per] for i in range((ng + per - 1)//per)]
    gaps[-1] = E[per*(len(gaps)-1):ng]
    gaps.append(E[ng:])
    gaps += [[]]*(12 - len(gaps))
    assert len(gaps) == 12
    goread = ["ds_read_b32 v15, v139 offset:2048"]
    for s in range(4):
        X = gaps[3*s:3*s+3]
        if s == 1: X = [X[0], addr_update() + X[1], X[2]]
        if s == 2:
            a("s_waitcnt lgkmcnt(0)")
            a("s_barrier")
            a("s_mov_b32 exec_lo, s46")
            a("s_mov_b32 exec_hi, 0")
            a("ds_write_b32 v139, v139 offset:2048")
            a("s_mov_b64 exec, -1")
        elif s < 2:
            a("s_waitcnt lgkmcnt(7)")
        kstep(mf(s, ACCA), reads((s + 2) % 4), X)
    a("s_lshl_b32 s60, s2, 7")
    a("s_lshl_b32 s28, s20, 2")
    a("s_add_u32 s60, s60, s28")
    a(f"s_add_u32 s60, s60, {WS_F}")
    qg_offsets(31, 32)
    a("s_mov_b32 s62, 0")
    a("v_mov_b32 v16, 1")
    a(f"s_waitcnt vmcnt({1 if opt.get('nost') else 7})")
    a("L_ichk:")
    a("v_cmp_ne_u32 vcc, 1, v14")
    a("s_add_u32 s62, s62, 1")
    a(f"s_cmp_gt_u32 s62, {SPIN_MAX}")
    a("s_cbranch_scc1 L_iok")
    a("s_cbranch_vccz L_iok")
    a("s_sleep 4")
    a("buffer_load_dword v14, v11, s[8:11], 0 offen sc1")
    a("s_waitcnt vmcnt(0)")
    a("s_branch L_ichk")
    a("L_iok:")
    a("s_mov_b32 s62, 0")
    a("v_mov_b32 v14, 0")
    D.stamp("Bepi")
    def side_site(k):
        a("s_cmp_lt_u32 s62, 2")
        a(f"s_cbranch_scc1 L_side{k}")
        a(f"L_sret{k}:")
    a("L_cA:")
    for s in range(2):
        a("s_waitcnt lgkmcnt(7)")
        kstep(mf(s, ACCA), reads(s + 2), [[], addr_update() if s == 1 else [], []])
        if s == 0: side_site(0)
    a("s_cmp_eq_u32 s35, 16")
    a("s_cbranch_scc1 L_preF1")
    a("s_waitcnt lgkmcnt(0)")
    a("s_barrier")
    kstep(mf(2, ACCA), goread + reads(0))
    side_site(1)
    kstep(mf(3, ACCA), reads(1))
    a("s_cmp_lt_u32 s62, 2")
    a("s_cbranch_scc0 L_cA")
    def side(k, ret):
        a(f"L_side{k}:")
        a("s_getreg_b32 s28, hwreg(HW_REG_IB_STS)")
        a("s_and_b32 s28, s28, 0xc0000f")
        a("s_cmp_eq_u32 s62, 0")
        a(f"s_cbranch_scc0 L_sp{k}")
        a(f"s_cmp_ge_u32 s35, {8+FMAX}")
        a("s_cselect_b32 s28, 0, s28")
        a("s_cmp_eq_u32 s28, 0")
        a(f"s_cbranch_scc0 {ret}")
        a("s_waitcnt vmcnt(0)")
        a("s_mov_b64 exec, 1")
        a("buffer_store_dword v16, v139, s[12:15], s60 offen sc1")
        a("s_mov_b64 exec, -1")
        a("s_mov_b32 s62, 1")
        D.stamp("flag1")
        a(f"s_branch {ret}")
        a(f"L_sp{k}:")
        a("s_cmp_eq_u32 s46, 0")
        a(f"s_cbranch_scc1 {f'L_so{k}' if k == 2 else ret}")
        flag_check()
        a(f"s_cmp_lt_u32 s35, {opt.get('ps', 11)}")
        a("s_cselect_b32 s28, 1, s28")
        a(f"s_cbranch_vccz L_sg{k}")
        a("s_cmp_eq_u32 s28, 0")
        a(f"s_cbranch_scc0 {ret}")
        a("buffer_load_dword v14, v12, s[12:15], s45 offen sc1")
        a(f"s_branch {ret}")
        if k == 2:
            a(f"L_so{k}:")
            a("s_waitcnt lgkmcnt(14)")
            a("v_readfirstlane_b32 s28, v15")
            a("s_cmp_eq_u32 s28, 0")
            a(f"s_cbranch_scc1 {ret}")
        a(f"L_sg{k}:")
        a("ds_write_b32 v139, v16 offset:2048")
        a(f"buffer_load_dwordx4 v[{Q}:{Q+3}], v2, s[12:15], s31 offen sc1")
        a(f"buffer_load_dword v{GB}, v19, s[12:15], s32 offen sc1")
        a("s_mov_b32 s62, 2")
        D.stamp("go")
        a(f"s_branch {ret}")
    side(2, "L_cA")
    side(0, "L_sret0")
    side(1, "L_sret1")
    a("L_dbgld:")
    a("buffer_load_dword v14, v11, s[8:11], 0 offen sc1")
    a("s_branch L_dbgld_ret")
    a("L_preF1:")
    a("s_cmp_eq_u32 s62, 2")
    a("s_cselect_b32 s28, 0, s46")
    a("s_cmp_eq_u32 s28, 0")
    a("s_cbranch_scc1 L_spin_end")
    a("s_mov_b32 s29, 0")
    a("L_spin:")
    a("s_waitcnt vmcnt(0)")
    flag_check()
    a("s_add_u32 s29, s29, 1")
    a(f"s_cmp_gt_u32 s29, {SPIN_MAX}")
    a("s_cbranch_scc1 L_spin_end")
    a("s_cbranch_vccz L_spin_end")
    a(f"s_sleep {opt.get('psleep', 2)}")
    a("buffer_load_dword v14, v12, s[12:15], s45 offen sc1")
    a("s_branch L_spin")
    a("L_spin_end:")
    a("s_waitcnt lgkmcnt(0)")
    a("s_barrier")
    emit(mf(2, ACCA))
    a("s_cmp_eq_u32 s62, 2")
    a("s_cbranch_scc1 L_qdone")
    a(f"buffer_load_dwordx4 v[{Q}:{Q+3}], v2, s[12:15], s31 offen sc1")
    a(f"buffer_load_dword v{GB}, v19, s[12:15], s32 offen sc1")
    a("L_qdone:")
    M = mf(3, ACCA)
    a(M[0])
    a("s_mov_b32 m0, s49")
    a("s_lshl_b32 s30, s61, 12")
    a(f"s_add_u32 s30, s30, {WS_HALO}")
    a("buffer_load_dwordx4 v138, s[16:19], s48 offen lds")
    a(M[1])
    for r in range(4):
        a(f"v_mov_b32 v{28+r}, -1")
    a(f"s_mov_b32 s29, {f2u(QSCALE)}")
    a("buffer_store_dwordx4 v[28:31], v2, s[12:15], s57 offen sc1")
    a(M[2])
    D.stamp("Aend")
    QA, KA, VA = 112, 120, 128
    a("s_nop 3")
    for r in range(8):
        a(f"v_cvt_pk_bf16_f32 v{KA+r}, v{ACCA+16+2*r}, v{ACCA+16+2*r+1}")
    a(f"buffer_store_dwordx4 v[{KA}:{KA+3}], v2, s[12:15], s30 offen sc1")
    a(f"buffer_store_dwordx4 v[{KA+4}:{KA+7}], v2, s[12:15], s30 offen offset:1024 sc1")
    for r in range(4, 8):
        a(f"v_cvt_pk_bf16_f32 v{VA+r}, v{ACCA+32+2*r}, v{ACCA+32+2*r+1}")
    a(f"buffer_store_dwordx4 v[{VA+4}:{VA+7}], v2, s[12:15], s30 offen offset:2048 sc1")
    D.stamp("Aepi")
    a("s_barrier")
    for r in range(4):
        a(f"v_cvt_pk_bf16_f32 v{VA+r}, v{ACCA+32+2*r}, v{ACCA+32+2*r+1}")
    for r in range(16):
        a(f"v_mul_f32 v{ACCA+r}, s29, v{ACCA+r}")
    for r in range(8):
        a(f"v_cvt_pk_bf16_f32 v{QA+r}, v{ACCA+2*r}, v{ACCA+2*r+1}")
    a("s_mov_b32 s62, 0")
    a("s_mov_b32 s63, 2")
    a("s_mov_b32 s37, 0")
    a("s_waitcnt vmcnt(5)")

    S = [32, 48]; P = [64, 72]; O = 80; NM = 96
    a("L_main:")
    a("s_setprio 3")
    D.stamp("main")
    a(f"ds_read_b128 v[{KF}:{KF+3}], v2")
    a("v_and_b32 v24, 31, v1")
    a("v_lshrrev_b32 v25, 5, v1")
    a("v_lshlrev_b32 v6, 4, v24")
    a("v_lshl_add_u32 v6, v25, 8, v6")
    a("v_cmp_gt_u32 vcc, 16, v24")
    a("v_add_u32 v3, 1024, v6")
    a("v_add_u32 v4, 1536, v6")
    a("v_mov_b32 v5, 2048")
    a("v_cndmask_b32 v3, v5, v3, vcc")
    a("v_cndmask_b32 v4, v5, v4, vcc")
    a("v_mov_b32 v5, v2")
    a("s_mov_b32 s38, 0")
    a("s_waitcnt lgkmcnt(0)")
    a(mfma(S[0], KF, Q, "0"))
    a("s_nop 7")
    a("s_nop 3")
    a(f"v_max3_f32 v26, v{S[0]}, v{S[0]+1}, v{S[0]+2}")
    a(f"v_max3_f32 v27, v{S[0]+3}, v{S[0]+4}, v{S[0]+5}")
    for i in range(2):
        a(f"v_max3_f32 v26, v26, v{S[0]+6+4*i}, v{S[0]+7+4*i}")
        a(f"v_max3_f32 v27, v27, v{S[0]+8+4*i}, v{S[0]+9+4*i}")
    a(f"v_max3_f32 v26, v26, v{S[0]+14}, v{S[0]+15}")
    a("v_max_f32 v26, v26, v27")
    a("L_setmax:")
    a("v_mov_b32 v27, v26")
    a("s_nop 1")
    a("v_permlane32_swap_b32 v26, v27")
    a("s_nop 1")
    a("v_max_f32 v26, v26, v27")
    for r in range(16):
        a(f"v_sub_f32 v{NM+r}, 0, v26")
    for r in range(8):
        a(f"v_mov_b32 v{P[1]+r}, 0")
        a(f"v_mov_b32 v{V0+r}, 0")
    for r in range(16):
        a(f"v_mov_b32 v{O+r}, 0")
    a(mfma(S[0], KF, Q, NM))
    a(f"ds_read_b128 v[{KF}:{KF+3}], v5 offset:{TS}")
    a("s_mov_b32 s39, 0")
    a("s_nop 7")
    a("s_nop 1")
    a("s_waitcnt lgkmcnt(0)")
    D.stamp("loop")
    a("s_cmp_eq_u32 s37, 1")
    a("s_cbranch_scc1 L_loop0")
    def piece(i):
        if i >= 32: return []
        return [f"s_add_u32 m0, s33, {4128*i}", f"s_add_u32 s28, s32, {4096*i}", "buffer_load_dwordx4 v2, s[12:15], s28 offen sc1 lds"]
    def body(dma):
        for u in range(U):
            cur, nxt = S[u & 1], S[(u+1) & 1]
            Pc, Pp = P[u & 1], P[(u+1) & 1]
            ex = [f"v_exp_f32 v{cur+i}, v{cur+i}" for i in range(16)]
            cv = [f"v_cvt_pk_bf16_f32 v{Pc+i}, v{cur+2*i}, v{cur+2*i+1}" for i in range(8)]
            pc = [piece(9 + 3*u + q) if dma else [] for q in range(3)]
            if u == U//2 and not dma:
                a("s_cmp_eq_u32 s39, s62")
                a("s_cbranch_scc1 L_mid")
                a("L_mid_ret:")
            a(mfma(nxt, KF, Q, NM))
            a(f"ds_read_b128 v[{KF}:{KF+3}], v5 offset:{(u+2)*TS}")
            for l in ex[0:4] + pc[0] + [cv[0]] + ex[4:6] + [cv[1]]: a(l)
            a("s_waitcnt lgkmcnt(2)")
            a(mfma(O, V0, Pp))
            a(f"ds_read_b128 v[{V0}:{V0+3}], v3 offset:{u*TS}")
            for l in ex[6:8] + [cv[2]] + pc[1] + ex[8:10] + [cv[3]] + ex[10:12] + [cv[4]]: a(l)
            a("s_waitcnt lgkmcnt(2)")
            a(mfma(O, V1, Pp+4))
            a(f"ds_read_b128 v[{V1}:{V1+3}], v4 offset:{u*TS}")
            for l in ex[12:14] + pc[2] + [cv[5]] + ex[14:16] + [cv[6]]: a(l)
            if u == U-1:
                a(f"v_add_u32 v5, {TS*U}, v5")
                a(f"v_add_u32 v3, {TS*U}, v3")
                a(f"v_add_u32 v4, {TS*U}, v4")
                a("s_add_u32 s39, s39, 1")
                a("s_cmp_eq_u32 s39, s63")
            a("s_waitcnt lgkmcnt(2)")
            a(cv[7])
    a(".p2align 6")
    a("L_loop:")
    body(False)
    a("s_cbranch_scc1 L_endh")
    a("L_endh_ret:")
    a(f"s_cmp_lt_u32 s39, {64//U}")
    a("s_cbranch_scc1 L_loop")
    a("s_waitcnt lgkmcnt(0)")
    a(mfma(O, V0, P[1]))
    a(mfma(O, V1, P[1]+4))
    D.stamp("loopend")
    a(f"s_mov_b32 s40, {f2u(2.0**100)}")
    a("s_nop 7")
    a("s_nop 3")
    a(f"v_mul_f32 v26, 0, v{O}")
    for r in range(1, 8):
        a(f"v_fma_f32 v26, v{O+r}, 0, v26")
    a(f"v_add_f32 v26, v26, v{O+8}")
    a(f"v_rcp_f32 v27, v{O+8}")
    a("v_cmp_nlt_f32 vcc, v26, s40")
    a("s_cmp_eq_u32 s38, 0")
    a("s_cbranch_scc0 L_fin")
    a("s_nop 1")
    a("s_cbranch_vccnz L_fallback")
    a("L_fin:")
    a(f"v_mul_f32 v27, v27, v{GB}")
    for r in range(8):
        a(f"v_mul_f32 v{O+r}, v{O+r}, v27")
    for i in range(4):
        a(f"v_cvt_pk_bf16_f32 v{O+i}, v{O+2*i}, v{O+2*i+1}")
    for i in range(4):
        a(f"v_min_u32 v{O+i}, -2, v{O+i}")
    a(f"buffer_store_dwordx4 v[{O}:{O+3}], v2, s[12:15], s57 offen sc1")

    AC = [144, 160]; WF = 176
    OF = [112, 116, 120, 124, 128, 132, 240, 244]
    a("s_cmp_ge_u32 s20, 4")
    a("s_cbranch_scc0 L_t0")
    a("s_barrier")
    a("L_t0:")
    a(f"s_add_u32 s30, s44, {WS_OB}")
    a(f"s_add_u32 s31, s44, {WS_OB + 4096}")
    a("s_mov_b32 s33, 0")
    def oload(k):
        a(f"buffer_load_dwordx4 v[{OF[k]}:{OF[k]+3}], v2, s[12:15], s{30 + k//4} offen offset:{(k%4)*1024} sc1")
    for k in range(8):
        a(f"L_rp{k}:")
        oload(k)
    a("s_cmp_eq_u32 s33, 0")
    a("s_cbranch_scc1 L_ck0")
    a("s_setpc_b64 s[34:35]")
    for k in range(8):
        a(f"L_ck{k}:")
        a(f"s_waitcnt vmcnt({7-k})")
        a(f"v_max3_u32 v24, v{OF[k]}, v{OF[k]+1}, v{OF[k]+2}")
        a(f"v_max_u32 v24, v24, v{OF[k]+3}")
        a("v_cmp_eq_u32 vcc, -1, v24")
        a("s_nop 0")
        a(f"s_cbranch_vccnz L_re{k}")
        a(f"L_go{k}:")
        a(mfma(AC[0], WF+4*k, OF[k]))
        a(mfma(AC[1], WF+32+4*k, OF[k]))
    D.stamp("polled")
    a("s_nop 7")
    a("s_nop 3")
    for p in range(1, 4):
        for part in range(2):
            r = AC[0] + 8*p + 4*part
            a(f"ds_write_b128 v{27+p}, v[{r}:{r+3}] offset:{1024*part}")
    a("s_cmp_ge_u32 s20, 4")
    a("s_waitcnt lgkmcnt(0)")
    a("s_cbranch_scc1 L_t1")
    a("s_barrier")
    a("L_t1:")
    a("s_barrier")
    for i in range(6):
        a(f"ds_read_b128 v[{32+4*i}:{35+4*i}], v31 offset:{1024*i}")
    for p in range(3):
        a(f"s_waitcnt lgkmcnt({4-2*p})")
        for r in range(8):
            a(f"v_add_f32 v{AC[0]+r}, v{AC[0]+r}, v{32+8*p+r}")
    for i in range(4):
        a(f"v_cvt_pk_bf16_f32 v{32+i}, v{AC[0]+2*i}, v{AC[0]+2*i+1}")
    a("s_nop 1")
    a("v_permlane32_swap_b32 v32, v34")
    a("v_permlane32_swap_b32 v33, v35")
    a("s_nop 1")
    a("buffer_store_dwordx4 v[32:35], v6, s[16:19], s45 offen" + (" sc1" if opt.get("outsc1") else ""))
    if D.on:
        a("s_waitcnt vmcnt(0)")
        D.stamp("end"); D.stamp("rtend", True, slot=63)
        D.flush()
    a("L_end:")
    a("s_endpgm")
    for k in range(8):
        a(f"L_re{k}:")
        a("s_add_u32 s33, s33, 1")
        a(f"s_cmp_gt_u32 s33, {SPIN_MAX}")
        a(f"s_cbranch_scc1 L_rx{k}")
        if opt.get("tsleep", 1): a(f"s_sleep {opt.get('tsleep', 1)}")
        oload(k)
        a("s_waitcnt vmcnt(0)")
        a(f"v_max3_u32 v24, v{OF[k]}, v{OF[k]+1}, v{OF[k]+2}")
        a(f"v_max_u32 v24, v24, v{OF[k]+3}")
        a("v_cmp_eq_u32 vcc, -1, v24")
        a("s_nop 0")
        a(f"s_cbranch_vccnz L_re{k}")
        a(f"L_rx{k}:")
        if k == 7:
            a("s_branch L_go7")
            continue
        a("s_getpc_b64 s[34:35]")
        a(f"L_rpc{k}:")
        a(f"s_sub_u32 s34, s34, L_rpc{k}-L_go{k}")
        a("s_subb_u32 s35, s35, 0")
        a(f"s_branch L_rp{k+1}")

    a("L_loop0:")
    a("s_mov_b32 s37, 0")
    body(True)
    D.stamp("it0")
    a("s_branch L_loop")
    a("L_fallback:")
    a("s_mov_b32 s38, 1")
    a("v_mov_b32 v5, v2")
    a(f"v_subrev_u32 v3, {TS*64}, v3")
    a(f"v_subrev_u32 v4, {TS*64}, v4")
    a(f"v_mov_b32 v26, {f2u(-3.0e38)}")
    a("s_mov_b32 s39, 0")
    a("L_fb_loop:")
    a(f"ds_read_b128 v[{KF}:{KF+3}], v5")
    a(f"v_add_u32 v5, {TS}, v5")
    a("s_waitcnt lgkmcnt(0)")
    a(mfma(S[0], KF, Q, "0"))
    a("s_nop 7")
    a("s_nop 3")
    for i in range(8):
        a(f"v_max3_f32 v26, v26, v{S[0]+2*i}, v{S[0]+2*i+1}")
    a("s_add_u32 s39, s39, 1")
    a("s_cmp_lt_u32 s39, 64")
    a("s_cbranch_scc1 L_fb_loop")
    a("v_mov_b32 v5, v2")
    a(f"ds_read_b128 v[{KF}:{KF+3}], v5")
    a("s_waitcnt lgkmcnt(0)")
    a("s_branch L_setmax")

    def setflag(val):
        a("s_mov_b64 exec, 1")
        a(f"v_mov_b32 v28, {val}")
        a("buffer_store_dword v28, v139, s[12:15], s60 offen sc1")
        a("s_mov_b64 exec, -1")
    a("L_mid:")
    a("s_cmp_eq_u32 s39, 5")
    a("s_cbranch_scc1 L_H1")
    a("s_cmp_eq_u32 s39, 0")
    a("s_waitcnt vmcnt(0)")
    a("s_cbranch_scc0 L_HW2")
    a("ds_read_b64_tr_b16 v[24:25], v140")
    a("ds_read_b64_tr_b16 v[26:27], v140 offset:512")
    setflag(2)
    a("s_mov_b32 s62, 2")
    a("s_waitcnt lgkmcnt(0)")
    a("buffer_store_dwordx4 v[24:27], v2, s[12:15], s47 offen sc1")
    a("s_branch L_mid_ret")
    a("L_HW2:")
    setflag(3)
    a("s_mov_b32 s62, 5")
    a("s_branch L_mid_ret")
    a("L_H1:")
    a("s_mov_b32 s62, 99")
    a("s_and_b32 s28, s20, 3")
    a("s_lshr_b32 s29, s21, 2")
    a("s_lshl_b32 s30, s29, 3")
    a("s_and_b32 s31, s21, 3")
    a("s_add_u32 s30, s30, s31")
    a("s_and_b32 s31, s20, 4")
    a("s_add_u32 s30, s30, s31")
    a("s_lshr_b32 s31, s28, 1")
    a("s_lshl_b32 s32, s22, 1")
    a("s_add_u32 s42, s32, s31")
    a("s_xor_b32 s43, s42, 1")
    a("s_lshl_b32 s33, s28, 13")
    a("s_lshl_b32 s42, s42, 15")
    a("s_lshl_b32 s43, s43, 15")
    a("s_add_u32 s42, s42, s33")
    a("s_add_u32 s43, s43, s33")
    a(f"s_add_u32 s42, s42, {WS_WOF}")
    a(f"s_add_u32 s43, s43, {WS_WOF}")
    a("s_lshl_b32 s44, s30, 15")
    a("s_add_u32 s44, s44, s33")
    a("s_and_b32 s33, s22, 6")
    a("s_and_b32 s41, s22, 1")
    a("s_lshl_b32 s41, s41, 7")
    a("s_add_u32 s33, s33, s41")
    a("s_lshl_b32 s41, s28, 5")
    a("s_add_u32 s33, s33, s41")
    a("v_bfe_u32 v26, v1, 2, 2")
    a("v_lshlrev_b32 v26, 3, v26")
    a("v_bfe_u32 v27, v1, 4, 1")
    a("v_add3_u32 v26, v26, v27, s33")
    a("s_lshl_b32 s41, s28, 1")
    a("s_lshr_b32 s33, s30, 5")
    a("s_add_u32 s33, s33, s41")
    a("s_bfe_u32 s46, s30, 0x40001")
    a("s_lshl_b32 s46, s46, 3")
    a("s_add_u32 s33, s33, s46")
    a("v_bfe_u32 v27, v1, 2, 1")
    a("v_lshlrev_b32 v25, 7, v27")
    a("v_add_u32 v25, s33, v25")
    a("v_cmp_gt_u32 vcc, 32, v1")
    a("v_and_b32 v24, 3, v1")
    a("s_nop 0")
    a("v_cndmask_b32 v26, v25, v26, vcc")
    a("v_lshlrev_b32 v26, 7, v26")
    a("v_lshl_add_u32 v26, v24, 2, v26")
    a("s_lshr_b32 s33, s30, 3")
    a("s_lshl_b32 s33, s33, 5")
    a("s_add_u32 s33, s33, s41")
    a("v_lshl_add_u32 v25, v24, 3, v27")
    a("v_add_u32 v25, s33, v25")
    a("v_lshlrev_b32 v25, 7, v25")
    a("v_add_u32 v25, 16, v25")
    a("v_cmp_gt_u32 vcc, 48, v1")
    a(f"s_mov_b32 s41, {WS_F}")
    a("s_nop 0")
    a("v_cndmask_b32 v26, v25, v26, vcc")
    a("buffer_load_dword v24, v26, s[12:15], s41 offen sc1")
    a("s_and_b32 s33, s28, 1")
    a("s_lshl_b32 s33, s33, 8")
    a("v_xor_b32 v7, s33, v2")
    a("s_cmp_lt_u32 s20, 4")
    a(f"s_cselect_b32 s29, {XCH}, 0")
    for p in range(1, 4):
        a(f"s_xor_b32 s33, s28, {p}")
        a("s_mul_i32 s33, s33, 6144")
        a("s_add_u32 s33, s33, s29")
        a(f"s_add_u32 s33, s33, {(p-1)*2048}")
        a(f"v_add_u32 v{27+p}, s33, v2")
    a("s_mul_i32 s33, s28, 6144")
    a("s_add_u32 s33, s33, s29")
    a("v_add_u32 v31, s33, v2")
    a("v_and_b32 v6, 31, v1")
    a("v_lshlrev_b32 v6, 11, v6")
    a("v_lshrrev_b32 v138, 5, v1")
    a("v_lshl_add_u32 v6, v138, 4, v6")
    a("s_lshr_b32 s33, s30, 1")
    a("s_lshl_b32 s33, s33, 6")
    a("s_and_b32 s45, s30, 1")
    a("s_add_u32 s33, s33, s45")
    a("s_lshl_b32 s33, s33, 10")
    a("s_lshl_b32 s45, s22, 7")
    a("s_add_u32 s45, s45, s33")
    a("s_lshl_b32 s33, s28, 5")
    a("s_add_u32 s45, s45, s33")
    a("s_mov_b32 s16, s50")
    a("s_mov_b32 s17, s51")
    a("s_mov_b32 s18, 0x200000")
    a("s_mov_b32 s19, 0x00020000")
    a("s_branch L_mid_ret")

    a("L_endh:")
    a("s_cmp_eq_u32 s39, 2")
    a("s_cbranch_scc1 L_G")
    a("s_cmp_eq_u32 s39, 6")
    a("s_cbranch_scc1 L_H2")
    a("s_cmp_eq_u32 s39, 7")
    a("s_cbranch_scc1 L_H3")
    a("s_setprio 2")
    a("s_mov_b32 s63, 6")
    a("s_branch L_endh_ret")
    def wload(br):
        for pct in range(2):
            for k in range(8):
                if k % 4 == 0:
                    a(f"s_add_u32 s33, s{42+pct}, {br*512*1024 + 1024*k}")
                r = WF + 32*pct + 4*k
                a(f"buffer_load_dwordx4 v[{r}:{r+3}], v7, s[12:15], s33 offen offset:{(k%4)*1024} sc1")
    a("L_H2:")
    a("s_setprio 1")
    a("s_mov_b32 s63, 7")
    a("s_mov_b32 s33, 0")
    a("L_H2_chk:")
    a("s_waitcnt vmcnt(0)")
    a("v_cmp_ne_u32 vcc, 3, v24")
    a("s_add_u32 s33, s33, 1")
    a(f"s_cmp_gt_u32 s33, {SPIN_MAX}")
    a("s_cbranch_scc1 L_H2_go")
    a("s_cbranch_vccz L_H2_go")
    a("s_sleep 2")
    a("buffer_load_dword v24, v26, s[12:15], s41 offen sc1")
    a("s_branch L_H2_chk")
    a("L_H2_go:")
    a(f"s_add_u32 s30, s44, {WS_OA}")
    a(f"s_add_u32 s31, s44, {WS_OA + 4096}")
    for k in range(8): oload(k)
    wload(0)
    a("s_branch L_endh_ret")
    a("L_H3:")
    a("s_setprio 0")
    a("s_mov_b32 s63, 99")
    a("s_waitcnt vmcnt(0)")
    for k in range(8):
        a(mfma(AC[0], WF+4*k, OF[k], "0" if k == 0 else None))
        a(mfma(AC[1], WF+32+4*k, OF[k], "0" if k == 0 else None))
    wload(1)
    a("s_branch L_endh_ret")

    a("L_G:")
    a("s_mov_b32 s63, 4")
    a("s_waitcnt vmcnt(0)")
    a("s_barrier")
    a("s_cmp_ge_u32 s20, 4")
    a("s_cbranch_scc1 L_endh_ret")
    a("s_cmp_eq_u32 s20, 0")
    a("s_cselect_b32 exec_lo, 1, 0")
    a("s_mov_b32 exec_hi, 0")
    a("v_mov_b32 v25, 3")
    a("buffer_store_dword v25, v139, s[12:15], s60 offen offset:16 sc1")
    a("s_mov_b64 exec, -1")
    KP, VP, ONES, PP = 140, 148, 152, 156
    MC, MP, SC, SP, OA, LL = 160, 176, 192, 208, 224, 240
    a(f"s_mov_b32 s44, {f2u(1000.0)}")
    a("s_cmp_eq_u32 s23, 0")
    a("s_cbranch_scc1 L_A_nohalo")
    a("s_mov_b32 s44, 0")
    a("s_and_b32 s30, s23, 15")
    a("s_cmp_eq_u32 s30, 0")
    a(f"s_cselect_b32 s30, {127*128}, 0")
    a("s_add_u32 s30, s30, s60")
    a(f"s_sub_u32 s30, s30, {8*128}")
    a("s_mov_b32 s31, 0")
    a("L_A_poll:")
    a("buffer_load_dword v24, v139, s[12:15], s30 offen sc1")
    a("s_add_u32 s31, s31, 1")
    a("s_waitcnt vmcnt(0)")
    a("v_readfirstlane_b32 s28, v24")
    a(f"s_cmp_gt_u32 s31, {SPIN_MAX}")
    a("s_cbranch_scc1 L_A_go")
    a("s_cmp_ge_u32 s28, 2")
    a("s_cbranch_scc1 L_A_go")
    a("s_sleep 2")
    a("s_branch L_A_poll")
    a("L_A_go:")
    a("s_sub_u32 s30, s61, 32")
    a("s_lshl_b32 s30, s30, 12")
    a(f"s_add_u32 s30, s30, {WS_HALO}")
    a(f"buffer_load_dwordx4 v[{KP}:{KP+3}], v2, s[12:15], s30 offen sc1")
    a(f"buffer_load_dwordx4 v[{KP+4}:{KP+7}], v2, s[12:15], s30 offen offset:1024 sc1")
    a(f"buffer_load_dwordx4 v[{VP}:{VP+3}], v2, s[12:15], s30 offen offset:2048 sc1")
    a("s_branch L_A_masks")
    a("L_A_nohalo:")
    for r in range(8):
        a(f"v_mov_b32 v{KP+r}, v{KA+r}")
    for r in range(4):
        a(f"v_mov_b32 v{VP+r}, v{VA+4+r}")
    a("L_A_masks:")
    a("v_and_b32 v24, 31, v1")
    a("v_lshrrev_b32 v25, 5, v1")
    a("v_lshlrev_b32 v26, 2, v25")
    a("v_sub_u32 v26, v24, v26")
    a("v_cvt_f32_i32 v26, v26")
    a(f"v_add_f32 v26, {f2u(-3.5)}, v26")
    a("v_add_f32 v28, s44, v26")
    a(f"s_mov_b32 s45, {f2u(-1e30)}")
    for r in range(16):
        cst = 8*(r//4) + (r % 4)
        a(f"v_subrev_f32 v{MC+r}, {f2u(float(cst))}, v26")
    for b in range(4):
        a(f"v_subrev_f32 v{MP+12+b}, {f2u(float(b-8))}, v28")
    regs = [MC+r for r in range(16)] + [MP+12+b for b in range(4)]
    for r in regs:
        a(f"v_add_f32_e64 v{r}, |v{r}|, -4.0 clamp")
    for r in regs:
        a(f"v_mul_f32 v{r}, s45, v{r}")
    for r in range(12):
        a(f"v_mov_b32 v{MP+r}, 0")
    for r in range(4):
        a(f"v_mov_b32 v{ONES+r}, 0x3f803f80")
    a(f"v_mov_b32 v{PP}, 0")
    a(f"v_mov_b32 v{PP+1}, 0")
    a("s_lshl_b32 s30, s58, 15")
    a("s_lshl_b32 s28, s59, 11")
    a("s_add_u32 s30, s30, s28")
    a(f"s_add_u32 s30, s30, {WS_OA}")
    a("s_waitcnt vmcnt(0)")
    for e in range(2):
        a(mfma(SC, KA+4*e, QA+4*e, MC))
        a(mfma(SP, KP+4*e, QA+4*e, MP))
        a("s_nop 7")
        a("s_nop 2")
        a(f"v_max3_f32 v26, v{SC}, v{SC+1}, v{SC+2}")
        a(f"v_max3_f32 v27, v{SC+3}, v{SC+4}, v{SC+5}")
        a(f"v_max3_f32 v26, v26, v{SC+6}, v{SC+7}")
        a(f"v_max3_f32 v27, v27, v{SC+8}, v{SC+9}")
        a(f"v_max3_f32 v26, v26, v{SC+10}, v{SC+11}")
        a(f"v_max3_f32 v27, v27, v{SC+12}, v{SC+13}")
        a(f"v_max3_f32 v26, v26, v{SC+14}, v{SC+15}")
        a(f"v_max3_f32 v27, v27, v{SP+12}, v{SP+13}")
        a(f"v_max3_f32 v26, v26, v{SP+14}, v{SP+15}")
        a("v_max_f32 v26, v26, v27")
        a("v_mov_b32 v27, v26")
        a("s_nop 1")
        a("v_permlane32_swap_b32 v26, v27")
        a("s_nop 1")
        a("v_max_f32 v26, v26, v27")
        sregs = [SC+r for r in range(16)] + [SP+12+b for b in range(4)]
        for r in sregs:
            a(f"v_sub_f32 v{r}, v{r}, v26")
        for r in sregs:
            a(f"v_exp_f32 v{r}, v{r}")
        a(f"v_cvt_pk_bf16_f32 v{PP+2}, v{SP+12}, v{SP+13}")
        for i in range(8):
            a(f"v_cvt_pk_bf16_f32 v{SC+i}, v{SC+2*i}, v{SC+2*i+1}")
        a(f"v_cvt_pk_bf16_f32 v{PP+3}, v{SP+14}, v{SP+15}")
        a("s_nop 0")
        a(mfma(LL, ONES, SC, "0"))
        a(mfma(OA, VA, SC, "0"))
        a(mfma(LL, ONES, SC+4))
        a(mfma(OA, VA+4, SC+4))
        a(mfma(LL, ONES, PP))
        a(mfma(OA, VP, PP))
        a("s_nop 7")
        a("s_nop 2")
        a(f"v_rcp_f32 v26, v{LL}")
        a("s_nop 0")
        a("v_mul_f32 v26, v26, v136")
        for r in range(8):
            a(f"v_mul_f32 v{OA+8*e+r}, v{OA+8*e+r}, v26")
        for i in range(4):
            a(f"v_cvt_pk_bf16_f32 v{28+i}, v{OA+8*e+2*i}, v{OA+8*e+2*i+1}")
        a(f"buffer_store_dwordx4 v[28:31], v2, s[12:15], s30 offen offset:{1024*e} sc1")
    D.stamp("Aattn")
    a("s_branch L_endh_ret")
    if D.on:
        json.dump(D.names, open("names3.json", "w"))
    return 256

HEADER = open("gated_mix__sliding_local_dilated__softmax_full_mha__prompt.s.ref").read().split("; Override launch")[0]

def main(out, opt):
    a = Asm()
    n = gen(a, opt)
    a("L_code_end:")
    a("s_endpgm")
    s = HEADER
    s += "; generated by gen/gen4.py (hand-written generator)\n"
    s += "; @launch grid=(256,1,1) block=(512,1,1) lds=163840\n"
    s += '.amdgcn_target "amdgcn-amd-amdhsa--gfx950"\n.text\n'
    s += a.text()
    s += kd("KNAME", n)
    open(out, "w").write(s.replace("KNAME", KN))

if __name__ == "__main__":
    out = sys.argv[1] if len(sys.argv) > 1 else "gated_mix__sliding_local_dilated__softmax_full_mha__prompt.s"
    opt = {}
    for kv in sys.argv[2:]:
        k, v = kv.split("=")
        opt[k] = int(v)
    main(out, opt)
```

```python
import sys, math, struct, json
from asmlib import *

MB = 1 << 20
WS_QB   = 0
WS_KV   = 2*MB
WS_HALO = 6*MB
WS_OA   = 10*MB
WS_OB   = 12*MB
WS_WOF  = 14*MB
WS_G    = 15*MB
WS_F    = 15*MB + 256*1024
WS_SIZE = 16*MB
DIAG_BASE = 32*MB
QSCALE = 0.25 * math.log2(math.e)
TS = 2064
XCH = 64*TS
SCR = XCH + 24576
QX = XCH + 8192
DN = XCH + 12288
SPIN_MAX = 40000
KN = "gated_mix__sliding_local_dilated__softmax_full_mha__prompt_kernel"
def f2u(x): return struct.unpack("<I", struct.pack("<f", x))[0]

class Diag:
    def __init__(self, a, opt):
        self.a, self.on = a, opt.get("diag", 0)
        self.names = {}
        self.n = 16
    def stamp(self, name, real=False, slot=None, dyn=None):
        if not self.on: return
        a = self.a
        if dyn is None:
            if slot is None:
                if name not in self.names:
                    self.names[name] = self.n; self.n += 1
                slot = self.names[name]
            else:
                self.names[name] = slot
            assert slot < 64
        a(f"s_{'memrealtime' if real else 'memtime'} s[64:65]")
        if dyn is not None: a(dyn)
        a("s_waitcnt lgkmcnt(0)")
        a(f"v_writelane_b32 v0, s64, {'m0' if dyn is not None else slot}")
    def flush(self):
        if not self.on: return
        a = self.a
        a("s_mov_b32 s96, s54")
        a("s_mov_b32 s97, s55")
        a(f"s_mov_b32 s98, {64*MB}")
        a("s_mov_b32 s99, 0x00020000")
        a("s_lshl_b32 s100, s2, 3")
        a("s_add_u32 s100, s100, s20")
        a("s_lshl_b32 s100, s100, 8")
        a(f"s_add_u32 s100, s100, {DIAG_BASE}")
        a("s_mov_b64 exec, -1")
        a("v_lshlrev_b32 v24, 2, v1")
        a("buffer_store_dword v0, v24, s[96:99], s100 offen")
        a("s_waitcnt vmcnt(0)")

def mfma(d, A, B, C=None):
    c = f"v[{d}:{d+15}]" if C is None else (C if isinstance(C, str) else f"v[{C}:{C+15}]")
    return f"v_mfma_f32_32x32x16_bf16 v[{d}:{d+15}], v[{A}:{A+3}], v[{B}:{B+3}], {c}"

def gen(a, opt):
    U = 8
    FMAX = opt.get("fmax", 4)
    a(".p2align 8")
    a(".globl KNAME")
    a(".type KNAME,@function")
    a("KNAME:")
    a("s_cmp_ge_u32 s2, 256")
    a("s_cbranch_scc1 L_end")
    D = Diag(a, opt)
    if D.on:
        a("s_memrealtime s[66:67]")
        a("s_memtime s[68:69]")
        a("s_waitcnt lgkmcnt(0)")
    a("s_load_dwordx16 s[36:51], s[0:1], 0")
    a("s_load_dwordx4 s[52:55], s[0:1], 64")
    a("v_lshrrev_b32 v2, 6, v0")
    a("v_and_b32 v1, 63, v0")
    if D.on:
        a("v_mov_b32 v0, 0")
        a("v_writelane_b32 v0, s66, 62")
        a("v_writelane_b32 v0, s68, 61")
    a("v_readfirstlane_b32 s20, v2")
    a("v_lshlrev_b32 v2, 4, v1")
    a("s_and_b32 s26, s2, 7")
    a("s_lshr_b32 s27, s2, 3")
    a("s_and_b32 s23, s26, 1")
    a("s_lshl_b32 s23, s23, 4")
    a("s_and_b32 s28, s27, 15")
    a("s_add_u32 s23, s23, s28")
    a("s_and_b32 s24, s26, 6")
    a("s_lshr_b32 s28, s27, 4")
    a("s_add_u32 s24, s24, s28")
    a("s_lshl_b32 s28, s28, 2")
    a("s_add_u32 s25, s27, s28")
    a("s_and_b32 s25, s25, 7")
    a("s_lshl_b32 s25, s25, 7")
    a("s_lshl_b32 s21, s26, 2")
    a("s_and_b32 s28, s27, 3")
    a("s_add_u32 s21, s21, s28")
    a("s_lshr_b32 s22, s27, 2")
    a("s_lshl_b32 s56, s22, 3")
    a("s_add_u32 s56, s56, s20")
    a("s_lshl_b32 s57, s56, 15")
    a("s_lshl_b32 s28, s21, 10")
    a("s_add_u32 s57, s57, s28")
    a(f"s_add_u32 s57, s57, {WS_OB}")
    a("v_mov_b32 v139, 0")
    a("s_getpc_b64 s[98:99]")
    a("L_pc:")
    a("s_sub_u32 s98, s98, L_pc-KNAME")
    a("s_subb_u32 s99, s99, 0")
    a("s_and_b32 s100, s2, 0xf8")
    a("s_add_u32 s100, s100, s20")
    a("s_lshl_b32 s100, s100, 7")
    a("s_min_u32 s100, s100, L_code_end-KNAME-4")
    def code_pf():
        if opt.get("npf", 1): a("s_load_dword s101, s[98:99], s100")
    a("s_cmp_ge_u32 s20, 4")
    a("s_cbranch_scc0 L_compute")
    Q, KF, V0, V1 = 8, 12, 16, 20
    GB = 137
    def qg_offsets(sq, sg):
        a(f"s_lshl_b32 s{sq}, s21, 16")
        a("s_lshl_b32 s28, s56, 10")
        a(f"s_add_u32 s{sq}, s{sq}, s28")
        a(f"s_lshr_b32 s{sg}, s21, 1")
        a(f"s_lshl_b32 s{sg}, s{sg}, 6")
        a(f"s_add_u32 s{sg}, s{sg}, s56")
        a(f"s_lshl_b32 s{sg}, s{sg}, 7")
        a(f"s_add_u32 s{sg}, s{sg}, {WS_G}")

    a("s_setprio 2")
    a("s_sub_u32 s29, s20, 4")
    a("v_lshrrev_b32 v6, 3, v1")
    a("v_lshrrev_b32 v7, 4, v1")
    a("v_and_b32 v8, 7, v1")
    a("v_xor_b32 v9, v8, v7")
    a("v_xor_b32 v10, 4, v9")
    a("v_lshlrev_b32 v3, 11, v6")
    a("v_lshl_add_u32 v4, v10, 4, v3")
    a("v_lshl_add_u32 v3, v9, 4, v3")
    a("v_and_b32 v7, 1, v7")
    a("v_lshlrev_b32 v7, 2, v7")
    a("v_xor_b32 v7, v8, v7")
    a("v_mul_u32_u24 v5, 3072, v6")
    a("v_lshl_add_u32 v5, v7, 4, v5")
    a("s_lshr_b32 s28, s29, 1")
    a("s_lshl_b32 s30, s23, 6")
    a("s_add_u32 s30, s30, s28")
    a("s_lshl_b32 s30, s30, 10")
    a("s_lshl_b32 s31, s28, 12")
    a("s_and_b32 s28, s29, 1")
    a("s_lshl_b32 s33, s28, 15")
    a("s_add_u32 s30, s30, s33")
    a("s_lshl_b32 s33, s28, 11")
    a("s_add_u32 s31, s31, s33")
    a("s_mul_i32 s32, s29, 49152")
    a("s_lshl_b32 s28, s24, 7")
    a("s_add_u32 s32, s32, s28")
    a("s_lshl_b32 s33, s29, 11")
    a("s_add_u32 s33, s33, 65536")
    a("s_mov_b32 s58, 0")
    a("s_mov_b32 s6, 0x200000")
    a("s_mov_b32 s7, 0x00020000")
    a("s_mov_b32 s10, 0x180000")
    a("s_mov_b32 s11, 0x00020000")
    a(f"s_mov_b32 s14, {WS_SIZE}")
    a("s_mov_b32 s15, 0x00020000")
    a("s_waitcnt lgkmcnt(0)")
    a("s_mov_b32 s4, s36")
    a("s_mov_b32 s5, s37")
    a("s_mov_b32 s8, s44")
    a("s_mov_b32 s9, s45")
    a("s_mov_b32 s12, s54")
    a("s_mov_b32 s13, s55")
    a("s_mov_b32 s16, s50")
    a("s_mov_b32 s17, s51")
    a("s_mov_b32 s18, 0x200000")
    a("s_mov_b32 s19, 0x00020000")
    D.stamp("karg")
    code_pf()
    def wloads(ts=(0, 1, 2)):
        for t in ts:
            for jj in range(2):
                a(f"s_add_u32 m0, s33, {8192*t + 1024*jj}")
                a(f"s_add_u32 s28, s34, {1024*t + 24576*jj}")
                a("buffer_load_dwordx4 v5, s[8:11], s28 offen lds")
    def adv_k():
        a("s_add_u32 s25, s25, 128")
        a("s_and_b32 s25, s25, 1023")
    def adv_ring():
        a("s_add_u32 s33, s33, 24576")
        a("s_cmp_ge_u32 s33, 163840")
        a("s_cselect_b32 s28, 98304, 0")
        a("s_sub_u32 s33, s33, s28")
        a("s_add_u32 s58, s58, 1")
    def bar(n):
        a(f"s_waitcnt vmcnt({n})")
        if opt.get("diag", 0) > 1: D.stamp("w", dyn="s_add_u32 m0, s58, 37")
        a("s_barrier")
        D.stamp("b", dyn="s_sub_u32 m0, s58, 3")
    a("L_ld1:")
    a("s_mul_i32 s34, s25, 1536")
    a("s_add_u32 s35, s30, s25")
    a("s_mov_b32 m0, s31")
    a("s_add_u32 s34, s34, s32")
    a("buffer_load_dwordx4 v3, s[4:7], s35 offen lds")
    a("s_add_u32 m0, s31, 1024")
    a("s_add_u32 s28, s35, 16384")
    a("buffer_load_dwordx4 v4, s[4:7], s28 offen lds")
    wloads((1, 2))
    a("s_add_u32 s31, s31, 8192")
    adv_k(); adv_ring()
    a("s_cmp_lt_u32 s58, 3")
    a("s_cbranch_scc1 L_ld1")
    bar(12)
    a("s_cmp_lt_u32 s58, 8")
    a("s_cbranch_scc1 L_ld1")
    a("L_ld2:")
    for t in range(3):
        if t == 2:
            a("s_cmp_eq_u32 s58, 10")
            a("s_cbranch_scc1 L_ld2x")
        a("s_mul_i32 s34, s25, 1536")
        a(f"s_add_u32 m0, s33, {8192*t}")
        a("s_add_u32 s34, s34, s32")
        a("buffer_load_dwordx4 v5, s[8:11], s34 offen lds")
        a(f"s_add_u32 m0, s33, {8192*t + 1024}")
        a("s_add_u32 s28, s34, 24576")
        a("buffer_load_dwordx4 v5, s[8:11], s28 offen lds")
        adv_k()
    adv_ring()
    bar(12)
    a("s_branch L_ld2")
    a("L_ld2x:")
    adv_ring()
    a("s_mov_b32 s8, s38")
    a("s_mov_b32 s9, s39")
    bar(10)
    a("s_mul_i32 s34, s25, 1536")
    a("s_add_u32 s34, s34, s32")
    wloads()
    adv_k(); adv_ring()
    PV, FL, TH, ON, OA_, DA, QVA = 128, 129, 130, 112, 116, 117, 118
    a("s_and_b32 s45, s26, 6")
    a("s_and_b32 s31, s26, 1")
    a("s_lshl_b32 s31, s31, 7")
    a("s_add_u32 s45, s45, s31")
    a("s_lshl_b32 s45, s45, 7")
    a("s_and_b32 s31, s21, 2")
    a("s_lshl_b32 s31, s31, 2")
    a("s_add_u32 s45, s45, s31")
    a(f"s_add_u32 s45, s45, {WS_F}")
    a("s_lshl_b32 s73, s22, 1")
    a("v_add_u32 v24, s73, v1")
    a("s_lshl_b32 s28, s29, 4")
    a("v_and_b32 v24, 15, v24")
    a("v_add_u32 v24, s28, v24")
    a("v_mov_b32 v25, s56")
    a("v_cmp_gt_u32 vcc, 16, v1")
    a("s_sub_u32 s28, s56, 4")
    a(f"v_mov_b32 v{TH}, 2")
    a("v_cndmask_b32 v24, v25, v24, vcc")
    a(f"v_cndmask_b32 v{TH}, v{TH}, 1, vcc")
    a("v_mov_b32 v25, s28")
    a("v_cmp_gt_u32 vcc, 17, v1")
    a("s_lshl_b32 s30, s21, 16")
    a("s_lshl_b32 s28, s56, 10")
    a("v_cndmask_b32 v24, v25, v24, vcc")
    a(f"v_bfe_u32 v{PV}, v24, 1, 4")
    a(f"v_lshlrev_b32 v{PV}, 10, v{PV}")
    a("v_lshrrev_b32 v25, 5, v24")
    a(f"v_lshl_add_u32 v{PV}, v25, 7, v{PV}")
    a("v_and_b32 v25, 1, v24")
    a(f"v_lshl_add_u32 v{PV}, v25, 2, v{PV}")
    a("s_add_u32 s30, s30, s28")
    a("s_sub_u32 s31, s30, 4096")
    a("s_lshl_b32 s46, s21, 17")
    a("s_lshl_b32 s28, s29, 15")
    a("s_add_u32 s46, s46, s28")
    a(f"s_add_u32 s46, s46, {WS_KV}")
    a(f"s_mul_i32 s70, s29, {TS}")
    a(f"s_add_u32 s71, s70, {4*TS*5}")
    N1 = opt.get("n1", 2)
    a(f"s_add_u32 s59, s70, {4*TS*N1}")
    a("s_lshl_b32 s72, s29, 10")
    a(f"s_add_u32 s72, s72, {QX}")
    a("s_lshl_b32 s28, s29, 2")
    a(f"s_add_u32 s28, s28, {DN}")
    a(f"v_mov_b32 v{DA}, s28")
    a(f"v_mul_u32_u24 v{OA_}, {TS}, v1")
    for r in range(4):
        a(f"v_mov_b32 v{ON+r}, 0x3f803f80")
    for r in range(8):
        a(f"v_mov_b32 v{72+r}, 0")
        a(f"v_mov_b32 v{V0+r}, 0")
    for r in range(16):
        a(f"v_mov_b32 v{80+r}, 0")
    a("s_mov_b32 s61, 0x3ffff")
    a("s_mov_b32 s47, 0")
    a("s_mov_b32 s79, 0")
    bar(10)
    a("L_ldA:")
    a("s_mul_i32 s34, s25, 1536")
    a("s_add_u32 s34, s34, s32")
    wloads()
    adv_k(); adv_ring()
    bar(12)
    a("s_cmp_lt_u32 s58, 18")
    a("s_cbranch_scc1 L_ldA")
    def poll():
        a(f"buffer_load_dword v{FL}, v{PV}, s[12:15], s45 offen sc1")
    poll()
    a("s_mul_i32 s34, s25, 1536")
    a("s_add_u32 s34, s34, s32")
    wloads()
    a("s_waitcnt vmcnt(13)")
    a("s_barrier")
    D.stamp("b16")
    a("s_waitcnt vmcnt(6)")
    a("s_barrier")
    D.stamp("b17")
    a("s_mov_b32 s78, 0")
    a("s_call_b64 s[80:81], L_proc")
    if D.on:
        D.names["n1"] = 59
        a("s_add_u32 s28, s78, 1")
        a("v_writelane_b32 v0, s28, 59")
    a("L_pad:")
    a(f"s_cmp_ge_u32 s78, {2 + 2*N1}")
    a("s_cbranch_scc1 L_padded")
    a(f"buffer_load_dword v25, v{PV}, s[12:15], s45 offen sc1")
    a("s_add_u32 s78, s78, 1")
    a("s_branch L_pad")
    a("L_padded:")
    a(f"s_waitcnt vmcnt({2 + 2*N1})")
    a("s_barrier")
    D.stamp("b18")
    a(f"s_add_u32 s59, s71, {4*TS*opt.get('nx', 0)}")
    a("s_call_b64 s[80:81], L_proc")
    poll()
    a(f"ds_write_b32 v{DA}, v139")
    a("s_mov_b32 exec_lo, 0xffffff")
    a("s_mov_b32 exec_hi, 0")
    a(f"ds_write_b128 v{OA_}, v[{ON}:{ON+3}] offset:2048")
    a("s_mov_b64 exec, -1")
    a("L_pre:")
    a("s_cmp_ge_u32 s70, s71")
    a("s_waitcnt vmcnt(0)")
    a("s_cbranch_scc0 L_pre2")
    D.stamp("t5")
    a("s_bfe_u32 s28, s61, 0x10011")
    a("v_mov_b32 v24, s28")
    a("s_bitset0_b32 s61, 17")
    a(f"ds_write_b32 v{DA}, v24 offset:16")
    a("s_mov_b32 s59, 0x100000")
    a("s_mov_b32 s62, 5")
    a("s_mov_b32 s63, 1")
    a("s_waitcnt lgkmcnt(0)")
    a("s_barrier")
    D.stamp("F")
    a("s_bitcmp1_b32 s61, 16")
    a("s_cbranch_scc1 L_lq")
    a("s_call_b64 s[80:81], L_proc")
    a("s_cmp_eq_u32 s61, 0")
    a("s_cbranch_scc1 L_main")
    poll()
    a("s_branch L_main")
    a("L_pre2:")
    a("s_call_b64 s[80:81], L_proc")
    a("s_call_b64 s[80:81], L_repoll")
    a("s_branch L_pre")
    a("L_lq:")
    a("s_call_b64 s[80:81], L_proc")
    a("s_call_b64 s[80:81], L_repoll")
    a("s_bitcmp1_b32 s61, 16")
    a("s_waitcnt vmcnt(0)")
    a("s_cbranch_scc1 L_lq")
    a("s_branch L_main")
    a("L_repoll:")
    a("s_add_u32 s47, s47, 1")
    a(f"s_cmp_gt_u32 s47, {SPIN_MAX}")
    a("s_cselect_b32 s79, -1, s79")
    if opt.get("rsleep", 1): a(f"s_sleep {opt.get('rsleep', 1)}")
    poll()
    a("s_setpc_b64 s[80:81]")
    a("L_proc:")
    a(f"v_cmp_ge_u32 vcc, v{FL}, v{TH}")
    a("s_or_b32 s60, vcc_lo, s79")
    a("s_and_b32 s60, s60, s61")
    a("s_bitcmp1_b32 s60, 16")
    a("s_cbranch_scc0 L_p1")
    a(f"buffer_load_dwordx4 v[{Q}:{Q+3}], v2, s[12:15], s30 offen sc1")
    a("s_bitset0_b32 s61, 16")
    a("s_add_u32 s78, s78, 1")
    a("L_p1:")
    a("s_bitcmp1_b32 s60, 17")
    a("s_cbranch_scc0 L_p2")
    a("s_mov_b32 m0, s72")
    a("s_bitset0_b32 s61, 17")
    a("buffer_load_dwordx4 v2, s[12:15], s31 offen sc1 lds")
    a("s_add_u32 s78, s78, 1")
    a("L_p2:")
    a("s_and_b32 s60, s60, 0xffff")
    a("s_cbranch_scc0 L_pret")
    a("L_p3:")
    a("s_cmp_ge_u32 s70, s59")
    a("s_cbranch_scc1 L_pret")
    a("s_ff1_i32_b32 s28, s60")
    a("s_mov_b32 m0, s70")
    a("s_add_u32 s29, s28, s73")
    a("s_bitset0_b32 s61, s28")
    a("s_and_b32 s29, s29, 15")
    a("s_bitset0_b32 s60, s28")
    a("s_lshl_b32 s29, s29, 11")
    a("s_add_u32 s29, s29, s46")
    a("buffer_load_dwordx4 v2, s[12:15], s29 offen sc1 lds")
    a("buffer_load_dwordx4 v2, s[12:15], s29 offen offset:1024 sc1 lds")
    a(f"s_add_u32 s70, s70, {4*TS}")
    a("s_add_u32 s78, s78, 2")
    a("s_cmp_lg_u32 s60, 0")
    a("s_cbranch_scc1 L_p3")
    a("L_pret:")
    a("s_setpc_b64 s[80:81]")
    a("L_T:")
    a("s_mov_b32 s63, 2")
    a("L_T1:")
    a("s_cmp_eq_u32 s61, 0")
    a("s_waitcnt vmcnt(0)")
    a("s_cbranch_scc1 L_T2")
    a("s_call_b64 s[80:81], L_proc")
    a("s_cmp_eq_u32 s61, 0")
    a("s_cbranch_scc1 L_T1")
    a("s_call_b64 s[80:81], L_repoll")
    a("s_branch L_T1")
    a("L_T2:")
    a(f"ds_write_b128 v{OA_}, v[{ON}:{ON+3}] offset:2048")
    a("v_mov_b32 v24, 1")
    a("s_waitcnt lgkmcnt(0)")
    a(f"ds_write_b32 v{DA}, v24")
    if D.on:
        a("s_add_u32 s47, s47, 1")
        D.names["rounds"] = 60
        a("v_writelane_b32 v0, s47, 60")
    D.stamp("tdone")
    a("s_branch L_endh_ret")

    a("L_compute:")
    if opt.get("cprio", 0): a(f"s_setprio {opt['cprio']}")
    a("s_and_b32 s28, s20, 1")
    a("s_lshr_b32 s29, s20, 1")
    a("s_lshl_b32 s58, s23, 1")
    a("s_add_u32 s58, s58, s28")
    a("s_lshl_b32 s59, s24, 1")
    a("s_add_u32 s59, s59, s29")
    a("v_and_b32 v7, 31, v1")
    a("v_lshrrev_b32 v8, 5, v1")
    a("v_bfe_u32 v14, v1, 1, 3")
    a("v_lshl_add_u32 v14, v14, 5, s25")
    a("v_lshrrev_b32 v15, 4, v1")
    a("v_xor_b32 v15, v15, v1")
    a("v_and_b32 v15, 1, v15")
    a("v_lshlrev_b32 v15, 11, v15")
    a("v_lshl_add_u32 v9, v8, 4, v15")
    a("s_lshl_b32 s61, s58, 4")
    a("s_add_u32 s61, s61, s59")
    a("s_lshl_b32 s70, s59, 17")
    a("s_lshl_b32 s36, s58, 10")
    a("s_add_u32 s70, s70, s36")
    a("s_add_u32 s71, s70, 65536")
    a("s_lshl_b32 s72, s70, 1")
    a(f"s_add_u32 s72, s72, {WS_KV}")
    a("s_add_u32 s73, s72, 131072")
    a("s_lshl_b32 s74, s59, 6")
    a("s_add_u32 s74, s74, s58")
    a("s_lshl_b32 s74, s74, 7")
    a(f"s_add_u32 s74, s74, {WS_G}")
    a(f"s_mov_b32 s75, {f2u(QSCALE)}")
    a("s_mov_b32 s76, 0xffff")
    a("s_mov_b32 s77, 0")
    a("s_add_u32 s78, s57, 131072")
    a("s_lshl_b32 s30, s20, 13")
    a(f"s_add_u32 s30, s30, {WS_F}")
    a("s_add_u32 s31, s30, 4096")
    for r in range(4): a(f"v_mov_b32 v{24+r}, 0")
    for r in range(4): a(f"v_mov_b32 v{28+r}, -1")
    a("v_lshlrev_b32 v19, 2, v7")
    a("s_mov_b32 s18, 0x80000")
    a("s_mov_b32 s19, 0x00020000")
    a("s_mov_b32 s6, 1024")
    a("s_mov_b32 s7, 0x00020000")
    a(f"s_mov_b32 s14, {WS_SIZE}")
    a("s_mov_b32 s15, 0x00020000")
    a("s_mov_b32 s10, 256")
    a("s_mov_b32 s11, 0x00020000")
    a("s_cmp_lt_u32 s58, 32")
    a("s_waitcnt lgkmcnt(0)")
    a("s_cselect_b32 s16, s40, s46")
    a("s_cselect_b32 s17, s41, s47")
    a("s_mov_b32 s4, s48")
    a("s_mov_b32 s5, s49")
    a("s_mov_b32 s12, s54")
    a("s_mov_b32 s13, s55")
    a("s_mov_b32 s8, s52")
    a("s_mov_b32 s9, s53")
    code_pf()
    GV = 224
    for i in range(4):
        a(f"v_add_u32 v15, {256*i}, v14")
        a("v_and_b32 v15, 1023, v15")
        a("v_add_u32 v15, v9, v15")
        a(f"buffer_load_dwordx4 v[{GV+4*i+4}:{GV+4*i+7}], v15, s[4:7], 0 offen")
    a("s_cmp_eq_u32 s2, 0")
    a("s_cbranch_scc0 L_noinit")
    for q in range(8):
        a(f"buffer_store_dwordx4 v[24:27], v2, s[12:15], s{30 + q//4} offen offset:{1024*(q%4)} sc1")
    a("v_mov_b32 v12, 1")
    a("s_lshl_b32 s31, s20, 2")
    a("s_mov_b64 exec, 1")
    a("s_waitcnt vmcnt(0)")
    a("buffer_store_dword v12, v139, s[8:11], s31 offen sc1")
    a("s_mov_b64 exec, -1")
    a("L_noinit:")
    a("v_lshrrev_b32 v9, 2, v1")
    a("v_and_b32 v10, 3, v1")
    a("v_lshlrev_b32 v9, 10, v9")
    a("v_lshl_add_u32 v138, v10, 4, v9")
    a("s_and_b32 s30, s58, 31")
    a("s_lshl_b32 s48, s30, 14")
    a("s_lshl_b32 s32, s59, 6")
    a("s_add_u32 s48, s48, s32")
    a("s_lshl_b32 s49, s20, 10")
    a(f"s_add_u32 s49, s49, {SCR}")
    XA = [3, 4, 5, 6]; WA = 13
    a("v_bfe_u32 v9, v1, 1, 3")
    a("v_xor_b32 v9, v9, v8")
    a("v_lshlrev_b32 v9, 4, v9")
    a("s_lshl_b32 s30, s28, 12")
    a("v_lshlrev_b32 v3, 7, v7")
    a("v_add_u32 v3, s30, v3")
    a("v_xor_b32 v4, 32, v9")
    a("v_xor_b32 v5, 64, v9")
    a("v_xor_b32 v6, 96, v9")
    a("v_add_u32 v4, v3, v4")
    a("v_add_u32 v5, v3, v5")
    a("v_add_u32 v6, v3, v6")
    a("v_add_u32 v3, v3, v9")
    a("v_bfe_u32 v9, v1, 2, 2")
    a(f"v_lshl_add_u32 v{WA}, v8, 3, v9")
    a(f"v_lshlrev_b32 v{WA}, 7, v{WA}")
    a("v_bfe_u32 v10, v1, 3, 1")
    a("v_xor_b32 v10, s29, v10")
    a(f"v_lshl_add_u32 v{WA}, v10, 6, v{WA}")
    a("v_bfe_u32 v10, v1, 4, 1")
    a("v_and_b32 v11, 3, v1")
    a(f"v_lshl_add_u32 v{WA}, v10, 5, v{WA}")
    a(f"v_lshl_add_u32 v{WA}, v11, 3, v{WA}")
    a(f"v_add_u32 v{WA}, 65536, v{WA}")
    a("v_lshl_add_u32 v12, v8, 2, v9")
    a("v_lshlrev_b32 v12, 6, v12")
    a("v_lshl_add_u32 v12, v10, 5, v12")
    a("v_lshl_add_u32 v12, v11, 3, v12")
    a("v_add_u32 v140, s49, v12")
    a("v_lshlrev_b32 v18, 17, v10")
    a("v_lshl_add_u32 v18, v8, 8, v18")
    a("v_and_b32 v9, 15, v1")
    a("v_lshl_add_u32 v18, v9, 4, v18")
    ACCB, ACCA = 32, 144
    GD = [112, 116, 120, 124, 128, 132, 244, 248]
    for r in range(48):
        a(f"v_mov_b32 v{ACCB+r}, 0")
    for g in GD:
        for r in range(4): a(f"v_mov_b32 v{g+r}, 0")
    a("s_lshr_b32 s47, s58, 5")
    a("s_lshl_b32 s47, s47, 4")
    a("s_add_u32 s47, s47, s59")
    a("s_lshl_b32 s47, s47, 5")
    a("s_and_b32 s31, s58, 31")
    a("s_add_u32 s47, s47, s31")
    a("s_lshl_b32 s47, s47, 10")
    a(f"s_add_u32 s47, s47, {WS_WOF}")
    a("s_mov_b32 s34, 65536")
    a("s_mov_b32 s35, 0")
    a("s_lshl_b32 s60, s2, 7")
    a("s_lshl_b32 s28, s20, 2")
    a("s_add_u32 s60, s60, s28")
    a(f"s_add_u32 s60, s60, {WS_F}")
    a("v_lshlrev_b32 v11, 2, v11")
    a("s_lshl_b32 s28, s20, 10")
    a(f"s_add_u32 s28, s28, {QX}")
    a("v_add_u32 v15, s28, v2")
    a("v_mov_b32 v12, 1")
    a("s_mov_b32 s62, 0")
    D.stamp("setup")
    a("s_barrier")
    D.stamp("b0", slot=0)
    F = [80, 96, 192, 208]
    X2 = [144, 152, 160, 168]
    def wr(f, t, s):
        return [f"ds_read_b64_tr_b16 v[{f+4+4*t}:{f+5+4*t}], v{WA} offset:{t*8192 + (16*s)*128}",
                f"ds_read_b64_tr_b16 v[{f+6+4*t}:{f+7+4*t}], v{WA} offset:{t*8192 + (16*s+4)*128}"]
    def reads(s, ts=(0, 1, 2)):
        f = F[s]
        L = [f"ds_read_b128 v[{f}:{f+3}], v{XA[s]}"]
        for t in ts: L += wr(f, t, s)
        return L
    def xq(s, c): return F[s] if c == 0 else X2[s] + 4*(c-1)
    def reads2(g, s, skip=False):
        L = []
        for c in range(3 if g < 2 else 2):
            if not (skip and c == 0): L.append(f"ds_read_b128 v[{xq(s,c)}:{xq(s,c)+3}], v{XA[s]} offset:{(3*g+c)*8192}")
            if not (skip and c > 0): L += wr(F[s], c, s)
        return L
    def mf(s, ACC, C=None):
        f = F[s]
        return [mfma(ACC+16, f+8, f, C), mfma(ACC+32, f, f+12, C), mfma(ACC, f+4, f, C)]
    def mf2(g, s):
        return [mfma(ACCB, F[s]+4+4*c, xq(s, c)) for c in range(3 if g < 2 else 2)]
    def emit(out):
        for l in out: a(l)
    def kstep(M, R, X=None):
        n = len(M)
        X = X or [[]]*n
        per = (len(R) + n - 1)//n if n < 3 else (len(R) + 1)//2
        for i in range(n):
            emit([M[i]] + R[per*i:per*i+per] + (X[i] if i < len(X) else []))
    def ring_update():
        return ["s_add_u32 s34, s34, 24576",
                "s_cmp_ge_u32 s34, 163840",
                "s_cselect_b32 s28, 98304, 0",
                "s_sub_u32 s34, s34, s28",
                "s_sub_u32 s28, 24576, s28",
                "s_add_u32 s35, s35, 1",
                f"v_add_u32 v{WA}, s28, v{WA}"]
    def addr_update():
        return ring_update() + ["s_cmp_eq_u32 s35, 8",
                "s_cselect_b32 s29, -65536, 0",
                "s_add_u32 s29, s29, 8192"] + [f"v_add_u32 v{r}, s29, v{r}" for r in XA]
    KV = (1, 2)
    emit(reads(0, KV) + reads(1, KV))
    a("s_waitcnt vmcnt(1)")
    a("s_cmp_eq_u32 s2, 0")
    a("s_cbranch_scc1 L_cB")
    a("s_waitcnt vmcnt(0)")
    a("L_cB:")
    for sub in range(2):
        for s in range(4):
            m = 4*sub + s
            G = [f"v_mfma_f32_16x16x32_bf16 v[{GD[m]}:{GD[m]+3}], v[{GV}:{GV+3}], v[{F[s]}:{F[s]+3}], v[{GD[m]}:{GD[m]+3}]"]
            if s == 2:
                a("s_waitcnt lgkmcnt(0)")
                a("s_barrier")
            elif s < 2:
                a("s_waitcnt lgkmcnt(5)")
            au = addr_update()
            X = [[], au[0:7], au[7:]] if s == 1 else [[], [], []]
            sh = [f"v_mov_b32 v{GV+i}, v{GV+i+4}" for i in range(16)]
            if m == 0: X = [sh[0:4], sh[4:6], []]
            if m == 2: X = [sh[6:8], sh[8:11], sh[11:12]]
            if m == 3: X = [sh[12:14], sh[14:16], []]
            kstep(mf(s, ACCB)[0:2] + G, reads((s + 2) % 4, KV), X)
    a("s_cmp_lt_u32 s35, 8")
    a("s_cbranch_scc1 L_cB")
    D.stamp("Bend")
    K0, V0_ = ACCB+16, ACCB+32
    EK = []
    for (r0, vo, so, off) in ((K0, 2, 72, 0), (K0+4, 2, 73, 0), (V0_, 18, 72, 1024), (V0_+4, 18, 72, 1536)):
        b = K0 if r0 < V0_ else V0_
        EK += [f"v_cvt_pk_bf16_f32 v{r}, v{b+2*(r-b)}, v{b+2*(r-b)+1}" for r in range(r0, r0+4)]
        EK += [f"buffer_store_dwordx4 v[{r0}:{r0+3}], v{vo}, s[12:15], s{so} offen offset:{off} sc1"]
    def gq(q):
        return [f"s_lshl_b64 exec, s[76:77], {16*q}",
                f"v_add_f32 v16, v{GD[2*q]}, v{GD[2*q+1]+2}",
                f"v_add_f32 v17, v{GD[2*q]+1}, v{GD[2*q+1]+3}"]
    G1 = gq(0) + gq(1) + ["s_mov_b64 exec, -1"]
    G1b = gq(2) + gq(3) + ["s_mov_b64 exec, -1"]
    G2 = ["v_permlane16_swap_b32 v16, v17",
          "s_nop 1",
          "v_add_f32 v16, v16, v17",
          "v_mov_b32 v17, v16"]
    G2b = ["s_nop 0", "v_permlane32_swap_b32 v16, v17",
          "s_nop 1",
          "v_add_f32 v16, v16, v17",
          f"v_mul_f32 v16, {f2u(-math.log2(math.e))}, v16",
          "v_exp_f32 v16, v16"]
    G3 = ["v_add_f32 v16, 1.0, v16",
          "v_rcp_f32 v136, v16",
          "s_nop 0",
          "v_sub_f32 v16, 1.0, v136"]
    G4 = ["s_mov_b32 exec_hi, 0",
          "buffer_store_dword v16, v19, s[12:15], s74 offen sc1",
          "s_mov_b32 exec_hi, -1"]
    emit(reads2(0, 0, True) + reads2(0, 1, True))
    a("buffer_load_dword v14, v11, s[8:11], 0 offen sc1")
    emit(EK[0:10])
    for g in range(3):
        n = 9 if g < 2 else 6
        for s in range(4):
            if s < 2: R = reads2(g, s + 2)
            else: R = reads2(g + 1, s - 2) if g < 2 else reads(s - 2)
            X = [[], [], []]
            if s == 1: X = [[], ring_update(), []]
            if g == 0 and s == 0: X = [EK[10:13], EK[13:17], EK[17:20]]
            if g == 0 and s == 2: X = [[], G1, G1b]
            if g == 0 and s == 3: X = [[], G2, G2b]
            if g == 1 and s == 0: X = [[], G3, G4]
            if s == 2:
                a("s_waitcnt lgkmcnt(0)")
                a("s_barrier")
            elif s < 2:
                a(f"s_waitcnt lgkmcnt({4 if (g == 0 and s == 0) else n})")
            kstep(mf2(g, s), R, X)
    D.stamp("Qend")
    EQ = []
    for hf in range(2):
        EQ += [f"v_mul_f32 v{ACCB+r}, s75, v{ACCB+r}" for r in range(8*hf, 8*hf+8)]
        EQ += [f"v_cvt_pk_bf16_f32 v{ACCB+r}, v{ACCB+2*r}, v{ACCB+2*r+1}" for r in range(4*hf, 4*hf+4)]
        EQ += [f"buffer_store_dwordx4 v[{ACCB+4*hf}:{ACCB+4*hf+3}], v2, s[12:15], s{70+hf} offen sc1"]
    gaps = [[], [], EQ[0:6], EQ[6:10], EQ[10:13], EQ[13:19], EQ[19:23], EQ[23:26], [], [], [], []]
    for s in range(4):
        X = gaps[3*s:3*s+3]
        if s == 1: X = [X[0], addr_update() + X[1], X[2]]
        if s == 2:
            a("s_waitcnt lgkmcnt(0)")
            a("s_barrier")
        elif s < 2:
            a("s_waitcnt lgkmcnt(7)")
        kstep(mf(s, ACCA, "0" if s == 0 else None), reads((s + 2) % 4), X)
    a("s_waitcnt vmcnt(7)")
    a("v_cmp_ne_u32 vcc, 1, v14")
    a("s_cbranch_vccnz L_hk_slow")
    a("L_hk_ok:")
    a("s_mov_b32 s62, 2")
    a("s_mov_b32 s63, 0")
    D.stamp("Qepi")
    def site(k):
        return ["s_getreg_b32 s28, hwreg(HW_REG_IB_STS)",
                "s_and_b32 s28, s28, 0xc0000f",
                "s_cmp_gt_u32 s28, s62",
                "s_cselect_b32 s28, 1, s63",
                "s_cmp_eq_u32 s28, 0"], [f"s_cbranch_scc1 L_fl{k}", f"L_fl{k}_ret:"]
    a(".p2align 4")
    a("L_cA:")
    for s in range(2):
        a("s_waitcnt lgkmcnt(7)")
        if s == 0:
            S0, S1 = site(0)
            kstep(mf(s, ACCA), reads(s + 2), [[], S0, S1])
        else:
            kstep(mf(s, ACCA), reads(s + 2), [[], addr_update(), []])
    a("s_cmp_eq_u32 s35, 19")
    a("s_waitcnt lgkmcnt(0)")
    a("s_cbranch_scc1 L_lastA")
    a("s_barrier")
    S0, S1 = site(1)
    kstep(mf(2, ACCA), reads(0), [[], S0, S1])
    kstep(mf(3, ACCA), reads(1))
    a("s_branch L_cA")
    for k in range(2):
        a(f"L_fl{k}:")
        a("s_cmp_eq_u32 s62, 2")
        a("s_mov_b64 exec, 1")
        a(f"s_cbranch_scc1 L_fl{k}a")
        a("s_waitcnt vmcnt(1)")
        a(f"L_fl{k}a:")
        a("s_waitcnt vmcnt(2)")
        a("buffer_store_dword v12, v139, s[12:15], s60 offen sc1")
        a("s_mov_b64 exec, -1")
        if D.on:
            a("s_cmp_eq_u32 s62, 2")
            a(f"s_cbranch_scc0 L_fl{k}b")
            D.stamp("flag1")
            a(f"s_branch L_fl{k}c")
            a(f"L_fl{k}b:")
            D.stamp("flag2")
            a(f"L_fl{k}c:")
        a("s_cmp_eq_u32 s62, 2")
        a("s_cselect_b32 s63, 0, 1")
        a("s_mov_b32 s62, 1")
        a("v_mov_b32 v12, 2")
        a(f"s_branch L_fl{k}_ret")
    a("L_hk_slow:")
    a("buffer_load_dword v14, v11, s[8:11], 0 offen sc1")
    a("s_add_u32 s62, s62, 1")
    a(f"s_cmp_gt_u32 s62, {SPIN_MAX}")
    a("s_waitcnt vmcnt(0)")
    a("s_cbranch_scc1 L_hk_ok")
    a("v_cmp_ne_u32 vcc, 1, v14")
    a("s_cbranch_vccz L_hk_ok")
    a("s_sleep 4")
    a("s_branch L_hk_slow")
    a("L_qslow:")
    a("s_lshr_b32 s28, s56, 1")
    a("s_and_b32 s30, s26, 6")
    a("s_lshr_b32 s29, s28, 4")
    a("s_add_u32 s30, s30, s29")
    a("s_and_b32 s29, s28, 15")
    a("s_lshl_b32 s29, s29, 3")
    a("s_add_u32 s30, s30, s29")
    a("s_and_b32 s29, s26, 1")
    a("s_lshl_b32 s29, s29, 7")
    a("s_add_u32 s30, s30, s29")
    a("s_lshl_b32 s30, s30, 5")
    a("s_and_b32 s29, s21, 2")
    a("s_add_u32 s30, s30, s29")
    a("s_and_b32 s29, s56, 1")
    a("s_add_u32 s30, s30, s29")
    a("s_lshl_b32 s30, s30, 2")
    a(f"s_add_u32 s30, s30, {WS_F}")
    a("s_mov_b32 s31, 0")
    a("L_qspin:")
    a("buffer_load_dword v24, v139, s[12:15], s30 offen sc1")
    a("s_add_u32 s31, s31, 1")
    a("s_waitcnt vmcnt(0)")
    a("v_readfirstlane_b32 s28, v24")
    a(f"s_cmp_gt_u32 s31, {SPIN_MAX}")
    a("s_cbranch_scc1 L_qgo")
    a("s_cmp_ge_u32 s28, 2")
    a("s_cbranch_scc1 L_qgo")
    a("s_sleep 1")
    a("s_branch L_qspin")
    a("L_qgo:")
    a("s_lshl_b32 s30, s21, 16")
    a("s_lshl_b32 s28, s56, 10")
    a("s_add_u32 s30, s30, s28")
    a(f"buffer_load_dwordx4 v[{Q}:{Q+3}], v2, s[12:15], s30 offen sc1")
    a("s_waitcnt vmcnt(0)")
    a("s_branch L_main")
    a("L_flate:")
    a("v_mov_b32 v12, 2")
    a("s_mov_b64 exec, 1")
    a("s_waitcnt vmcnt(0)")
    a("buffer_store_dword v12, v139, s[12:15], s60 offen sc1")
    a("s_mov_b64 exec, -1")
    a("s_branch L_flate_ret")
    a("L_lastA:")
    Z = [f"v_mov_b32 v{72+r}, 0" for r in range(8)] + [f"v_mov_b32 v{V0+r}, 0" for r in range(8)] + [f"v_mov_b32 v{80+r}, 0" for r in range(16)]
    M = mf(2, ACCA) + mf(3, ACCA)
    Z0 = ["s_mov_b32 m0, s49", "s_lshl_b32 s30, s61, 12", f"s_add_u32 s30, s30, {WS_HALO}", "s_cmp_eq_u32 s63, 0", "s_mov_b32 s62, 0", "s_mov_b32 s63, 2"]
    for i in range(6):
        a(M[i])
        emit(Z[6*i:6*i+6])
        if i == 4: emit(Z0)
    a("s_cbranch_scc1 L_flate")
    a("L_flate_ret:")
    a("buffer_load_dwordx4 v138, s[16:19], s48 offen lds")
    a("s_lshl_b32 s28, s20, 2")
    a(f"s_add_u32 s28, s28, {DN+16}")
    a("v_mov_b32 v14, s28")
    D.stamp("Aend")
    QA, KA, VA = 112, 120, 128
    for r in range(8):
        a(f"v_cvt_pk_bf16_f32 v{KA+r}, v{ACCA+16+2*r}, v{ACCA+16+2*r+1}")
    for r in range(4, 8):
        a(f"v_cvt_pk_bf16_f32 v{VA+r}, v{ACCA+32+2*r}, v{ACCA+32+2*r+1}")
    a("s_mov_b32 exec_lo, 0xff000000")
    a("s_mov_b32 exec_hi, 0xff000000")
    a(f"buffer_store_dwordx4 v[{KA}:{KA+3}], v2, s[12:15], s30 offen sc1")
    a(f"buffer_store_dwordx4 v[{KA+4}:{KA+7}], v2, s[12:15], s30 offen offset:1024 sc1")
    a("s_mov_b64 exec, -1")
    a(f"v_mov_b32 v24, v{VA+6}")
    a(f"v_mov_b32 v25, v{VA+7}")
    a(f"v_mov_b32 v26, v{VA+6}")
    a(f"v_mov_b32 v27, v{VA+7}")
    a("s_nop 0")
    a("v_permlane32_swap_b32 v24, v26")
    a("v_permlane32_swap_b32 v25, v27")
    a("s_mov_b32 exec_hi, 0")
    a("buffer_store_dwordx4 v[24:27], v2, s[12:15], s30 offen offset:2048 sc1")
    a("s_mov_b32 exec_hi, -1")
    D.stamp("Aepi")
    a("s_barrier")
    D.stamp("F")
    a(f"ds_read_b128 v[{Q}:{Q+3}], v15")
    a("ds_read_b32 v24, v14")
    for r in range(4):
        a(f"v_cvt_pk_bf16_f32 v{VA+r}, v{ACCA+32+2*r}, v{ACCA+32+2*r+1}")
    for r in range(16):
        a(f"v_mul_f32 v{ACCA+r}, s75, v{ACCA+r}")
    for r in range(8):
        a(f"v_cvt_pk_bf16_f32 v{QA+r}, v{ACCA+2*r}, v{ACCA+2*r+1}")
    a("s_waitcnt lgkmcnt(0)")
    a("v_cmp_ne_u32 vcc, 0, v24")
    a("s_cbranch_vccnz L_qslow")

    S = [32, 48]; P = [64, 72]; O = 80; NM = 96
    a("L_main:")
    a("s_setprio 3")
    D.stamp("main")
    a(f"ds_read_b128 v[{KF}:{KF+3}], v2")
    a("v_and_b32 v24, 31, v1")
    a("v_lshrrev_b32 v25, 5, v1")
    a("v_lshlrev_b32 v6, 4, v24")
    a("v_lshl_add_u32 v6, v25, 8, v6")
    a("v_mov_b32 v5, 2048")
    if opt.get("zrow", 0):
        a("v_and_b32 v26, 27, v24")
        a("v_mov_b32 v27, 0x40000")
        a("v_cmp_eq_u32 vcc, 16, v26")
        a("s_nop 1")
        a("v_cndmask_b32 v5, v27, v5, vcc")
    a("v_cmp_gt_u32 vcc, 16, v24")
    a("v_add_u32 v3, 1024, v6")
    a("v_add_u32 v4, 1536, v6")
    a("v_cndmask_b32 v3, v5, v3, vcc")
    a("v_cndmask_b32 v4, v5, v4, vcc")
    a("v_mov_b32 v5, v2")
    a("s_mov_b32 s38, 0")
    a("s_waitcnt lgkmcnt(0)")
    a(mfma(S[0], KF, Q, "0"))
    a("s_nop 7")
    a("s_nop 3")
    a(f"v_max3_f32 v26, v{S[0]}, v{S[0]+1}, v{S[0]+2}")
    a(f"v_max3_f32 v27, v{S[0]+3}, v{S[0]+4}, v{S[0]+5}")
    for i in range(2):
        a(f"v_max3_f32 v26, v26, v{S[0]+6+4*i}, v{S[0]+7+4*i}")
        a(f"v_max3_f32 v27, v27, v{S[0]+8+4*i}, v{S[0]+9+4*i}")
    a(f"v_max3_f32 v26, v26, v{S[0]+14}, v{S[0]+15}")
    a("v_max_f32 v26, v26, v27")
    a("L_setmax:")
    a("v_mov_b32 v27, v26")
    a("s_nop 1")
    a("v_permlane32_swap_b32 v26, v27")
    a("s_nop 1")
    a("v_max_f32 v26, v26, v27")
    for r in range(16):
        a(f"v_sub_f32 v{NM+r}, 0, v26")
    a("s_nop 1")
    a(mfma(S[0], KF, Q, NM))
    a(f"ds_read_b128 v[{KF}:{KF+3}], v5 offset:{TS}")
    a("s_mov_b32 s39, 0")
    a("s_nop 7")
    a("s_nop 1")
    a("s_waitcnt lgkmcnt(0)")
    D.stamp("loop")
    def body():
        for u in range(U):
            cur, nxt = S[u & 1], S[(u+1) & 1]
            Pc, Pp = P[u & 1], P[(u+1) & 1]
            ex = [f"v_exp_f32 v{cur+i}, v{cur+i}" for i in range(16)]
            cv = [f"v_cvt_pk_bf16_f32 v{Pc+i}, v{cur+2*i}, v{cur+2*i+1}" for i in range(8)]
            if u == U//2:
                a("s_cmp_eq_u32 s39, s62")
                a("s_cbranch_scc1 L_mid")
                a("L_mid_ret:")
            a(mfma(nxt, KF, Q, NM))
            a(f"ds_read_b128 v[{KF}:{KF+3}], v5 offset:{(u+2)*TS}")
            for l in ex[0:4] + [cv[0]] + ex[4:6] + [cv[1]]: a(l)
            a("s_waitcnt lgkmcnt(2)")
            a(mfma(O, V0, Pp))
            a(f"ds_read_b128 v[{V0}:{V0+3}], v3 offset:{u*TS}")
            for l in ex[6:8] + [cv[2]] + ex[8:10] + [cv[3]] + ex[10:12] + [cv[4]]: a(l)
            a("s_waitcnt lgkmcnt(2)")
            a(mfma(O, V1, Pp+4))
            a(f"ds_read_b128 v[{V1}:{V1+3}], v4 offset:{u*TS}")
            for l in ex[12:14] + [cv[5]] + ex[14:16] + [cv[6]]: a(l)
            if u == U-1:
                a(f"v_add_u32 v5, {TS*U}, v5")
                a(f"v_add_u32 v3, {TS*U}, v3")
                a(f"v_add_u32 v4, {TS*U}, v4")
                a("s_add_u32 s39, s39, 1")
                a("s_cmp_eq_u32 s39, s63")
            a("s_waitcnt lgkmcnt(2)")
            a(cv[7])
    a(".p2align 6")
    a("L_loop:")
    body()
    a("s_cbranch_scc1 L_endh")
    a("L_endh_ret:")
    a(f"s_cmp_lt_u32 s39, {64//U}")
    a("s_cbranch_scc1 L_loop")
    a("s_waitcnt lgkmcnt(0)")
    a(mfma(O, V0, P[1]))
    a(mfma(O, V1, P[1]+4))
    D.stamp("loopend")
    a(f"s_mov_b32 s40, {f2u(2.0**100)}")
    a("s_nop 7")
    a("s_nop 3")
    a(f"v_mul_f32 v26, 0, v{O}")
    for r in range(1, 8):
        a(f"v_fma_f32 v26, v{O+r}, 0, v26")
    a(f"v_add_f32 v26, v26, v{O+8}")
    a(f"v_rcp_f32 v27, v{O+8}")
    a("v_cmp_nlt_f32 vcc, v26, s40")
    a("s_cmp_eq_u32 s38, 0")
    a("s_cbranch_scc0 L_fin")
    a("s_nop 1")
    a("s_cbranch_vccnz L_fallback")
    a("L_fin:")
    a(f"v_mul_f32 v27, v27, v{GB}")
    for r in range(8):
        a(f"v_mul_f32 v{O+r}, v{O+r}, v27")
    for i in range(4):
        a(f"v_cvt_pk_bf16_f32 v{O+i}, v{O+2*i}, v{O+2*i+1}")
    for i in range(4):
        a(f"v_min_u32 v{O+i}, -2, v{O+i}")
    a(f"buffer_store_dwordx4 v[{O}:{O+3}], v2, s[12:15], s57 offen sc1")

    AC = [144, 160]; WF = 176
    OF = [112, 116, 120, 124, 128, 132, 240, 244]
    a("s_cmp_ge_u32 s20, 4")
    a("s_cbranch_scc0 L_t0")
    a("s_barrier")
    a("L_t0:")
    a(f"s_add_u32 s30, s44, {WS_OB}")
    a(f"s_add_u32 s31, s44, {WS_OB + 4096}")
    a("s_mov_b32 s33, 0")
    a("s_mov_b32 s34, 0xff")
    a("s_mov_b32 s35, -2")
    def oload(k):
        a(f"buffer_load_dwordx4 v[{OF[k]}:{OF[k]+3}], v2, s[12:15], s{30 + k//4} offen offset:{(k%4)*1024} sc1")
    for k in range(8): oload(k)
    a("L_tr:")
    for k in range(8):
        a(f"s_bitcmp1_b32 s34, {k}")
        a(f"s_cbranch_scc0 L_tk{k}")
        a(f"s_waitcnt vmcnt({7-k})")
        a(f"v_max3_u32 v24, v{OF[k]}, v{OF[k]+1}, v{OF[k]+2}")
        a(f"v_max_u32 v24, v24, v{OF[k]+3}")
        a("v_cmp_lt_u32 vcc, s35, v24")
        a(f"s_cbranch_vccnz L_tk{k}")
        a(mfma(AC[0], WF+4*k, OF[k]))
        a(mfma(AC[1], WF+32+4*k, OF[k]))
        a(f"s_bitset0_b32 s34, {k}")
        a(f"L_tk{k}:")
    a("s_cmp_eq_u32 s34, 0")
    a("s_cbranch_scc0 L_tagain")
    D.stamp("polled")
    a("s_nop 7")
    a("s_nop 3")
    for p in range(1, 4):
        for part in range(2):
            r = AC[0] + 8*p + 4*part
            a(f"ds_write_b128 v{27+p}, v[{r}:{r+3}] offset:{1024*part}")
    a("s_cmp_ge_u32 s20, 4")
    a("s_waitcnt lgkmcnt(0)")
    a("s_cbranch_scc1 L_t1")
    a("s_barrier")
    a("L_t1:")
    a("s_barrier")
    for i in range(6):
        a(f"ds_read_b128 v[{32+4*i}:{35+4*i}], v31 offset:{1024*i}")
    for p in range(3):
        a(f"s_waitcnt lgkmcnt({4-2*p})")
        for r in range(8):
            a(f"v_add_f32 v{AC[0]+r}, v{AC[0]+r}, v{32+8*p+r}")
    for i in range(4):
        a(f"v_cvt_pk_bf16_f32 v{32+i}, v{AC[0]+2*i}, v{AC[0]+2*i+1}")
    a("s_nop 1")
    a("v_permlane32_swap_b32 v32, v34")
    a("v_permlane32_swap_b32 v33, v35")
    a("s_nop 1")
    a("buffer_store_dwordx4 v[32:35], v6, s[16:19], s45 offen" + (" sc1" if opt.get("outsc1") else ""))
    if D.on:
        a("s_waitcnt vmcnt(0)")
        D.stamp("end"); D.stamp("rtend", True, slot=63)
        D.flush()
    a("L_end:")
    a("s_endpgm")
    a("L_tagain:")
    a("s_add_u32 s33, s33, 1")
    a(f"s_cmp_gt_u32 s33, {SPIN_MAX}")
    a("s_cselect_b32 s35, -1, s35")
    if opt.get("tsleep", 1): a(f"s_sleep {opt.get('tsleep', 1)}")
    for k in range(8):
        a(f"s_bitcmp1_b32 s34, {k}")
        a(f"s_cbranch_scc0 L_tl{k}")
        oload(k)
        a(f"L_tl{k}:")
    a("s_waitcnt vmcnt(0)")
    a("s_branch L_tr")
    a("L_fallback:")
    a("s_mov_b32 s38, 1")
    a("v_mov_b32 v5, v2")
    a(f"v_subrev_u32 v3, {TS*64}, v3")
    a(f"v_subrev_u32 v4, {TS*64}, v4")
    a(f"v_mov_b32 v26, {f2u(-3.0e38)}")
    a("s_mov_b32 s39, 0")
    a("L_fb_loop:")
    a(f"ds_read_b128 v[{KF}:{KF+3}], v5")
    a(f"v_add_u32 v5, {TS}, v5")
    a("s_waitcnt lgkmcnt(0)")
    a(mfma(S[0], KF, Q, "0"))
    a("s_nop 7")
    a("s_nop 3")
    for i in range(8):
        a(f"v_max3_f32 v26, v26, v{S[0]+2*i}, v{S[0]+2*i+1}")
    a("s_add_u32 s39, s39, 1")
    a("s_cmp_lt_u32 s39, 64")
    a("s_cbranch_scc1 L_fb_loop")
    a("v_mov_b32 v5, v2")
    a(f"ds_read_b128 v[{KF}:{KF+3}], v5")
    for r in range(8):
        a(f"v_mov_b32 v{P[1]+r}, 0")
        a(f"v_mov_b32 v{V0+r}, 0")
    for r in range(16):
        a(f"v_mov_b32 v{O+r}, 0")
    a("s_waitcnt lgkmcnt(0)")
    a("s_branch L_setmax")

    def setflag(val):
        a("s_mov_b64 exec, 1")
        a(f"v_mov_b32 v28, {val}")
        a("buffer_store_dword v28, v139, s[12:15], s60 offen sc1")
        a("s_mov_b64 exec, -1")
    a("L_mid:")
    a("s_cmp_eq_u32 s39, 5")
    a("s_cbranch_scc1 L_H1")
    a("s_cmp_eq_u32 s39, 0")
    a("s_waitcnt vmcnt(0)")
    a("s_cbranch_scc0 L_HW2")
    a("ds_read_b64_tr_b16 v[24:25], v140")
    a("ds_read_b64_tr_b16 v[26:27], v140 offset:512")
    setflag(3)
    a("s_mov_b32 s62, 2")
    a("s_waitcnt lgkmcnt(0)")
    a("buffer_store_dwordx4 v[24:27], v2, s[12:15], s47 offen sc1")
    a("s_branch L_mid_ret")
    a("L_HW2:")
    setflag(4)
    a("s_mov_b32 s62, 5")
    a("s_branch L_mid_ret")
    a("L_H1:")
    a("s_mov_b32 s62, 99")
    a("s_and_b32 s28, s20, 3")
    a("s_lshr_b32 s29, s21, 2")
    a("s_lshl_b32 s30, s29, 3")
    a("s_and_b32 s31, s21, 3")
    a("s_add_u32 s30, s30, s31")
    a("s_and_b32 s31, s20, 4")
    a("s_add_u32 s30, s30, s31")
    a("s_lshr_b32 s31, s28, 1")
    a("s_lshl_b32 s32, s22, 1")
    a("s_add_u32 s42, s32, s31")
    a("s_xor_b32 s43, s42, 1")
    a("s_lshl_b32 s33, s28, 13")
    a("s_lshl_b32 s42, s42, 15")
    a("s_lshl_b32 s43, s43, 15")
    a("s_add_u32 s42, s42, s33")
    a("s_add_u32 s43, s43, s33")
    a(f"s_add_u32 s42, s42, {WS_WOF}")
    a(f"s_add_u32 s43, s43, {WS_WOF}")
    a("s_lshl_b32 s44, s30, 15")
    a("s_add_u32 s44, s44, s33")
    a("s_and_b32 s33, s22, 6")
    a("s_and_b32 s41, s22, 1")
    a("s_lshl_b32 s41, s41, 7")
    a("s_add_u32 s33, s33, s41")
    a("s_lshl_b32 s41, s28, 5")
    a("s_add_u32 s33, s33, s41")
    a("v_bfe_u32 v26, v1, 2, 2")
    a("v_lshlrev_b32 v26, 3, v26")
    a("v_bfe_u32 v27, v1, 4, 1")
    a("v_add3_u32 v26, v26, v27, s33")
    a("s_lshl_b32 s41, s28, 1")
    a("s_lshr_b32 s33, s30, 5")
    a("s_add_u32 s33, s33, s41")
    a("s_bfe_u32 s46, s30, 0x40001")
    a("s_lshl_b32 s46, s46, 3")
    a("s_add_u32 s33, s33, s46")
    a("v_bfe_u32 v27, v1, 2, 1")
    a("v_lshlrev_b32 v25, 7, v27")
    a("v_add_u32 v25, s33, v25")
    a("v_cmp_gt_u32 vcc, 32, v1")
    a("v_and_b32 v24, 3, v1")
    a("s_nop 0")
    a("v_cndmask_b32 v26, v25, v26, vcc")
    a("v_lshlrev_b32 v26, 7, v26")
    a("v_lshl_add_u32 v26, v24, 2, v26")
    a("s_lshr_b32 s33, s30, 3")
    a("s_lshl_b32 s33, s33, 5")
    a("s_add_u32 s33, s33, s41")
    a("v_lshl_add_u32 v25, v24, 3, v27")
    a("v_add_u32 v25, s33, v25")
    a("v_lshlrev_b32 v25, 7, v25")
    a("s_and_b32 s33, s30, 3")
    a("s_lshl_b32 s33, s33, 2")
    a("v_add_u32 v25, s33, v25")
    a("v_cmp_gt_u32 vcc, 48, v1")
    a(f"s_mov_b32 s41, {WS_F}")
    a("s_nop 0")
    a("v_cndmask_b32 v26, v25, v26, vcc")
    a("buffer_load_dword v24, v26, s[12:15], s41 offen sc1")
    a("s_lshr_b32 s46, s21, 1")
    a("s_lshl_b32 s46, s46, 6")
    a("s_add_u32 s46, s46, s56")
    a("s_lshl_b32 s46, s46, 7")
    a(f"s_add_u32 s46, s46, {WS_G}")
    a("v_and_b32 v27, 31, v1")
    a("v_lshlrev_b32 v27, 2, v27")
    a(f"buffer_load_dword v{GB}, v27, s[12:15], s46 offen sc1")
    a("s_and_b32 s33, s28, 1")
    a("s_lshl_b32 s33, s33, 8")
    a("v_xor_b32 v7, s33, v2")
    a("s_cmp_lt_u32 s20, 4")
    a(f"s_cselect_b32 s29, {XCH}, 0")
    for p in range(1, 4):
        a(f"s_xor_b32 s33, s28, {p}")
        a("s_mul_i32 s33, s33, 6144")
        a("s_add_u32 s33, s33, s29")
        a(f"s_add_u32 s33, s33, {(p-1)*2048}")
        a(f"v_add_u32 v{27+p}, s33, v2")
    a("s_mul_i32 s33, s28, 6144")
    a("s_add_u32 s33, s33, s29")
    a("v_add_u32 v31, s33, v2")
    a("v_and_b32 v6, 31, v1")
    a("v_lshlrev_b32 v6, 11, v6")
    a("v_lshrrev_b32 v138, 5, v1")
    a("v_lshl_add_u32 v6, v138, 4, v6")
    a("s_lshr_b32 s33, s30, 1")
    a("s_lshl_b32 s33, s33, 6")
    a("s_and_b32 s45, s30, 1")
    a("s_add_u32 s33, s33, s45")
    a("s_lshl_b32 s33, s33, 10")
    a("s_lshl_b32 s45, s22, 7")
    a("s_add_u32 s45, s45, s33")
    a("s_lshl_b32 s33, s28, 5")
    a("s_add_u32 s45, s45, s33")
    a("s_mov_b32 s16, s50")
    a("s_mov_b32 s17, s51")
    a("s_mov_b32 s18, 0x200000")
    a("s_mov_b32 s19, 0x00020000")
    a("s_branch L_mid_ret")

    a("L_endh:")
    a("s_cmp_eq_u32 s39, 1")
    a("s_cbranch_scc1 L_T")
    a("s_cmp_eq_u32 s39, 2")
    a("s_cbranch_scc1 L_G")
    a("s_cmp_eq_u32 s39, 6")
    a("s_cbranch_scc1 L_H2")
    a("s_cmp_eq_u32 s39, 7")
    a("s_cbranch_scc1 L_H3")
    a("s_setprio 2")
    a("s_mov_b32 s63, 6")
    a("s_branch L_endh_ret")
    def wload(br):
        for pct in range(2):
            for k in range(8):
                if k % 4 == 0:
                    a(f"s_add_u32 s33, s{42+pct}, {br*512*1024 + 1024*k}")
                r = WF + 32*pct + 4*k
                a(f"buffer_load_dwordx4 v[{r}:{r+3}], v7, s[12:15], s33 offen offset:{(k%4)*1024} sc1")
    a("L_H2:")
    a("s_setprio 1")
    a("s_mov_b32 s63, 7")
    a("s_mov_b32 s33, 0")
    a("L_H2_chk:")
    a("s_waitcnt vmcnt(0)")
    a("v_cmp_ne_u32 vcc, 4, v24")
    a("s_add_u32 s33, s33, 1")
    a(f"s_cmp_gt_u32 s33, {SPIN_MAX}")
    a("s_cbranch_scc1 L_H2_go")
    a("s_cbranch_vccz L_H2_go")
    a("s_sleep 2")
    a("buffer_load_dword v24, v26, s[12:15], s41 offen sc1")
    a("s_branch L_H2_chk")
    a("L_H2_go:")
    a(f"s_add_u32 s30, s44, {WS_OA}")
    a(f"s_add_u32 s31, s44, {WS_OA + 4096}")
    for k in range(8): oload(k)
    wload(0)
    a("s_branch L_endh_ret")
    a("L_H3:")
    a("s_setprio 0")
    a("s_mov_b32 s63, 99")
    a("s_waitcnt vmcnt(0)")
    for k in range(8):
        a(mfma(AC[0], WF+4*k, OF[k], "0" if k == 0 else None))
        a(mfma(AC[1], WF+32+4*k, OF[k], "0" if k == 0 else None))
    wload(1)
    a("s_branch L_endh_ret")

    a("L_G:")
    a("s_mov_b32 s63, 4")
    a(f"v_mov_b32 v28, {DN}")
    a("s_mov_b32 s31, 0")
    a("L_G_chk:")
    a("ds_read_b128 v[24:27], v28")
    a("s_add_u32 s31, s31, 1")
    a("s_waitcnt lgkmcnt(0)")
    a("v_and_b32 v24, v24, v25")
    a("v_and_b32 v26, v26, v27")
    a("v_and_b32 v24, v24, v26")
    a(f"s_cmp_gt_u32 s31, {8*SPIN_MAX}")
    a("v_cmp_eq_u32 vcc, 0, v24")
    a("s_cbranch_scc1 L_G_go")
    a("s_cbranch_vccz L_G_go")
    a("s_sleep 2")
    a("s_branch L_G_chk")
    a("L_G_go:")
    D.stamp("G")
    a("s_cmp_ge_u32 s20, 4")
    a("s_cbranch_scc1 L_endh_ret")
    KP, VP, ONES, PP = 140, 148, 152, 156
    MC, MP, SC, SP, OA, LL = 160, 176, 192, 208, 224, 240
    a(f"s_mov_b32 s44, {f2u(1000.0)}")
    a("s_cmp_eq_u32 s23, 0")
    a("s_cbranch_scc1 L_A_nohalo")
    a("s_mov_b32 s44, 0")
    a("s_and_b32 s30, s23, 15")
    a("s_cmp_eq_u32 s30, 0")
    a(f"s_cselect_b32 s30, {127*128}, 0")
    a("s_add_u32 s30, s30, s60")
    a(f"s_sub_u32 s30, s30, {8*128}")
    a("s_mov_b32 s31, 0")
    a("L_A_poll:")
    a("buffer_load_dword v24, v139, s[12:15], s30 offen sc1")
    a("s_add_u32 s31, s31, 1")
    a("s_waitcnt vmcnt(0)")
    a("v_readfirstlane_b32 s28, v24")
    a(f"s_cmp_gt_u32 s31, {SPIN_MAX}")
    a("s_cbranch_scc1 L_A_go")
    a("s_cmp_ge_u32 s28, 3")
    a("s_cbranch_scc1 L_A_go")
    a("s_sleep 2")
    a("s_branch L_A_poll")
    a("L_A_go:")
    a("s_sub_u32 s30, s61, 32")
    a("s_lshl_b32 s30, s30, 12")
    a(f"s_add_u32 s30, s30, {WS_HALO}")
    a(f"buffer_load_dwordx4 v[{KP}:{KP+3}], v2, s[12:15], s30 offen sc1")
    a(f"buffer_load_dwordx4 v[{KP+4}:{KP+7}], v2, s[12:15], s30 offen offset:1024 sc1")
    a("v_and_b32 v24, 31, v1")
    a("v_lshrrev_b32 v25, 5, v1")
    a("v_lshlrev_b32 v24, 4, v24")
    a("v_lshl_add_u32 v24, v25, 3, v24")
    a(f"v_mov_b32 v{VP}, 0")
    a(f"v_mov_b32 v{VP+1}, 0")
    a(f"buffer_load_dwordx2 v[{VP+2}:{VP+3}], v24, s[12:15], s30 offen offset:2048 sc1")
    a("s_branch L_A_masks")
    a("L_A_nohalo:")
    for r in range(8):
        a(f"v_mov_b32 v{KP+r}, v{KA+r}")
    for r in range(4):
        a(f"v_mov_b32 v{VP+r}, v{VA+4+r}")
    a("L_A_masks:")
    a("v_and_b32 v24, 31, v1")
    a("v_lshrrev_b32 v25, 5, v1")
    a("v_lshlrev_b32 v26, 2, v25")
    a("v_sub_u32 v26, v24, v26")
    a("v_cvt_f32_i32 v26, v26")
    a(f"v_add_f32 v26, {f2u(-3.5)}, v26")
    a("v_add_f32 v28, s44, v26")
    a(f"s_mov_b32 s45, {f2u(-1e30)}")
    for r in range(16):
        cst = 8*(r//4) + (r % 4)
        a(f"v_subrev_f32 v{MC+r}, {f2u(float(cst))}, v26")
    for b in range(4):
        a(f"v_subrev_f32 v{MP+12+b}, {f2u(float(b-8))}, v28")
    regs = [MC+r for r in range(16)] + [MP+12+b for b in range(4)]
    for r in regs:
        a(f"v_add_f32_e64 v{r}, |v{r}|, -4.0 clamp")
    for r in regs:
        a(f"v_mul_f32 v{r}, s45, v{r}")
    for r in range(12):
        a(f"v_mov_b32 v{MP+r}, 0")
    for r in range(4):
        a(f"v_mov_b32 v{ONES+r}, 0x3f803f80")
    a(f"v_mov_b32 v{PP}, 0")
    a(f"v_mov_b32 v{PP+1}, 0")
    a("s_lshl_b32 s30, s58, 15")
    a("s_lshl_b32 s28, s59, 11")
    a("s_add_u32 s30, s30, s28")
    a(f"s_add_u32 s30, s30, {WS_OA}")
    a("s_waitcnt vmcnt(0)")
    for e in range(2):
        a(mfma(SC, KA+4*e, QA+4*e, MC))
        a(mfma(SP, KP+4*e, QA+4*e, MP))
        a("s_nop 7")
        a("s_nop 2")
        a(f"v_max3_f32 v26, v{SC}, v{SC+1}, v{SC+2}")
        a(f"v_max3_f32 v27, v{SC+3}, v{SC+4}, v{SC+5}")
        a(f"v_max3_f32 v26, v26, v{SC+6}, v{SC+7}")
        a(f"v_max3_f32 v27, v27, v{SC+8}, v{SC+9}")
        a(f"v_max3_f32 v26, v26, v{SC+10}, v{SC+11}")
        a(f"v_max3_f32 v27, v27, v{SC+12}, v{SC+13}")
        a(f"v_max3_f32 v26, v26, v{SC+14}, v{SC+15}")
        a(f"v_max3_f32 v27, v27, v{SP+12}, v{SP+13}")
        a(f"v_max3_f32 v26, v26, v{SP+14}, v{SP+15}")
        a("v_max_f32 v26, v26, v27")
        a("v_mov_b32 v27, v26")
        a("s_nop 1")
        a("v_permlane32_swap_b32 v26, v27")
        a("s_nop 1")
        a("v_max_f32 v26, v26, v27")
        sregs = [SC+r for r in range(16)] + [SP+12+b for b in range(4)]
        for r in sregs:
            a(f"v_sub_f32 v{r}, v{r}, v26")
        for r in sregs:
            a(f"v_exp_f32 v{r}, v{r}")
        a(f"v_cvt_pk_bf16_f32 v{PP+2}, v{SP+12}, v{SP+13}")
        for i in range(8):
            a(f"v_cvt_pk_bf16_f32 v{SC+i}, v{SC+2*i}, v{SC+2*i+1}")
        a(f"v_cvt_pk_bf16_f32 v{PP+3}, v{SP+14}, v{SP+15}")
        a("s_nop 0")
        a(mfma(LL, ONES, SC, "0"))
        a(mfma(OA, VA, SC, "0"))
        a(mfma(LL, ONES, SC+4))
        a(mfma(OA, VA+4, SC+4))
        a(mfma(LL, ONES, PP))
        a(mfma(OA, VP, PP))
        a("s_nop 7")
        a("s_nop 2")
        a(f"v_rcp_f32 v26, v{LL}")
        a("s_nop 0")
        a("v_mul_f32 v26, v26, v136")
        for r in range(8):
            a(f"v_mul_f32 v{OA+8*e+r}, v{OA+8*e+r}, v26")
        for i in range(4):
            a(f"v_cvt_pk_bf16_f32 v{28+i}, v{OA+8*e+2*i}, v{OA+8*e+2*i+1}")
        a(f"buffer_store_dwordx4 v[28:31], v2, s[12:15], s30 offen offset:{1024*e} sc1")
    for r in range(4): a(f"v_mov_b32 v{MC+r}, -1")
    a(f"buffer_store_dwordx4 v[{MC}:{MC+3}], v2, s[12:15], s57 offen sc1")
    a(f"buffer_store_dwordx4 v[{MC}:{MC+3}], v2, s[12:15], s78 offen sc1")
    D.stamp("Aattn")
    a("s_branch L_endh_ret")
    if D.on:
        json.dump(D.names, open("names3.json", "w"))
    return 256

HEADER = open("gated_mix__sliding_local_dilated__softmax_full_mha__prompt.s.ref").read().split("; Override launch")[0]

def main(out, opt):
    a = Asm()
    n = gen(a, opt)
    a("L_code_end:")
    a("s_endpgm")
    s = HEADER
    s += "; generated by gen/gen6.py (hand-written generator)\n"
    s += "; @launch grid=(256,1,1) block=(512,1,1) lds=163840\n"
    s += '.amdgcn_target "amdgcn-amd-amdhsa--gfx950"\n.text\n'
    s += a.text()
    s += kd("KNAME", n)
    open(out, "w").write(s.replace("KNAME", KN))

if __name__ == "__main__":
    out = sys.argv[1] if len(sys.argv) > 1 else "gated_mix__sliding_local_dilated__softmax_full_mha__prompt.s"
    opt = {}
    for kv in sys.argv[2:]:
        k, v = kv.split("=")
        opt[k] = int(v)
    main(out, opt)
```

```python
import sys, math, struct, json
from asmlib import *

MB = 1 << 20
WS_QB   = 0
WS_KV   = 2*MB
WS_HALO = 6*MB
WS_OA   = 10*MB
WS_OB   = 12*MB
WS_WOF  = 14*MB
WS_G    = 15*MB
WS_F    = 15*MB + 256*1024
WS_SIZE = 16*MB
DIAG_BASE = 32*MB
QSCALE = 0.25 * math.log2(math.e)
TS = 2064
XCH = 64*TS
SCR = XCH + 24576
SPIN_MAX = 40000
KN = "gated_mix__sliding_local_dilated__softmax_full_mha__prompt_kernel"
def f2u(x): return struct.unpack("<I", struct.pack("<f", x))[0]

class Diag:
    def __init__(self, a, opt):
        self.a, self.on = a, opt.get("diag", 0)
        self.names = {}
        self.n = 16
    def stamp(self, name, real=False, slot=None, dyn=None):
        if not self.on: return
        a = self.a
        if dyn is None:
            if slot is None:
                if name not in self.names:
                    self.names[name] = self.n; self.n += 1
                slot = self.names[name]
            else:
                self.names[name] = slot
            assert slot < 64
        a(f"s_{'memrealtime' if real else 'memtime'} s[64:65]")
        if dyn is not None: a(dyn)
        a("s_waitcnt lgkmcnt(0)")
        a(f"v_writelane_b32 v0, s64, {'m0' if dyn is not None else slot}")
    def flush(self):
        if not self.on: return
        a = self.a
        a("s_mov_b32 s96, s54")
        a("s_mov_b32 s97, s55")
        a(f"s_mov_b32 s98, {64*MB}")
        a("s_mov_b32 s99, 0x00020000")
        a("s_lshl_b32 s100, s2, 3")
        a("s_add_u32 s100, s100, s20")
        a("s_lshl_b32 s100, s100, 8")
        a(f"s_add_u32 s100, s100, {DIAG_BASE}")
        a("s_mov_b64 exec, -1")
        a("v_lshlrev_b32 v24, 2, v1")
        a("buffer_store_dword v0, v24, s[96:99], s100 offen")
        a("s_waitcnt vmcnt(0)")

def mfma(d, A, B, C=None):
    c = f"v[{d}:{d+15}]" if C is None else (C if isinstance(C, str) else f"v[{C}:{C+15}]")
    return f"v_mfma_f32_32x32x16_bf16 v[{d}:{d+15}], v[{A}:{A+3}], v[{B}:{B+3}], {c}"

def gen(a, opt):
    U = 8
    FMAX = opt.get("fmax", 4)
    LATE = 1
    PC, PL = {}, {}
    def prog(P, pos, x): P.setdefault(pos, []).append(x)
    prog(PC, opt.get("hs", 8), "hs"); prog(PC, 16, "gs"); prog(PC, opt.get("f2", 12), "f2")
    prog(PC, opt.get("pl", 20), "pl"); prog(PC, opt.get("hl", 24), "hl"); prog(PC, opt.get("at", 28), "at")
    prog(PC, opt.get("f3", 32), "f3")
    prog(PL, 16, "gs")
    for P in (PC, PL):
        prog(P, 44, "H1"); prog(P, 48, "H2"); prog(P, 56, "H3")
    CP0, LP0 = opt.get("cp0", 3), opt.get("lp0", 3)
    LPG = None
    for k, pos in enumerate((opt.get("c1", 32), opt.get("c2", 48), opt.get("c3", 56))):
        if 0 < pos < 64: prog(PC, pos, f"p{2-k}")
    for k, pos in enumerate((opt.get("l1", 32), opt.get("l2", 48), opt.get("l3", 56))):
        if 0 < pos < 64 and pos != 16: prog(PL, pos, f"p{2-k}")
        if pos == 16: LPG = 2 - k
    if opt.get("cup", 0): prog(PC, opt["cup"], "p3")
    def first(P, mid, after=-1):
        c = [p for p in P if p > after and (p % 8 == 4) == mid]
        return min(c)//8 if c else 99
    S = [32, 48]; P = [64, 72]; O = 80; NM = 96
    GFL = SCR + 4096
    def loop_init():
        a("v_and_b32 v24, 31, v1")
        a("v_lshrrev_b32 v25, 5, v1")
        a("v_lshlrev_b32 v6, 4, v24")
        a("v_lshl_add_u32 v6, v25, 8, v6")
        a("v_mov_b32 v5, 2048")
        if opt.get("zrow", 1):
            a("v_and_b32 v26, 27, v24")
            a("v_mov_b32 v27, 0x40000")
            a("v_cmp_eq_u32 vcc, 16, v26")
            a("s_nop 1")
            a("v_cndmask_b32 v5, v27, v5, vcc")
        a("v_cmp_gt_u32 vcc, 16, v24")
        a("v_add_u32 v3, 1024, v6")
        a("v_add_u32 v4, 1536, v6")
        a("v_cndmask_b32 v3, v5, v3, vcc")
        a("v_cndmask_b32 v4, v5, v4, vcc")
        a("v_mov_b32 v5, v2")
        a("s_mov_b32 s38, 0")
        for r in range(16):
            a(f"v_mov_b32 v{NM+r}, 0")
        zero_state()
    def zero_state():
        for r in range(8):
            a(f"v_mov_b32 v{P[1]+r}, 0")
            a(f"v_mov_b32 v{16+r}, 0")
        for r in range(16):
            a(f"v_mov_b32 v{O+r}, 0")
    a(".p2align 8")
    a(".globl KNAME")
    a(".type KNAME,@function")
    a("KNAME:")
    a("s_cmp_ge_u32 s2, 256")
    a("s_cbranch_scc1 L_end")
    D = Diag(a, opt)
    if D.on:
        a("s_memrealtime s[66:67]")
        a("s_memtime s[68:69]")
        a("s_waitcnt lgkmcnt(0)")
    a("s_load_dwordx16 s[36:51], s[0:1], 0")
    a("s_load_dwordx4 s[52:55], s[0:1], 64")
    a("v_lshrrev_b32 v2, 6, v0")
    a("v_and_b32 v1, 63, v0")
    if D.on:
        a("v_mov_b32 v0, 0")
        a("v_writelane_b32 v0, s66, 62")
        a("v_writelane_b32 v0, s68, 61")
    a("v_readfirstlane_b32 s20, v2")
    a("v_lshlrev_b32 v2, 4, v1")
    a("s_and_b32 s26, s2, 7")
    a("s_lshr_b32 s27, s2, 3")
    a("s_and_b32 s23, s26, 1")
    a("s_lshl_b32 s23, s23, 4")
    a("s_and_b32 s28, s27, 15")
    a("s_add_u32 s23, s23, s28")
    a("s_and_b32 s24, s26, 6")
    a("s_lshr_b32 s28, s27, 4")
    a("s_add_u32 s24, s24, s28")
    a("s_lshl_b32 s28, s28, 2")
    a("s_add_u32 s25, s27, s28")
    a("s_and_b32 s25, s25, 7")
    a("s_lshl_b32 s25, s25, 7")
    a("s_lshl_b32 s21, s26, 2")
    a("s_and_b32 s28, s27, 3")
    a("s_add_u32 s21, s21, s28")
    a("s_lshr_b32 s22, s27, 2")
    a("s_lshl_b32 s56, s22, 3")
    a("s_add_u32 s56, s56, s20")
    a("s_lshl_b32 s57, s56, 15")
    a("s_lshl_b32 s28, s21, 10")
    a("s_add_u32 s57, s57, s28")
    a(f"s_add_u32 s57, s57, {WS_OB}")
    a("v_mov_b32 v139, 0")
    a("s_getpc_b64 s[98:99]")
    a("L_pc:")
    a("s_sub_u32 s98, s98, L_pc-KNAME")
    a("s_subb_u32 s99, s99, 0")
    a("s_and_b32 s100, s2, 0xf8")
    a("s_add_u32 s100, s100, s20")
    a("s_lshl_b32 s100, s100, 7")
    a("s_min_u32 s100, s100, L_code_end-KNAME-4")
    def code_pf():
        if opt.get("npf", 1): a("s_load_dword s101, s[98:99], s100")
    a("s_cmp_ge_u32 s20, 4")
    a("s_cbranch_scc0 L_compute")
    Q, KF, V0, V1 = 8, 12, 16, 20
    GB = 137
    def qg_offsets(sq, sg, gate=True):
        if not gate:
            a(f"s_lshl_b32 s{sq}, s21, 16")
            a("s_lshl_b32 s28, s56, 10")
            a(f"s_add_u32 s{sq}, s{sq}, s28")
            return
        a(f"s_lshr_b32 s{sg}, s21, 1")
        a(f"s_lshl_b32 s{sg}, s{sg}, 6")
        a(f"s_add_u32 s{sg}, s{sg}, s56")
        a(f"s_lshl_b32 s{sg}, s{sg}, 7")
        a(f"s_add_u32 s{sg}, s{sg}, {WS_G}")

    a("s_setprio 2")
    a("s_sub_u32 s29, s20, 4")
    a("v_lshrrev_b32 v6, 3, v1")
    a("v_lshrrev_b32 v7, 4, v1")
    a("v_and_b32 v8, 7, v1")
    a("v_xor_b32 v9, v8, v7")
    a("v_xor_b32 v10, 4, v9")
    a("v_lshlrev_b32 v3, 11, v6")
    a("v_lshl_add_u32 v4, v10, 4, v3")
    a("v_lshl_add_u32 v3, v9, 4, v3")
    a("v_and_b32 v7, 1, v7")
    a("v_lshlrev_b32 v7, 2, v7")
    a("v_xor_b32 v7, v8, v7")
    a("v_mul_u32_u24 v5, 3072, v6")
    a("v_lshl_add_u32 v5, v7, 4, v5")
    a("s_lshr_b32 s28, s29, 1")
    a("s_lshl_b32 s30, s23, 6")
    a("s_add_u32 s30, s30, s28")
    a("s_lshl_b32 s30, s30, 10")
    a("s_lshl_b32 s31, s28, 12")
    a("s_and_b32 s28, s29, 1")
    a("s_lshl_b32 s33, s28, 15")
    a("s_add_u32 s30, s30, s33")
    a("s_lshl_b32 s33, s28, 11")
    a("s_add_u32 s31, s31, s33")
    a("s_mul_i32 s32, s29, 49152")
    a("s_lshl_b32 s28, s24, 7")
    a("s_add_u32 s32, s32, s28")
    a("s_lshl_b32 s33, s29, 11")
    a("s_add_u32 s33, s33, 65536")
    a("s_mov_b32 s58, 0")
    GW, GX, GA = 32, 64, 96
    a("v_lshlrev_b32 v11, 4, v9")
    a("v_add_u32 v12, s31, v2")
    a("v_xor_b32 v13, 64, v12")
    a("s_lshr_b32 s59, s31, 5")
    a(f"s_add_u32 s59, s59, {GFL + 64}")
    a("v_lshl_add_u32 v14, v6, 2, s59")
    for r in range(4): a(f"v_mov_b32 v{GA+r}, 0")
    a("s_mov_b32 s18, 1024")
    a("s_mov_b32 s19, 0x00020000")
    a("s_mov_b32 s6, 0x200000")
    a("s_mov_b32 s7, 0x00020000")
    a("s_mov_b32 s10, 0x180000")
    a("s_mov_b32 s11, 0x00020000")
    a(f"s_mov_b32 s14, {WS_SIZE}")
    a("s_mov_b32 s15, 0x00020000")
    a("s_waitcnt lgkmcnt(0)")
    a("s_mov_b32 s4, s36")
    a("s_mov_b32 s5, s37")
    a("s_mov_b32 s8, s44")
    a("s_mov_b32 s9, s45")
    a("s_mov_b32 s12, s54")
    a("s_mov_b32 s13, s55")
    a("s_mov_b32 s16, s48")
    a("s_mov_b32 s17, s49")
    D.stamp("karg")
    code_pf()
    def wloads():
        for t in range(3):
            for jj in range(2):
                a(f"s_add_u32 m0, s33, {8192*t + 1024*jj}")
                a(f"s_add_u32 s28, s34, {1024*t + 24576*jj}")
                a("buffer_load_dwordx4 v5, s[8:11], s28 offen lds")
    def advance():
        a("s_add_u32 s25, s25, 128")
        a("s_and_b32 s25, s25, 1023")
        a("s_add_u32 s33, s33, 24576")
        a("s_cmp_ge_u32 s33, 163840")
        a("s_cselect_b32 s28, 98304, 0")
        a("s_sub_u32 s33, s33, s28")
        a("s_add_u32 s58, s58, 1")
    def flag_check():
        a("v_add_u32 v24, -1, v14")
        a("v_cmp_le_u32 vcc, 3, v24")
    def snap():
        a("s_mov_b32 exec_lo, s46")
        a("s_mov_b32 exec_hi, s46")
        a("buffer_load_dword v14, v12, s[12:15], s45 offen sc1")
        a("s_mov_b64 exec, -1")
    a("L_ldB:")
    a("s_mul_i32 s34, s25, 1536")
    a("s_add_u32 s35, s30, s25")
    a("s_mov_b32 m0, s31")
    a("s_add_u32 s34, s34, s32")
    a("buffer_load_dwordx4 v3, s[4:7], s35 offen lds")
    a("s_add_u32 m0, s31, 1024")
    a("s_add_u32 s28, s35, 16384")
    a("buffer_load_dwordx4 v4, s[4:7], s28 offen lds")
    wloads()
    a("s_add_u32 s31, s31, 8192")
    advance()
    a("s_cmp_lt_u32 s58, 3")
    a("s_cbranch_scc1 L_ldB")
    a("s_cmp_eq_u32 s58, 3")
    a("s_cbranch_scc1 L_gld")
    a("L_gld_ret:")
    a("s_cmp_lt_u32 s58, 6")
    a("s_cbranch_scc1 L_w24")
    a("s_waitcnt vmcnt(16)")
    a("L_w24:")
    a("s_waitcnt vmcnt(24)")
    if opt.get("diag", 0) > 1: D.stamp("w", dyn="s_add_u32 m0, s58, 37")
    a("s_barrier")
    D.stamp("b", dyn="s_sub_u32 m0, s58, 3")
    a("s_cmp_lt_u32 s58, 8")
    a("s_cbranch_scc1 L_ldB")
    a("s_mov_b32 s8, s38")
    a("s_mov_b32 s9, s39")
    qg_offsets(30, 31, False)
    def read_go():
        a("ds_read_b32 v10, v139 offset:2048")
        a("s_waitcnt lgkmcnt(0)")
        a("v_readfirstlane_b32 s28, v10")
        a("s_cmp_lg_u32 s28, 0")
        a("s_cbranch_scc1 L_dog")
    a("L_ldA:")
    a("s_mul_i32 s34, s25, 1536")
    a("s_add_u32 s34, s34, s32")
    wloads()
    advance()
    a(f"s_cmp_eq_u32 s58, {opt.get('ga', 10)}")
    a("s_cbranch_scc1 L_gateA")
    a(f"s_cmp_eq_u32 s58, {opt.get('gb', 12)}")
    a("s_cbranch_scc1 L_gateB")
    a("L_gate_ret:")
    a("s_waitcnt vmcnt(12)")
    if opt.get("diag", 0) > 1: D.stamp("w", dyn="s_add_u32 m0, s58, 37")
    a("s_barrier")
    D.stamp("b", dyn="s_sub_u32 m0, s58, 3")
    a("s_cmp_lt_u32 s58, 16")
    a("s_cbranch_scc1 L_ldA")
    a("s_lshl_b32 s32, s21, 17")
    a("s_lshl_b32 s28, s29, 10")
    a("s_add_u32 s32, s32, s28")
    a(f"s_add_u32 s32, s32, {WS_KV}")
    a("s_lshr_b32 s33, s29, 1")
    a("s_lshl_b32 s33, s33, 4")
    a("s_add_u32 s33, s33, s28")
    a("s_mov_b32 s61, 2")
    read_go()
    a("s_waitcnt vmcnt(6)")
    a("s_barrier")
    a("s_mov_b32 s61, 1")
    read_go()
    a("s_waitcnt vmcnt(0)")
    a("s_barrier")
    a("s_mov_b32 s61, 0")
    read_go()
    a("s_mov_b32 s61, -1")
    a("s_barrier")
    a("L_dog:")
    D.stamp("dog")
    a(f"buffer_load_dwordx4 v[{Q}:{Q+3}], v2, s[12:15], s30 offen sc1")
    def pieces(i0, i1):
        for i in range(i0, i1):
            a(f"s_add_u32 m0, s33, {4128*i}")
            a(f"s_add_u32 s28, s32, {4096*i}")
            a("buffer_load_dwordx4 v2, s[12:15], s28 offen sc1 lds")
    pieces(0, 9)
    a("s_cmp_eq_u32 s61, 2")
    a("s_cbranch_scc0 L_j14")
    a("s_waitcnt vmcnt(16)")
    a("s_barrier")
    a("L_j14:")
    a("s_cmp_ge_i32 s61, 1")
    a("s_cbranch_scc0 L_j15")
    a("s_waitcnt vmcnt(10)")
    a("s_barrier")
    a("L_j15:")
    a("s_cmp_ge_i32 s61, 0")
    a("s_cbranch_scc0 L_jF1")
    a("s_barrier")
    a("L_jF1:")
    D.stamp("F1")
    a(f"ds_write_b32 v14, v{GA}")
    a(f"ds_write_b32 v14, v{GA+1} offset:32")
    loop_init()
    a(f"v_mul_u32_u24 v28, {TS}, v1")
    a(f"v_mov_b32 v29, {GFL}")
    for r in range(4):
        a(f"v_mov_b32 v{24+r}, 0x3f803f80")
    a("ds_write_b128 v28, v[24:27] offset:2048")
    a(f"ds_write_b64 v29, v[{O}:{O+1}]")
    a(f"s_mov_b32 s62, {first(PL, True)}")
    a(f"s_mov_b32 s63, {first(PL, False)}")
    a("s_mov_b32 s37, 1")
    a("s_waitcnt vmcnt(0) lgkmcnt(0)")
    a("s_barrier")
    D.stamp("F2")
    a(f"s_setprio {LP0}")
    a("s_branch L_main")
    a("L_gld:")
    for q in range(8):
        a(f"s_add_u32 s28, s25, {640 + 128*q}")
        a("s_and_b32 s28, s28, 1023")
        a(f"buffer_load_dwordx4 v[{GW+4*q}:{GW+4*q+3}], v11, s[16:19], s28 offen")
    a("s_branch L_gld_ret")
    def gate_block(q0):
        for q in range(4):
            a(f"ds_read_b128 v[{GX+8*q}:{GX+8*q+3}], v12 offset:{8192*(q0+q)}")
            a(f"ds_read_b128 v[{GX+8*q+4}:{GX+8*q+7}], v13 offset:{8192*(q0+q) + 1024}")
        for q in range(4):
            a(f"s_waitcnt lgkmcnt({6-2*q})")
            for r in range(4):
                for e in range(2):
                    a(f"v_dot2c_f32_bf16 v{GA + e + 2*(r & 1)}, v{GX+8*q+4*e+r}, v{GW+4*(q0+q)+r}")
    a("L_gateA:")
    gate_block(0)
    a("s_branch L_gate_ret")
    a("L_gateB:")
    gate_block(4)
    a("s_nop 3")
    for e in range(2): a(f"v_add_f32 v{GA+e}, v{GA+e}, v{GA+2+e}")
    for ctl in ("quad_perm:[1,0,3,2]", "quad_perm:[2,3,0,1]", "row_half_mirror"):
        a("s_nop 1")
        for e in range(2): a(f"v_add_f32_dpp v{GA+e}, v{GA+e}, v{GA+e} {ctl} row_mask:0xf bank_mask:0xf")
    for e in range(2): a(f"v_mul_f32 v{GA+e}, {f2u(-math.log2(math.e))}, v{GA+e}")
    for e in range(2): a(f"v_exp_f32 v{GA+e}, v{GA+e}")
    a("s_nop 0")
    for e in range(2): a(f"v_add_f32 v{GA+e}, 1.0, v{GA+e}")
    for e in range(2): a(f"v_rcp_f32 v{GA+e}, v{GA+e}")
    a("s_branch L_gate_ret")

    a("L_compute:")
    if opt.get("cprio", 3): a(f"s_setprio {opt.get('cprio', 3)}")
    a("s_and_b32 s28, s20, 1")
    a("s_lshr_b32 s29, s20, 1")
    a("s_lshl_b32 s58, s23, 1")
    a("s_add_u32 s58, s58, s28")
    a("s_lshl_b32 s59, s24, 1")
    a("s_add_u32 s59, s59, s29")
    a("v_and_b32 v7, 31, v1")
    a("v_lshrrev_b32 v8, 5, v1")
    a("s_lshl_b32 s61, s58, 4")
    a("s_add_u32 s61, s61, s59")
    a("s_lshl_b32 s30, s2, 12")
    a(f"s_add_u32 s30, s30, {WS_F}")
    for r in range(4): a(f"v_mov_b32 v{24+r}, 0")
    a("s_mov_b32 s18, 0x80000")
    a("s_mov_b32 s19, 0x00020000")
    a(f"s_mov_b32 s14, {WS_SIZE}")
    a("s_mov_b32 s15, 0x00020000")
    a("s_mov_b32 s10, 256")
    a("s_mov_b32 s11, 0x00020000")
    a("s_cmp_lt_u32 s58, 32")
    a("s_waitcnt lgkmcnt(0)")
    a("s_cselect_b32 s16, s40, s46")
    a("s_cselect_b32 s17, s41, s47")
    a("s_mov_b32 s12, s54")
    a("s_mov_b32 s13, s55")
    a("s_mov_b32 s8, s52")
    a("s_mov_b32 s9, s53")
    code_pf()
    a("s_lshl_b32 s31, s20, 8")
    a("s_add_u32 s31, s31, s2")
    a("s_sub_u32 s31, s31, 256")
    a("s_cmp_lt_u32 s31, 8")
    a("s_cbranch_scc0 L_noinit")
    for q in range(4):
        a(f"buffer_store_dwordx4 v[24:27], v2, s[12:15], s30 offen offset:{1024*q} sc1")
    a("v_mov_b32 v12, 1")
    a("s_lshl_b32 s31, s2, 2")
    a("s_mov_b64 exec, 1")
    a("s_waitcnt vmcnt(0)")
    a("buffer_store_dword v12, v139, s[8:11], s31 offen sc1")
    a("s_mov_b64 exec, -1")
    a("L_noinit:")
    a("v_lshrrev_b32 v9, 2, v1")
    a("v_and_b32 v10, 3, v1")
    a("v_lshlrev_b32 v9, 10, v9")
    a("v_lshl_add_u32 v138, v10, 4, v9")
    a("s_and_b32 s30, s58, 31")
    a("s_lshl_b32 s48, s30, 14")
    a("s_lshl_b32 s32, s59, 6")
    a("s_add_u32 s48, s48, s32")
    a("s_lshl_b32 s49, s20, 10")
    a(f"s_add_u32 s49, s49, {SCR}")
    XA = [3, 4, 5, 6]; WA = 13
    a("v_bfe_u32 v9, v1, 1, 3")
    a("v_xor_b32 v9, v9, v8")
    a("v_lshlrev_b32 v9, 4, v9")
    a("s_lshl_b32 s30, s28, 12")
    a("v_lshlrev_b32 v3, 7, v7")
    a("v_add_u32 v3, s30, v3")
    a("v_xor_b32 v4, 32, v9")
    a("v_xor_b32 v5, 64, v9")
    a("v_xor_b32 v6, 96, v9")
    a("v_add_u32 v4, v3, v4")
    a("v_add_u32 v5, v3, v5")
    a("v_add_u32 v6, v3, v6")
    a("v_add_u32 v3, v3, v9")
    a("v_bfe_u32 v9, v1, 2, 2")
    a(f"v_lshl_add_u32 v{WA}, v8, 3, v9")
    a(f"v_lshlrev_b32 v{WA}, 7, v{WA}")
    a("v_bfe_u32 v10, v1, 3, 1")
    a("v_xor_b32 v10, s29, v10")
    a(f"v_lshl_add_u32 v{WA}, v10, 6, v{WA}")
    a("v_bfe_u32 v10, v1, 4, 1")
    a("v_and_b32 v11, 3, v1")
    a(f"v_lshl_add_u32 v{WA}, v10, 5, v{WA}")
    a(f"v_lshl_add_u32 v{WA}, v11, 3, v{WA}")
    a(f"v_add_u32 v{WA}, 65536, v{WA}")
    a("v_lshl_add_u32 v12, v8, 2, v9")
    a("v_lshlrev_b32 v12, 6, v12")
    a("v_lshl_add_u32 v12, v10, 5, v12")
    a("v_lshl_add_u32 v12, v11, 3, v12")
    a("v_add_u32 v140, s49, v12")
    a("v_lshlrev_b32 v18, 17, v10")
    a("v_lshl_add_u32 v18, v8, 8, v18")
    a("v_and_b32 v9, 15, v1")
    a("v_lshl_add_u32 v18, v9, 4, v18")
    ACCB, ACCA = 32, 144
    for r in range(48):
        a(f"v_mov_b32 v{ACCB+r}, 0")
        a(f"v_mov_b32 v{ACCA+r}, 0")
    a("s_lshr_b32 s47, s58, 5")
    a("s_lshl_b32 s47, s47, 4")
    a("s_add_u32 s47, s47, s59")
    a("s_lshl_b32 s47, s47, 5")
    a("s_and_b32 s31, s58, 31")
    a("s_add_u32 s47, s47, s31")
    a("s_lshl_b32 s47, s47, 10")
    a(f"s_add_u32 s47, s47, {WS_WOF}")
    a("s_mov_b32 s34, 65536")
    a("s_mov_b32 s35, 0")
    a("s_cmp_eq_u32 s20, 0")
    a("s_cselect_b32 s46, -1, 0")
    a("s_and_b32 s45, s26, 6")
    a("s_and_b32 s31, s26, 1")
    a("s_lshl_b32 s31, s31, 7")
    a("s_add_u32 s45, s45, s31")
    a("s_lshl_b32 s45, s45, 7")
    a("s_and_b32 s31, s21, 2")
    a("s_lshl_b32 s31, s31, 2")
    a("s_add_u32 s45, s45, s31")
    a(f"s_add_u32 s45, s45, {WS_F}")
    a("v_bfe_u32 v12, v1, 1, 4")
    a("v_lshlrev_b32 v12, 10, v12")
    a("v_lshl_add_u32 v12, v8, 7, v12")
    a("v_and_b32 v11, 1, v1")
    a("v_lshl_add_u32 v12, v11, 2, v12")
    a("v_and_b32 v11, 7, v1")
    a("v_lshlrev_b32 v11, 2, v11")
    a("v_mov_b32 v14, 0")
    D.stamp("setup")
    a("s_barrier")
    D.stamp("b0", slot=0)
    F = [80, 96, 192, 208]
    def reads(s):
        f = F[s]
        L = [f"ds_read_b128 v[{f}:{f+3}], v{XA[s]}"]
        for t in range(3):
            L.append(f"ds_read_b64_tr_b16 v[{f+4+4*t}:{f+5+4*t}], v{WA} offset:{t*8192 + (16*s)*128}")
            L.append(f"ds_read_b64_tr_b16 v[{f+6+4*t}:{f+7+4*t}], v{WA} offset:{t*8192 + (16*s+4)*128}")
        return L
    def mf(s, ACC):
        f = F[s]
        return [mfma(ACC+16, f+8, f), mfma(ACC+32, f, f+12), mfma(ACC, f+4, f)]
    def emit(out):
        if opt.get("nolds"): out = [l for l in out if not l.startswith("ds_read_b128") and not l.startswith("ds_read_b64")]
        if opt.get("nomfma"): out = [l for l in out if not l.startswith("v_mfma")]
        if opt.get("nost"): out = [l for l in out if not l.startswith("buffer_store_dwordx4")]
        for l in out: a(l)
    def kstep(M, R, X=[[], [], []]):
        emit([M[0]] + R[0:4] + X[0] + [M[1]] + R[4:] + X[1] + [M[2]] + X[2] + M[3:])
    def addr_update():
        return ["s_add_u32 s34, s34, 24576",
                "s_cmp_ge_u32 s34, 163840",
                "s_cselect_b32 s28, 98304, 0",
                "s_sub_u32 s34, s34, s28",
                "s_sub_u32 s28, 24576, s28",
                "s_add_u32 s35, s35, 1",
                "s_cmp_eq_u32 s35, 8",
                "s_cselect_b32 s29, -65536, 0",
                "s_add_u32 s29, s29, 8192",
                f"v_add_u32 v{WA}, s28, v{WA}"] + [f"v_add_u32 v{r}, s29, v{r}" for r in XA]
    emit(reads(0) + reads(1))
    a("L_cB:")
    for sub in range(2):
        for s in range(4):
            if s == 2:
                a("s_waitcnt lgkmcnt(0)")
                a("s_barrier")
            elif s < 2:
                a("s_waitcnt lgkmcnt(7)")
            kstep(mf(s, ACCB), reads((s + 2) % 4), [[], addr_update() if s == 1 else [], []])
    a(f"s_cmp_eq_u32 s35, {opt.get('ichk', 4)}")
    a("s_cbranch_scc1 L_dbgld")
    a("L_dbgld_ret:")
    a("s_cmp_lt_u32 s35, 8")
    a("s_cbranch_scc1 L_cB")
    D.stamp("Bend")
    K0, V0_ = ACCB+16, ACCB+32
    E = ["s_lshl_b32 s30, s59, 17",
         "s_lshl_b32 s36, s58, 10",
         "s_add_u32 s30, s30, s36",
         "s_add_u32 s31, s30, 65536",
         "s_lshl_b32 s32, s30, 1",
         f"s_add_u32 s32, s32, {WS_KV}",
         "s_add_u32 s33, s32, 131072",
         f"s_mov_b32 s37, {f2u(QSCALE)}"]
    for l in E: a(l)
    E = [f"v_cvt_pk_bf16_f32 v{K0+r}, v{K0+2*r}, v{K0+2*r+1}" for r in range(4)]
    E += [f"buffer_store_dwordx4 v[{K0}:{K0+3}], v2, s[12:15], s32 offen sc1"]
    E += [f"v_cvt_pk_bf16_f32 v{K0+r}, v{K0+2*r}, v{K0+2*r+1}" for r in range(4, 8)]
    E += [f"buffer_store_dwordx4 v[{K0+4}:{K0+7}], v2, s[12:15], s33 offen sc1"]
    E += [f"v_cvt_pk_bf16_f32 v{V0_+r}, v{V0_+2*r}, v{V0_+2*r+1}" for r in range(4)]
    E += [f"buffer_store_dwordx4 v[{V0_}:{V0_+3}], v18, s[12:15], s32 offen offset:1024 sc1"]
    E += [f"v_cvt_pk_bf16_f32 v{V0_+r}, v{V0_+2*r}, v{V0_+2*r+1}" for r in range(4, 8)]
    E += [f"buffer_store_dwordx4 v[{V0_+4}:{V0_+7}], v18, s[12:15], s32 offen offset:1536 sc1"]
    for hf in range(2):
        E += [f"v_mul_f32 v{ACCB+r}, s37, v{ACCB+r}" for r in range(8*hf, 8*hf+8)]
        E += [f"v_cvt_pk_bf16_f32 v{ACCB+r}, v{ACCB+2*r}, v{ACCB+2*r+1}" for r in range(4*hf, 4*hf+4)]
        E += [f"buffer_store_dwordx4 v[{ACCB+4*hf}:{ACCB+4*hf+3}], v2, s[12:15], s{30+hf} offen sc1"]
    ng = len(E)
    per = opt.get("eper", 8)
    gaps = [E[per*i:per*i+per] for i in range((ng + per - 1)//per)]
    gaps += [[]]*(12 - len(gaps))
    assert len(gaps) == 12
    goread = ["ds_read_b32 v15, v139 offset:2048"]
    for s in range(4):
        X = gaps[3*s:3*s+3]
        if s == 1: X = [X[0], addr_update() + X[1], X[2]]
        if s == 2:
            a("s_waitcnt lgkmcnt(0)")
            a("s_barrier")
            a("s_mov_b32 exec_lo, s46")
            a("s_mov_b32 exec_hi, 0")
            a("ds_write_b32 v139, v139 offset:2048")
            a("s_mov_b64 exec, -1")
        elif s < 2:
            a("s_waitcnt lgkmcnt(7)")
        kstep(mf(s, ACCA), reads((s + 2) % 4), X)
    a("s_lshl_b32 s60, s2, 7")
    a("s_lshl_b32 s28, s20, 2")
    a("s_add_u32 s60, s60, s28")
    a(f"s_add_u32 s60, s60, {WS_F}")
    qg_offsets(31, 32, False)
    a("s_mov_b32 s62, 0")
    a("v_mov_b32 v16, 1")
    a(f"s_waitcnt vmcnt({0 if opt.get('nost') else 6})")
    a("L_ichk:")
    a("v_cmp_ne_u32 vcc, 1, v14")
    a("s_add_u32 s62, s62, 1")
    a(f"s_cmp_gt_u32 s62, {SPIN_MAX}")
    a("s_cbranch_scc1 L_iok")
    a("s_cbranch_vccz L_iok")
    a("s_sleep 4")
    a("buffer_load_dword v14, v11, s[8:11], 0 offen sc1")
    a("s_waitcnt vmcnt(0)")
    a("s_branch L_ichk")
    a("L_iok:")
    a("s_mov_b32 s62, 0")
    a(f"s_mov_b32 s44, {opt.get('g0', 4)}")
    a("v_mov_b32 v14, 0")
    D.stamp("Bepi")
    def side_site(k):
        a(f"s_bitcmp1_b32 s44, {k}")
        a(f"s_cbranch_scc1 L_side{k}")
        a(f"L_sret{k}:")
    a("L_cA:")
    for s in range(2):
        a("s_waitcnt lgkmcnt(7)")
        kstep(mf(s, ACCA), reads(s + 2), [[], addr_update() if s == 1 else [], []])
        if s == 0: side_site(0)
    a("s_cmp_eq_u32 s35, 16")
    a("s_cbranch_scc1 L_preF1")
    a("s_waitcnt lgkmcnt(0)")
    a("s_barrier")
    kstep(mf(2, ACCA), goread + reads(0))
    side_site(1)
    kstep(mf(3, ACCA), reads(1))
    a("s_bitcmp1_b32 s44, 2")
    a("s_cbranch_scc0 L_cA")
    def side(k, ret):
        a(f"L_side{k}:")
        a("s_cmp_eq_u32 s62, 0")
        a(f"s_cbranch_scc0 L_sp{k}")
        a("s_getreg_b32 s28, hwreg(HW_REG_IB_STS)")
        a("s_and_b32 s28, s28, 0xc0000f")
        a(f"s_cmp_ge_u32 s35, {8+FMAX}")
        a("s_cselect_b32 s28, 0, s28")
        a("s_cmp_eq_u32 s28, 0")
        a(f"s_cbranch_scc0 {ret}")
        a("s_waitcnt vmcnt(0)")
        a("s_mov_b64 exec, 1")
        a("buffer_store_dword v16, v139, s[12:15], s60 offen sc1")
        a("s_mov_b64 exec, -1")
        a("s_mov_b32 s62, 1")
        a("s_cmp_eq_u32 s46, 0")
        a(f"s_cselect_b32 s44, 4, {opt.get('pm', 7)}")
        D.stamp("flag1")
        a(f"s_branch {ret}")
        a(f"L_sp{k}:")
        if k == 2:
            a("s_cmp_eq_u32 s46, 0")
            a(f"s_cbranch_scc1 L_so{k}")
        flag_check()
        a("v_cmp_eq_u32 s[42:43], -1, v14")
        a(f"s_cbranch_vccz L_sg{k}")
        a(f"s_cmp_lt_u32 s35, {opt.get('ps', 11)}")
        a("s_cselect_b32 s42, 1, s42")
        a("s_cmp_eq_u64 s[42:43], 0")
        a(f"s_cbranch_scc0 {ret}")
        a("v_mov_b32 v14, -1")
        a("buffer_load_dword v14, v12, s[12:15], s45 offen sc1")
        a(f"s_branch {ret}")
        if k == 2:
            a(f"L_so{k}:")
            a("s_waitcnt lgkmcnt(14)")
            a("v_readfirstlane_b32 s28, v15")
            a("s_cmp_eq_u32 s28, 0")
            a(f"s_cbranch_scc1 {ret}")
        a(f"L_sg{k}:")
        a("ds_write_b32 v139, v16 offset:2048")
        a(f"buffer_load_dwordx4 v[{Q}:{Q+3}], v2, s[12:15], s31 offen sc1")
        a("s_mov_b32 s62, 2")
        a("s_mov_b32 s44, 0")
        D.stamp("go")
        a(f"s_branch {ret}")
    side(2, "L_cA")
    side(0, "L_sret0")
    side(1, "L_sret1")
    a("L_dbgld:")
    a("buffer_load_dword v14, v11, s[8:11], 0 offen sc1")
    a("s_branch L_dbgld_ret")
    a("L_preF1:")
    a("s_cmp_eq_u32 s62, 2")
    a("s_cselect_b32 s28, 0, s46")
    a("s_cmp_eq_u32 s28, 0")
    a("s_cbranch_scc1 L_spin_end")
    a("s_mov_b32 s29, 0")
    a("L_spin:")
    a("s_waitcnt vmcnt(0)")
    flag_check()
    a("s_add_u32 s29, s29, 1")
    a(f"s_cmp_gt_u32 s29, {SPIN_MAX}")
    a("s_cbranch_scc1 L_spin_end")
    a("s_cbranch_vccz L_spin_end")
    a(f"s_sleep {opt.get('psleep', 2)}")
    a("buffer_load_dword v14, v12, s[12:15], s45 offen sc1")
    a("s_branch L_spin")
    a("L_spin_end:")
    a("s_waitcnt lgkmcnt(0)")
    a("s_barrier")
    emit(mf(2, ACCA))
    a("s_cmp_eq_u32 s62, 2")
    a("s_cbranch_scc1 L_qdone")
    a(f"buffer_load_dwordx4 v[{Q}:{Q+3}], v2, s[12:15], s31 offen sc1")
    a("L_qdone:")
    M = mf(3, ACCA)
    a(M[0])
    a("s_mov_b32 m0, s49")
    a("s_lshl_b32 s30, s61, 12")
    a(f"s_add_u32 s30, s30, {WS_HALO}")
    a("buffer_load_dwordx4 v138, s[16:19], s48 offen lds")
    a(M[1])
    a(f"s_mov_b32 s29, {f2u(QSCALE)}")
    if not LATE:
        for r in range(4):
            a(f"v_mov_b32 v{28+r}, -1")
        a("buffer_store_dwordx4 v[28:31], v2, s[12:15], s57 offen sc1")
    a(M[2])
    D.stamp("Aend")
    QA, KA, VA = 112, 120, 128
    a("s_nop 3")
    for r in range(8):
        a(f"v_cvt_pk_bf16_f32 v{KA+r}, v{ACCA+16+2*r}, v{ACCA+16+2*r+1}")
    def halo_stores():
        a("s_lshl_b32 s30, s61, 12")
        a(f"s_add_u32 s30, s30, {WS_HALO}")
        a("v_lshrrev_b32 v28, 1, v2")
        a("s_mov_b32 exec_lo, 0xff000000")
        a("s_mov_b32 exec_hi, 0xff000000")
        a(f"buffer_store_dwordx4 v[{KA}:{KA+3}], v2, s[12:15], s30 offen sc1")
        a(f"buffer_store_dwordx4 v[{KA+4}:{KA+7}], v2, s[12:15], s30 offen offset:1024 sc1")
        a("s_mov_b64 exec, -1")
        a(f"buffer_store_dwordx2 v[{VA+6}:{VA+7}], v28, s[12:15], s30 offen offset:2048 sc1")
    for r in range(4, 8):
        a(f"v_cvt_pk_bf16_f32 v{VA+r}, v{ACCA+32+2*r}, v{ACCA+32+2*r+1}")
    if not LATE: halo_stores()
    for r in range(4):
        a(f"v_cvt_pk_bf16_f32 v{VA+r}, v{ACCA+32+2*r}, v{ACCA+32+2*r+1}")
    for r in range(16):
        a(f"v_mul_f32 v{ACCA+r}, s29, v{ACCA+r}")
    for r in range(8):
        a(f"v_cvt_pk_bf16_f32 v{QA+r}, v{ACCA+2*r}, v{ACCA+2*r+1}")
    loop_init()
    a(f"s_mov_b32 s62, {first(PC, True)}")
    a(f"s_mov_b32 s63, {first(PC, False)}")
    a("s_mov_b32 s37, 0")
    D.stamp("Aepi")
    a("s_barrier")
    a(f"s_setprio {CP0}")

    a("L_main:")
    D.stamp("main")
    a("ds_read_b128 v[24:27], v5")
    a(f"ds_read_b128 v[{KF}:{KF+3}], v5 offset:{TS}")
    a("s_waitcnt vmcnt(1) lgkmcnt(1)")
    a(mfma(S[0], 24, Q, NM))
    a("s_mov_b32 s39, 0")
    a("s_nop 7")
    a("s_nop 0")
    a("s_waitcnt lgkmcnt(0)")
    D.stamp("loop")
    a("s_cmp_eq_u32 s37, 1")
    a("s_cbranch_scc1 L_loop0")
    def piece(i):
        if i >= 32: return []
        return [f"s_add_u32 m0, s33, {4128*i}", f"s_add_u32 s28, s32, {4096*i}", "buffer_load_dwordx4 v2, s[12:15], s28 offen sc1 lds"]
    def body(dma):
        for u in range(U):
            cur, nxt = S[u & 1], S[(u+1) & 1]
            Pc, Pp = P[u & 1], P[(u+1) & 1]
            ex = [f"v_exp_f32 v{cur+i}, v{cur+i}" for i in range(16)]
            cv = [f"v_cvt_pk_bf16_f32 v{Pc+i}, v{cur+2*i}, v{cur+2*i+1}" for i in range(8)]
            pc = [piece(9 + 3*u + q) if dma else [] for q in range(3)]
            if u == U//2 and not dma:
                a("s_cmp_eq_u32 s39, s62")
                a("s_cbranch_scc1 L_mid")
                a("L_mid_ret:")
            a(mfma(nxt, KF, Q, NM))
            a(f"ds_read_b128 v[{KF}:{KF+3}], v5 offset:{(u+2)*TS}")
            for l in ex[0:4] + pc[0] + [cv[0]] + ex[4:6] + [cv[1]]: a(l)
            a("s_waitcnt lgkmcnt(2)")
            a(mfma(O, V0, Pp))
            a(f"ds_read_b128 v[{V0}:{V0+3}], v3 offset:{u*TS}")
            for l in ex[6:8] + [cv[2]] + pc[1] + ex[8:10] + [cv[3]] + ex[10:12] + [cv[4]]: a(l)
            a("s_waitcnt lgkmcnt(2)")
            a(mfma(O, V1, Pp+4))
            a(f"ds_read_b128 v[{V1}:{V1+3}], v4 offset:{u*TS}")
            for l in ex[12:14] + pc[2] + [cv[5]] + ex[14:16] + [cv[6]]: a(l)
            if u == U-1:
                a(f"v_add_u32 v5, {TS*U}, v5")
                a(f"v_add_u32 v3, {TS*U}, v3")
                a(f"v_add_u32 v4, {TS*U}, v4")
                a("s_add_u32 s39, s39, 1")
                a("s_cmp_eq_u32 s39, s63")
            a("s_waitcnt lgkmcnt(2)")
            a(cv[7])
    a(".p2align 6")
    a("L_loop:")
    body(False)
    a("s_cbranch_scc1 L_endh")
    a("L_endh_ret:")
    a(f"s_cmp_lt_u32 s39, {64//U}")
    a("s_cbranch_scc1 L_loop")
    a("s_waitcnt lgkmcnt(0)")
    a(mfma(O, V0, P[1]))
    a(mfma(O, V1, P[1]+4))
    D.stamp("loopend")
    a(f"s_mov_b32 s40, {f2u(2.0**80)}")
    a("s_nop 7")
    a("s_nop 3")
    a(f"v_rcp_f32 v27, v{O+8}")
    a(f"v_fma_f32 v26, v{O}, 0, v{O+8}")
    for r in range(1, 8):
        a(f"v_fma_f32 v26, v{O+r}, 0, v26")
    a("v_add_f32 v26, v26, v27")
    a("v_cmp_nlt_f32 vcc, v26, s40")
    a("s_cmp_eq_u32 s38, 0")
    a("s_cbranch_scc0 L_fin")
    a("s_nop 1")
    a("s_cbranch_vccnz L_fallback")
    a("L_fin:")
    a(f"v_mul_f32 v27, v27, v{GB}")
    for r in range(8):
        a(f"v_mul_f32 v{O+r}, v{O+r}, v27")
    for i in range(4):
        a(f"v_cvt_pk_bf16_f32 v{O+i}, v{O+2*i}, v{O+2*i+1}")
    for i in range(4):
        a(f"v_min_u32 v{O+i}, -2, v{O+i}")
    a(f"buffer_store_dwordx4 v[{O}:{O+3}], v2, s[12:15], s57 offen sc1")

    AC = [144, 160]; WF = 176
    OF = [112, 116, 120, 124, 128, 132, 240, 244]
    X1O = opt.get("x1old", 1)
    if X1O:
        a("s_cmp_ge_u32 s20, 4")
        a("s_cbranch_scc0 L_t0")
        a("s_barrier")
        a("L_t0:")
    else:
        a(f"v_mov_b32 v25, {GFL}")
        a("v_mov_b32 v24, 1")
        a("ds_add_u32 v25, v24 offset:4")
    if opt.get("tdelay", 0): a(f"s_sleep {opt['tdelay']}")
    a(f"s_add_u32 s30, s44, {WS_OB}")
    a(f"s_add_u32 s31, s44, {WS_OB + 4096}")
    a("s_mov_b32 s33, 0xff")
    a("s_mov_b32 s34, 0")
    def oload(k):
        a(f"buffer_load_dwordx4 v[{OF[k]}:{OF[k]+3}], v2, s[12:15], s{30 + k//4} offen offset:{(k%4)*1024} sc1")
    def ocheck(k, skip):
        a(f"v_max3_u32 v24, v{OF[k]}, v{OF[k]+1}, v{OF[k]+2}")
        a(f"v_max_u32 v24, v24, v{OF[k]+3}")
        a("v_cmp_eq_u32 vcc, -1, v24")
        a("s_nop 0")
        a(f"s_cbranch_vccnz {skip}")
        a(mfma(AC[0], WF+4*k, OF[k]))
        a(mfma(AC[1], WF+32+4*k, OF[k]))
        a(f"s_bitset0_b32 s33, {k}")
        a(f"{skip}:")
    for k in range(8): oload(k)
    for k in range(8):
        a(f"s_waitcnt vmcnt({7-k})")
        ocheck(k, f"L_ck{k}")
    a("L_tchk:")
    a("s_cmp_eq_u32 s33, 0")
    a("s_cbranch_scc0 L_tre")
    a("L_tgo:")
    D.stamp("polled")
    a("s_cmp_ge_u32 s20, 4")
    a("s_nop 0" if X1O else "s_cbranch_scc1 L_x1")
    a("s_nop 7")
    a("s_nop 1")
    a("L_x1r:")
    for p in range(1, 4):
        for part in range(2):
            r = AC[0] + 8*p + 4*part
            a(f"ds_write_b128 v{27+p}, v[{r}:{r+3}] offset:{1024*part}")
    a("s_waitcnt lgkmcnt(0)")
    if X1O:
        a("s_cbranch_scc1 L_t1")
        a("s_barrier")
        a("L_t1:")
    a("s_barrier")
    for i in range(6):
        a(f"ds_read_b128 v[{32+4*i}:{35+4*i}], v31 offset:{1024*i}")
    for p in range(3):
        a(f"s_waitcnt lgkmcnt({4-2*p})")
        for r in range(8):
            a(f"v_add_f32 v{AC[0]+r}, v{AC[0]+r}, v{32+8*p+r}")
    for i in range(4):
        a(f"v_cvt_pk_bf16_f32 v{32+i}, v{AC[0]+2*i}, v{AC[0]+2*i+1}")
    a("s_nop 1")
    a("v_permlane32_swap_b32 v32, v34")
    a("v_permlane32_swap_b32 v33, v35")
    a("s_nop 1")
    a("buffer_store_dwordx4 v[32:35], v6, s[16:19], s45 offen" + (" sc1" if opt.get("outsc1") else ""))
    if D.on:
        a("s_waitcnt vmcnt(0)")
        D.stamp("end"); D.stamp("rtend", True, slot=63)
        D.flush()
    a("L_end:")
    a("s_endpgm")
    a("L_x1:")
    a("ds_read_b32 v32, v25 offset:4")
    a("s_add_u32 s34, s34, 1")
    a("s_nop 7")
    a("s_nop 1")
    a("s_waitcnt lgkmcnt(0)")
    a("v_readfirstlane_b32 s28, v32")
    a(f"s_cmp_gt_u32 s34, {SPIN_MAX*8}")
    a("s_cbranch_scc1 L_x1r")
    a("s_cmp_eq_u32 s28, 512")
    a("s_cbranch_scc1 L_x1r")
    a("s_sleep 1")
    a("s_branch L_x1")
    a("L_tre:")
    if opt.get("tp", 0):
        for k in range(1, 8):
            a(f"s_bitcmp1_b32 s33, {k-1}")
            a(f"s_cbranch_scc1 L_sp_{k-1}")
        for k in range(7, -1, -1):
            a(f"L_sp_{k}:")
            a("s_add_u32 s34, s34, 1")
            a(f"s_cmp_gt_u32 s34, {SPIN_MAX}")
            a("s_cbranch_scc1 L_tgo")
            if opt.get("tsleep", 1): a(f"s_sleep {opt.get('tsleep', 1)}")
            oload(k)
            a("s_waitcnt vmcnt(0)")
            a(f"v_max3_u32 v24, v{OF[k]}, v{OF[k]+1}, v{OF[k]+2}")
            a(f"v_max_u32 v24, v24, v{OF[k]+3}")
            a("v_cmp_eq_u32 vcc, -1, v24")
            a(f"s_bitset0_b32 s33, {k}")
            a(f"s_bitset1_b32 s33, {8+k}")
            a(f"s_cbranch_vccz L_tall")
            a(f"s_bitset1_b32 s33, {k}")
            a(f"s_bitset0_b32 s33, {8+k}")
            a(f"s_branch L_sp_{k}")
        a("L_tall:")
        for k in range(1, 8):
            a(f"s_bitcmp1_b32 s33, {k}")
            a(f"s_cbranch_scc0 L_rl{k}")
            oload(k)
            a(f"L_rl{k}:")
        for k in range(8):
            a(f"s_bitcmp1_b32 s33, {8+k}")
            a(f"s_cbranch_scc0 L_rm{k}")
            a(mfma(AC[0], WF+4*k, OF[k]))
            a(mfma(AC[1], WF+32+4*k, OF[k]))
            a(f"L_rm{k}:")
        a("s_and_b32 s33, s33, 0xff")
        a("s_cbranch_scc0 L_tgo")
    else:
        a("s_add_u32 s34, s34, 1")
        a(f"s_cmp_gt_u32 s34, {SPIN_MAX}")
        a("s_cbranch_scc1 L_tgo")
        if opt.get("tsleep", 1): a(f"s_sleep {opt.get('tsleep', 1)}")
        for k in range(8):
            a(f"s_bitcmp1_b32 s33, {k}")
            a(f"s_cbranch_scc0 L_rl{k}")
            oload(k)
            a(f"L_rl{k}:")
    a("s_waitcnt vmcnt(0)")
    for k in range(8):
        a(f"s_bitcmp1_b32 s33, {k}")
        a(f"s_cbranch_scc0 L_rk{k}")
        ocheck(k, f"L_rk{k}")
    a("s_branch L_tchk")

    a("L_loop0:")
    a("s_mov_b32 s37, 0")
    body(True)
    if LATE:
        for r in range(4):
            a(f"v_mov_b32 v{24+r}, -1")
        a(f"s_sub_u32 s28, s57, {4 << 15}")
        a("buffer_store_dwordx4 v[24:27], v2, s[12:15], s57 offen sc1")
        a("buffer_store_dwordx4 v[24:27], v2, s[12:15], s28 offen sc1")
    D.stamp("it0")
    a("s_branch L_loop")
    a("L_fallback:")
    a("s_mov_b32 s38, 1")
    a("v_mov_b32 v5, v2")
    a(f"v_subrev_u32 v3, {TS*64}, v3")
    a(f"v_subrev_u32 v4, {TS*64}, v4")
    a(f"v_mov_b32 v26, {f2u(-3.0e38)}")
    a("s_mov_b32 s39, 0")
    a("L_fb_loop:")
    a(f"ds_read_b128 v[{KF}:{KF+3}], v5")
    a(f"v_add_u32 v5, {TS}, v5")
    a("s_waitcnt lgkmcnt(0)")
    a(mfma(S[0], KF, Q, "0"))
    a("s_nop 7")
    a("s_nop 3")
    for i in range(8):
        a(f"v_max3_f32 v26, v26, v{S[0]+2*i}, v{S[0]+2*i+1}")
    a("s_add_u32 s39, s39, 1")
    a("s_cmp_lt_u32 s39, 64")
    a("s_cbranch_scc1 L_fb_loop")
    a("v_mov_b32 v5, v2")
    a("v_mov_b32 v27, v26")
    a("s_nop 1")
    a("v_permlane32_swap_b32 v26, v27")
    a("s_nop 1")
    a("v_max_f32 v26, v26, v27")
    for r in range(16):
        a(f"v_sub_f32 v{NM+r}, 0, v26")
    zero_state()
    a("s_branch L_main")

    def setflag(val):
        a("s_mov_b64 exec, 1")
        a(f"v_mov_b32 v28, {val}")
        a("buffer_store_dword v28, v139, s[12:15], s60 offen sc1")
        a("s_mov_b64 exec, -1")
    def wof_store():
        a("ds_read_b64_tr_b16 v[24:25], v140")
        a("ds_read_b64_tr_b16 v[26:27], v140 offset:512")
        a("s_waitcnt lgkmcnt(0)")
        a("buffer_store_dwordx4 v[24:27], v2, s[12:15], s47 offen sc1")
    BIG = {"H1": "L_H1", "H2": "L_H2", "H3": "L_H3", "gs": "L_G", "hl": "L_Ahl", "at": "L_Aat"}
    RET = {}
    def action(x):
        if x == "hs":
            a("s_and_b32 s30, s20, 1")
            a("s_lshl_b32 s30, s30, 7")
            a(f"s_add_u32 s30, s30, {GFL + 64}")
            a("v_and_b32 v30, 31, v1")
            a("v_lshlrev_b32 v30, 2, v30")
            a("v_add_u32 v29, s30, v30")
            a("ds_read_b32 v136, v29")
            a("s_waitcnt vmcnt(0)")
            halo_stores()
            wof_store()
            a("s_lshl_b32 s30, s59, 6")
            a("s_add_u32 s30, s30, s58")
            a("s_lshl_b32 s30, s30, 7")
            a(f"s_add_u32 s30, s30, {WS_G}")
            a("v_sub_f32 v29, 1.0, v136")
            a("s_mov_b32 exec_hi, 0")
            a("buffer_store_dword v29, v30, s[12:15], s30 offen sc1")
            a("s_mov_b32 exec_hi, -1")
            D.stamp("hs")
        elif x == "f2":
            a("s_waitcnt vmcnt(0)")
            setflag(2)
            D.stamp("flag2")
        elif x == "f3":
            a("s_waitcnt vmcnt(0)")
            setflag(3)
            D.stamp("flag3")
        elif x == "pl":
            a("s_and_b32 s30, s23, 15")
            a("s_cmp_eq_u32 s30, 0")
            a(f"s_cselect_b32 s30, {127*128}, 0")
            a("s_cmp_eq_u32 s23, 0")
            a(f"s_cselect_b32 s30, {8*128}, s30")
            a("s_add_u32 s30, s30, s60")
            a(f"s_sub_u32 s46, s30, {8*128}")
            a("buffer_load_dword v24, v139, s[12:15], s46 offen sc1")
        elif x[0] == "p":
            a(f"s_setprio {x[1]}")
        else:
            raise ValueError(x)
    def dispatch(mid):
        ret = "L_mid_ret" if mid else "L_endh_ret"
        sreg = 62 if mid else 63
        nm = "M" if mid else "E"
        a("s_cmp_lt_u32 s20, 4")
        a(f"s_cbranch_scc0 L_{nm}l")
        for tn, Pg in (("c", PC), ("l", PL)):
            a(f"L_{nm}{tn}:")
            pos = sorted(p for p in Pg if (p % 8 == 4) == mid)
            for p_ in pos[1:]:
                a(f"s_cmp_eq_u32 s39, {p_//8}")
                a(f"s_cbranch_scc1 L_{nm}{tn}{p_}")
            for p_ in pos:
                a(f"L_{nm}{tn}{p_}:")
                a(f"s_mov_b32 s{sreg}, {first(Pg, mid, p_)}")
                big = [x for x in Pg[p_] if x in BIG]
                assert len(big) <= 1
                for x in Pg[p_]:
                    if x not in BIG: action(x)
                if big:
                    assert RET.setdefault(big[0], ret) == ret
                    a(f"s_branch {BIG[big[0]]}")
                else:
                    a(f"s_branch {ret}")
            if not pos: a(f"s_branch {ret}")
    a("L_mid:")
    dispatch(True)
    a("L_endh:")
    dispatch(False)
    a("L_H1:")
    a("s_and_b32 s28, s20, 3")
    a("s_lshr_b32 s29, s21, 2")
    a("s_lshl_b32 s30, s29, 3")
    a("s_and_b32 s31, s21, 3")
    a("s_add_u32 s30, s30, s31")
    a("s_and_b32 s31, s20, 4")
    a("s_add_u32 s30, s30, s31")
    a("s_lshr_b32 s31, s28, 1")
    a("s_lshl_b32 s32, s22, 1")
    a("s_add_u32 s42, s32, s31")
    a("s_xor_b32 s43, s42, 1")
    a("s_lshl_b32 s33, s28, 13")
    a("s_lshl_b32 s42, s42, 15")
    a("s_lshl_b32 s43, s43, 15")
    a("s_add_u32 s42, s42, s33")
    a("s_add_u32 s43, s43, s33")
    a(f"s_add_u32 s42, s42, {WS_WOF}")
    a(f"s_add_u32 s43, s43, {WS_WOF}")
    a("s_lshl_b32 s44, s30, 15")
    a("s_add_u32 s44, s44, s33")
    a("s_and_b32 s33, s22, 6")
    a("s_and_b32 s41, s22, 1")
    a("s_lshl_b32 s41, s41, 7")
    a("s_add_u32 s33, s33, s41")
    a("s_lshl_b32 s41, s28, 5")
    a("s_add_u32 s33, s33, s41")
    a("v_bfe_u32 v26, v1, 2, 2")
    a("v_lshlrev_b32 v26, 3, v26")
    a("v_bfe_u32 v27, v1, 4, 1")
    a("v_add3_u32 v26, v26, v27, s33")
    a("s_lshl_b32 s41, s28, 1")
    a("s_lshr_b32 s33, s30, 5")
    a("s_add_u32 s33, s33, s41")
    a("s_bfe_u32 s46, s30, 0x40001")
    a("s_lshl_b32 s46, s46, 3")
    a("s_add_u32 s33, s33, s46")
    a("v_bfe_u32 v27, v1, 2, 1")
    a("v_lshlrev_b32 v25, 7, v27")
    a("v_add_u32 v25, s33, v25")
    a("v_cmp_gt_u32 vcc, 32, v1")
    a("v_and_b32 v24, 3, v1")
    a("s_nop 0")
    a("v_cndmask_b32 v26, v25, v26, vcc")
    a("v_lshlrev_b32 v26, 7, v26")
    a("v_lshl_add_u32 v26, v24, 2, v26")
    a("s_lshr_b32 s33, s30, 3")
    a("s_lshl_b32 s33, s33, 5")
    a("s_add_u32 s33, s33, s41")
    a("v_lshl_add_u32 v25, v24, 3, v27")
    a("v_add_u32 v25, s33, v25")
    a("v_lshlrev_b32 v25, 7, v25")
    a("v_add_u32 v25, 16, v25")
    a("v_cmp_gt_u32 vcc, 48, v1")
    a(f"s_mov_b32 s41, {WS_F}")
    a("s_nop 0")
    a("v_cndmask_b32 v26, v25, v26, vcc")
    a("s_and_b32 s33, s26, 6")
    a("s_and_b32 s46, s26, 1")
    a("s_lshl_b32 s46, s46, 7")
    a("s_add_u32 s33, s33, s46")
    a("s_lshr_b32 s46, s56, 5")
    a("s_add_u32 s33, s33, s46")
    a("s_bfe_u32 s46, s56, 0x40001")
    a("s_lshl_b32 s46, s46, 3")
    a("s_add_u32 s33, s33, s46")
    a("s_lshl_b32 s33, s33, 5")
    a("s_and_b32 s46, s56, 1")
    a("s_add_u32 s33, s33, s46")
    a("s_and_b32 s46, s21, 2")
    a("s_add_u32 s33, s33, s46")
    a("s_lshl_b32 s33, s33, 2")
    a("v_cmp_gt_u32 vcc, 56, v1")
    a("v_mov_b32 v25, s33")
    a("s_nop 0")
    a("v_cndmask_b32 v26, v25, v26, vcc")
    a("buffer_load_dword v24, v26, s[12:15], s41 offen sc1")
    a("s_and_b32 s33, s28, 1")
    a("s_lshl_b32 s33, s33, 8")
    a("v_xor_b32 v7, s33, v2")
    a("s_cmp_lt_u32 s20, 4")
    a(f"s_cselect_b32 s29, {XCH}, 0")
    for p in range(1, 4):
        a(f"s_xor_b32 s33, s28, {p}")
        a("s_mul_i32 s33, s33, 6144")
        a("s_add_u32 s33, s33, s29")
        a(f"s_add_u32 s33, s33, {(p-1)*2048}")
        a(f"v_add_u32 v{27+p}, s33, v2")
    a("s_mul_i32 s33, s28, 6144")
    a("s_add_u32 s33, s33, s29")
    a("v_add_u32 v31, s33, v2")
    a("v_and_b32 v6, 31, v1")
    a("v_lshlrev_b32 v6, 11, v6")
    a("v_lshrrev_b32 v138, 5, v1")
    a("v_lshl_add_u32 v6, v138, 4, v6")
    a("s_lshr_b32 s33, s30, 1")
    a("s_lshl_b32 s33, s33, 6")
    a("s_and_b32 s45, s30, 1")
    a("s_add_u32 s33, s33, s45")
    a("s_lshl_b32 s33, s33, 10")
    a("s_lshl_b32 s45, s22, 7")
    a("s_add_u32 s45, s45, s33")
    a("s_lshl_b32 s33, s28, 5")
    a("s_add_u32 s45, s45, s33")
    a("s_mov_b32 s16, s50")
    a("s_mov_b32 s17, s51")
    a("s_mov_b32 s18, 0x200000")
    a("s_mov_b32 s19, 0x00020000")
    a(f"s_branch {RET['H1']}")

    def wload(br):
        for pct in range(2):
            for k in range(8):
                if k % 4 == 0:
                    a(f"s_add_u32 s33, s{42+pct}, {br*512*1024 + 1024*k}")
                r = WF + 32*pct + 4*k
                a(f"buffer_load_dwordx4 v[{r}:{r+3}], v7, s[12:15], s33 offen offset:{(k%4)*1024} sc1")
    a("L_H2:")
    a("s_mov_b32 s33, 0")
    a("L_H2_chk:")
    a("s_waitcnt vmcnt(0)")
    a("v_cmp_ne_u32 vcc, 3, v24")
    a("s_add_u32 s33, s33, 1")
    a(f"s_cmp_gt_u32 s33, {SPIN_MAX}")
    a("s_cbranch_scc1 L_H2_go")
    a("s_cbranch_vccz L_H2_go")
    a("s_sleep 2")
    a("buffer_load_dword v24, v26, s[12:15], s41 offen sc1")
    a("s_branch L_H2_chk")
    a("L_H2_go:")
    qg_offsets(30, 31)
    a("v_and_b32 v24, 31, v1")
    a("v_lshlrev_b32 v24, 2, v24")
    a(f"buffer_load_dword v{GB}, v24, s[12:15], s31 offen sc1")
    a(f"s_add_u32 s30, s44, {WS_OA}")
    a(f"s_add_u32 s31, s44, {WS_OA + 4096}")
    for k in range(8): oload(k)
    wload(0)
    a(f"s_branch {RET['H2']}")
    a("L_H3:")
    a("s_waitcnt vmcnt(0)")
    for k in range(8):
        a(mfma(AC[0], WF+4*k, OF[k], "0" if k == 0 else None))
        a(mfma(AC[1], WF+32+4*k, OF[k], "0" if k == 0 else None))
    wload(1)
    a(f"s_branch {RET['H3']}")

    a("L_G:")
    a(f"v_mov_b32 v28, {GFL}")
    a("s_mov_b32 s31, 0")
    a("s_cmp_lt_u32 s20, 4")
    a("s_cbranch_scc1 L_G1")
    a("v_mov_b32 v30, 1")
    a("s_waitcnt vmcnt(0)")
    a("ds_add_u32 v28, v30")
    a("L_G1:")
    if opt.get("gbar", 1):
        a("s_barrier")
    else:
        a("ds_read_b32 v24, v28")
        a("s_add_u32 s31, s31, 1")
        a("s_waitcnt lgkmcnt(0)")
        a("v_readfirstlane_b32 s28, v24")
        a(f"s_cmp_gt_u32 s31, {SPIN_MAX*8}")
        a("s_cbranch_scc1 L_G3")
        a("s_cmp_eq_u32 s28, 256")
        a("s_cbranch_scc1 L_G3")
        a(f"s_sleep {opt.get('gsleep', 2)}")
        a("s_branch L_G1")
    a("L_G3:")
    D.stamp("G")
    if LPG is not None:
        a("s_cmp_lt_u32 s20, 4")
        a("s_cbranch_scc1 L_G4")
        a(f"s_setprio {LPG}")
        a("L_G4:")
    a("s_cmp_eq_u32 s20, 0")
    a(f"s_cbranch_scc0 {RET['gs']}")
    a("s_mov_b64 exec, 1")
    a("v_mov_b32 v25, 3")
    a("buffer_store_dword v25, v139, s[12:15], s60 offen offset:16 sc1")
    a("s_mov_b64 exec, -1")
    a(f"s_branch {RET['gs']}")
    KP, VP, ONES, PP = 140, 148, 152, 156
    MC, MP, SC, SP, OA, LL = 160, 176, 192, 208, 224, 240
    a("L_Ahl:")
    a("s_waitcnt vmcnt(0)")
    a(f"s_mov_b32 s44, {f2u(1000.0)}")
    a("s_cmp_eq_u32 s23, 0")
    a("s_cbranch_scc1 L_A_nohalo")
    a("s_mov_b32 s44, 0")
    a("s_mov_b32 s31, 0")
    a("L_A_poll:")
    a("s_add_u32 s31, s31, 1")
    a("s_waitcnt vmcnt(0)")
    a("v_readfirstlane_b32 s28, v24")
    a(f"s_cmp_gt_u32 s31, {SPIN_MAX}")
    a("s_cbranch_scc1 L_A_go")
    a("s_cmp_ge_u32 s28, 2")
    a("s_cbranch_scc1 L_A_go")
    a("s_sleep 2")
    a("buffer_load_dword v24, v139, s[12:15], s46 offen sc1")
    a("s_branch L_A_poll")
    a("L_A_go:")
    a("s_sub_u32 s30, s61, 32")
    a("s_lshl_b32 s30, s30, 12")
    a(f"s_add_u32 s30, s30, {WS_HALO}")
    a(f"buffer_load_dwordx4 v[{KP}:{KP+3}], v2, s[12:15], s30 offen sc1")
    a(f"buffer_load_dwordx4 v[{KP+4}:{KP+7}], v2, s[12:15], s30 offen offset:1024 sc1")
    a("v_lshrrev_b32 v28, 1, v2")
    a(f"v_mov_b32 v{VP}, 0")
    a(f"v_mov_b32 v{VP+1}, 0")
    a(f"buffer_load_dwordx2 v[{VP+2}:{VP+3}], v28, s[12:15], s30 offen offset:2048 sc1")
    a("s_branch L_A_masks")
    a("L_A_nohalo:")
    for r in range(8):
        a(f"v_mov_b32 v{KP+r}, v{KA+r}")
    for r in range(4):
        a(f"v_mov_b32 v{VP+r}, v{VA+4+r}")
    a("L_A_masks:")
    a("v_and_b32 v24, 31, v1")
    a("v_lshrrev_b32 v25, 5, v1")
    a("v_lshlrev_b32 v26, 2, v25")
    a("v_sub_u32 v26, v24, v26")
    a("v_cvt_f32_i32 v26, v26")
    a(f"v_add_f32 v26, {f2u(-3.5)}, v26")
    a("v_add_f32 v28, s44, v26")
    a(f"s_mov_b32 s45, {f2u(-1e30)}")
    for r in range(16):
        cst = 8*(r//4) + (r % 4)
        a(f"v_subrev_f32 v{MC+r}, {f2u(float(cst))}, v26")
    for b in range(4):
        a(f"v_subrev_f32 v{MP+12+b}, {f2u(float(b-8))}, v28")
    regs = [MC+r for r in range(16)] + [MP+12+b for b in range(4)]
    for r in regs:
        a(f"v_add_f32_e64 v{r}, |v{r}|, -4.0 clamp")
    for r in regs:
        a(f"v_mul_f32 v{r}, s45, v{r}")
    for r in range(12):
        a(f"v_mov_b32 v{MP+r}, 0")
    for r in range(4):
        a(f"v_mov_b32 v{ONES+r}, 0x3f803f80")
    a(f"v_mov_b32 v{PP}, 0")
    a(f"v_mov_b32 v{PP+1}, 0")
    D.stamp("hl")
    a(f"s_branch {RET['hl']}")
    a("L_Aat:")
    a("s_lshl_b32 s30, s58, 15")
    a("s_lshl_b32 s28, s59, 11")
    a("s_add_u32 s30, s30, s28")
    a(f"s_add_u32 s30, s30, {WS_OA}")
    a("s_waitcnt vmcnt(0)")
    for e in range(2):
        a(mfma(SC, KA+4*e, QA+4*e, MC))
        a(mfma(SP, KP+4*e, QA+4*e, MP))
        a("s_nop 7")
        a("s_nop 2")
        a(f"v_max3_f32 v26, v{SC}, v{SC+1}, v{SC+2}")
        a(f"v_max3_f32 v27, v{SC+3}, v{SC+4}, v{SC+5}")
        a(f"v_max3_f32 v26, v26, v{SC+6}, v{SC+7}")
        a(f"v_max3_f32 v27, v27, v{SC+8}, v{SC+9}")
        a(f"v_max3_f32 v26, v26, v{SC+10}, v{SC+11}")
        a(f"v_max3_f32 v27, v27, v{SC+12}, v{SC+13}")
        a(f"v_max3_f32 v26, v26, v{SC+14}, v{SC+15}")
        a(f"v_max3_f32 v27, v27, v{SP+12}, v{SP+13}")
        a(f"v_max3_f32 v26, v26, v{SP+14}, v{SP+15}")
        a("v_max_f32 v26, v26, v27")
        a("v_mov_b32 v27, v26")
        a("s_nop 1")
        a("v_permlane32_swap_b32 v26, v27")
        a("s_nop 1")
        a("v_max_f32 v26, v26, v27")
        sregs = [SC+r for r in range(16)] + [SP+12+b for b in range(4)]
        for r in sregs:
            a(f"v_sub_f32 v{r}, v{r}, v26")
        for r in sregs:
            a(f"v_exp_f32 v{r}, v{r}")
        a(f"v_cvt_pk_bf16_f32 v{PP+2}, v{SP+12}, v{SP+13}")
        for i in range(8):
            a(f"v_cvt_pk_bf16_f32 v{SC+i}, v{SC+2*i}, v{SC+2*i+1}")
        a(f"v_cvt_pk_bf16_f32 v{PP+3}, v{SP+14}, v{SP+15}")
        a("s_nop 0")
        a(mfma(LL, ONES, SC, "0"))
        a(mfma(OA, VA, SC, "0"))
        a(mfma(LL, ONES, SC+4))
        a(mfma(OA, VA+4, SC+4))
        a(mfma(LL, ONES, PP))
        a(mfma(OA, VP, PP))
        a("s_nop 7")
        a("s_nop 2")
        a(f"v_rcp_f32 v26, v{LL}")
        a("s_nop 0")
        a("v_mul_f32 v26, v26, v136")
        for r in range(8):
            a(f"v_mul_f32 v{OA+8*e+r}, v{OA+8*e+r}, v26")
        for i in range(4):
            a(f"v_cvt_pk_bf16_f32 v{28+i}, v{OA+8*e+2*i}, v{OA+8*e+2*i+1}")
        a(f"buffer_store_dwordx4 v[28:31], v2, s[12:15], s30 offen offset:{1024*e} sc1")
    D.stamp("Aattn")
    a(f"s_branch {RET['at']}")
    if D.on:
        json.dump(D.names, open("names3.json", "w"))
    return 256

HEADER = open("gated_mix__sliding_local_dilated__softmax_full_mha__prompt.s.ref").read().split("; Override launch")[0]

def main(out, opt):
    a = Asm()
    n = gen(a, opt)
    a("L_code_end:")
    a("s_endpgm")
    s = HEADER
    s += "; generated by gen/gen10.py (hand-written generator)\n"
    s += "; @launch grid=(256,1,1) block=(512,1,1) lds=163840\n"
    s += '.amdgcn_target "amdgcn-amd-amdhsa--gfx950"\n.text\n'
    s += a.text()
    s += kd("KNAME", n)
    open(out, "w").write(s.replace("KNAME", KN))

if __name__ == "__main__":
    out = sys.argv[1] if len(sys.argv) > 1 else "gated_mix__sliding_local_dilated__softmax_full_mha__prompt.s"
    opt = {}
    for kv in sys.argv[2:]:
        k, v = kv.split("=")
        opt[k] = int(v)
    main(out, opt)
```

```python
import sys, math, struct, json
from asmlib import *

MB = 1 << 20
WS_QB   = 0
WS_KV   = 2*MB
WS_HALO = 6*MB
WS_OA   = 10*MB
WS_OB   = 12*MB
WS_WOF  = 14*MB
WS_G    = 15*MB
WS_F    = 15*MB + 256*1024
WS_SIZE = 16*MB
DIAG_BASE = 32*MB
QSCALE = 0.25 * math.log2(math.e)
TS = 2064
XCH = 64*TS
SCR = XCH + 24576
SPIN_MAX = 40000
KN = "gated_mix__sliding_local_dilated__softmax_full_mha__prompt_kernel"
def f2u(x): return struct.unpack("<I", struct.pack("<f", x))[0]

class Diag:
    def __init__(self, a, opt):
        self.a, self.on = a, opt.get("diag", 0)
        self.names = {}
        self.n = 16
    def stamp(self, name, real=False, slot=None, dyn=None):
        if not self.on: return
        a = self.a
        if dyn is None:
            if slot is None:
                if name not in self.names:
                    self.names[name] = self.n; self.n += 1
                slot = self.names[name]
            else:
                self.names[name] = slot
            assert slot < 64
        a(f"s_{'memrealtime' if real else 'memtime'} s[64:65]")
        if dyn is not None: a(dyn)
        a("s_waitcnt lgkmcnt(0)")
        a(f"v_writelane_b32 v0, s64, {'m0' if dyn is not None else slot}")
    def flush(self):
        if not self.on: return
        a = self.a
        a("s_mov_b32 s96, s54")
        a("s_mov_b32 s97, s55")
        a(f"s_mov_b32 s98, {64*MB}")
        a("s_mov_b32 s99, 0x00020000")
        a("s_lshl_b32 s100, s2, 3")
        a("s_add_u32 s100, s100, s20")
        a("s_lshl_b32 s100, s100, 8")
        a(f"s_add_u32 s100, s100, {DIAG_BASE}")
        a("s_mov_b64 exec, -1")
        a("v_lshlrev_b32 v24, 2, v1")
        a("buffer_store_dword v0, v24, s[96:99], s100 offen")
        a("s_waitcnt vmcnt(0)")

def mfma(d, A, B, C=None):
    c = f"v[{d}:{d+15}]" if C is None else (C if isinstance(C, str) else f"v[{C}:{C+15}]")
    return f"v_mfma_f32_32x32x16_bf16 v[{d}:{d+15}], v[{A}:{A+3}], v[{B}:{B+3}], {c}"

def gen(a, opt):
    U = 8
    FMAX = opt.get("fmax", 4)
    LATE = 1
    PC, PL = {}, {}
    def prog(P, pos, x): P.setdefault(pos, []).append(x)
    prog(PC, opt.get("hs", 8), "hs"); prog(PC, opt.get("f2", 12), "f2")
    prog(PC, opt.get("pl", 20), "pl"); prog(PC, opt.get("hl", 24), "hl"); prog(PC, opt.get("at", 28), "at")
    prog(PC, opt.get("f3", 32), "f3")
    for P in (PC, PL):
        prog(P, opt.get("h1", 44), "H1"); prog(P, opt.get("h2", 48), "H2"); prog(P, opt.get("h3", 56), "H3")
    H4C, H4L = opt.get("h4c", 0), opt.get("h4l", 0)
    if H4C: prog(PC, H4C, "h4")
    if H4L: prog(PL, H4L, "h4")
    CP0, LP0 = opt.get("cp0", 3), opt.get("lp0", 3)
    LPG = None
    for k, pos in enumerate((opt.get("c1", 32), opt.get("c2", 48), opt.get("c3", 56))):
        if 0 < pos < 64: prog(PC, pos, f"p{2-k}")
    for k, pos in enumerate((opt.get("l1", 32), opt.get("l2", 48), opt.get("l3", 56))):
        if 0 < pos < 64: prog(PL, pos, f"p{2-k}")
    if opt.get("cup", 0): prog(PC, opt["cup"], "p3")
    def first(P, mid, after=-1):
        c = [p for p in P if p > after and (p % 8 == 4) == mid]
        return min(c)//8 if c else 99
    S = [32, 48]; P = [64, 72]; O = 80; NM = 96
    GFL = SCR + 4096
    def loop_init():
        a("v_and_b32 v24, 31, v1")
        a("v_lshrrev_b32 v25, 5, v1")
        a("v_lshlrev_b32 v6, 4, v24")
        a("v_lshl_add_u32 v6, v25, 8, v6")
        a("v_mov_b32 v5, 2048")
        if opt.get("zrow", 1):
            a("v_and_b32 v26, 27, v24")
            a("v_mov_b32 v27, 0x40000")
            a("v_cmp_eq_u32 vcc, 16, v26")
            a("s_nop 1")
            a("v_cndmask_b32 v5, v27, v5, vcc")
        a("v_cmp_gt_u32 vcc, 16, v24")
        a("v_add_u32 v3, 1024, v6")
        a("v_add_u32 v4, 1536, v6")
        a("v_cndmask_b32 v3, v5, v3, vcc")
        a("v_cndmask_b32 v4, v5, v4, vcc")
        a("v_mov_b32 v5, v2")
        a("s_mov_b32 s38, 0")
        for r in range(16):
            a(f"v_mov_b32 v{NM+r}, 0")
        zero_state()
    def zero_state():
        for r in range(8):
            a(f"v_mov_b32 v{P[1]+r}, 0")
            a(f"v_mov_b32 v{16+r}, 0")
        for r in range(16):
            a(f"v_mov_b32 v{O+r}, 0")
    a(".p2align 8")
    a(".globl KNAME")
    a(".type KNAME,@function")
    a("KNAME:")
    a("s_cmp_ge_u32 s2, 256")
    a("s_cbranch_scc1 L_end")
    D = Diag(a, opt)
    if D.on:
        a("s_memrealtime s[66:67]")
        a("s_memtime s[68:69]")
        a("s_waitcnt lgkmcnt(0)")
    a("s_load_dwordx16 s[36:51], s[0:1], 0")
    a("s_load_dwordx4 s[52:55], s[0:1], 64")
    a("v_lshrrev_b32 v2, 6, v0")
    a("v_and_b32 v1, 63, v0")
    if D.on:
        a("v_mov_b32 v0, 0")
        a("v_writelane_b32 v0, s66, 62")
        a("v_writelane_b32 v0, s68, 61")
    a("v_readfirstlane_b32 s20, v2")
    a("v_lshlrev_b32 v2, 4, v1")
    a("s_and_b32 s26, s2, 7")
    a("s_lshr_b32 s27, s2, 3")
    a("s_and_b32 s23, s26, 1")
    a("s_lshl_b32 s23, s23, 4")
    a("s_and_b32 s28, s27, 15")
    a("s_add_u32 s23, s23, s28")
    a("s_and_b32 s24, s26, 6")
    a("s_lshr_b32 s28, s27, 4")
    a("s_add_u32 s24, s24, s28")
    a("s_lshl_b32 s28, s28, 2")
    a("s_add_u32 s25, s27, s28")
    a("s_and_b32 s25, s25, 7")
    a("s_lshl_b32 s25, s25, 7")
    def late_ids():
        a("s_lshl_b32 s21, s26, 2")
        a("s_and_b32 s28, s27, 3")
        a("s_add_u32 s21, s21, s28")
        a("s_lshr_b32 s22, s27, 2")
        a("s_lshl_b32 s56, s22, 2")
        a("s_and_b32 s28, s20, 3")
        a("s_add_u32 s56, s56, s28")
        a("s_lshl_b32 s56, s56, 1")
        a("s_lshr_b32 s28, s20, 2")
        a("s_add_u32 s56, s56, s28")
        a("s_lshl_b32 s57, s56, 15")
        a("s_lshl_b32 s28, s21, 10")
        a("s_add_u32 s57, s57, s28")
        a(f"s_add_u32 s57, s57, {WS_OB}")
    a("v_mov_b32 v139, 0")
    a("s_getpc_b64 s[98:99]")
    a("L_pc:")
    a("s_sub_u32 s98, s98, L_pc-KNAME")
    a("s_subb_u32 s99, s99, 0")
    a("s_and_b32 s100, s2, 0xf8")
    a("s_add_u32 s100, s100, s20")
    a("s_lshl_b32 s100, s100, 7")
    a("s_min_u32 s100, s100, L_code_end-KNAME-4")
    def code_pf():
        if opt.get("npf", 1): a("s_load_dword s101, s[98:99], s100")
    a("s_cmp_ge_u32 s20, 4")
    a("s_cbranch_scc0 L_compute")
    Q, KF, V0, V1 = 8, 12, 16, 20
    GB = 137
    def qg_offsets(sq, sg, gate=True):
        if not gate:
            a(f"s_lshl_b32 s{sq}, s21, 16")
            a("s_lshl_b32 s28, s56, 10")
            a(f"s_add_u32 s{sq}, s{sq}, s28")
            return
        a(f"s_lshr_b32 s{sg}, s21, 1")
        a(f"s_lshl_b32 s{sg}, s{sg}, 6")
        a(f"s_add_u32 s{sg}, s{sg}, s56")
        a(f"s_lshl_b32 s{sg}, s{sg}, 7")
        a(f"s_add_u32 s{sg}, s{sg}, {WS_G}")

    a("s_setprio 2")
    a("s_sub_u32 s29, s20, 4")
    a("v_lshrrev_b32 v6, 3, v1")
    a("v_lshrrev_b32 v7, 4, v1")
    a("v_and_b32 v8, 7, v1")
    a("v_xor_b32 v9, v8, v7")
    a("v_xor_b32 v10, 4, v9")
    a("v_lshlrev_b32 v3, 11, v6")
    a("v_lshl_add_u32 v4, v10, 4, v3")
    a("v_lshl_add_u32 v3, v9, 4, v3")
    a("v_and_b32 v7, 1, v7")
    a("v_lshlrev_b32 v7, 2, v7")
    a("v_xor_b32 v7, v8, v7")
    a("v_mul_u32_u24 v5, 3072, v6")
    a("v_lshl_add_u32 v5, v7, 4, v5")
    a("s_lshr_b32 s28, s29, 1")
    a("s_lshl_b32 s30, s23, 6")
    a("s_add_u32 s30, s30, s28")
    a("s_lshl_b32 s30, s30, 10")
    a("s_lshl_b32 s31, s28, 12")
    a("s_and_b32 s28, s29, 1")
    a("s_lshl_b32 s33, s28, 15")
    a("s_add_u32 s30, s30, s33")
    a("s_lshl_b32 s33, s28, 11")
    a("s_add_u32 s31, s31, s33")
    a("s_mul_i32 s32, s29, 49152")
    a("s_lshl_b32 s28, s24, 7")
    a("s_add_u32 s32, s32, s28")
    a("s_lshl_b32 s33, s29, 11")
    a("s_add_u32 s33, s33, 65536")
    a("s_mov_b32 s58, 0")
    a("s_mov_b32 s6, 0x200000")
    a("s_mov_b32 s7, 0x00020000")
    a("s_mov_b32 s10, 0x180000")
    a("s_mov_b32 s11, 0x00020000")
    a(f"s_mov_b32 s14, {WS_SIZE}")
    a("s_mov_b32 s15, 0x00020000")
    a("s_waitcnt lgkmcnt(0)")
    a("s_mov_b32 s4, s36")
    a("s_mov_b32 s5, s37")
    a("s_mov_b32 s8, s44")
    a("s_mov_b32 s9, s45")
    a("s_mov_b32 s12, s54")
    a("s_mov_b32 s13, s55")
    a("s_mov_b64 s[16:17], s[50:51]")
    a("s_mov_b64 s[18:19], s[6:7]")
    D.stamp("karg")
    code_pf()
    def wloads():
        for t in range(3):
            for jj in range(2):
                a(f"s_add_u32 m0, s33, {8192*t + 1024*jj}")
                a(f"s_add_u32 s28, s34, {1024*t + 24576*jj}")
                a("buffer_load_dwordx4 v5, s[8:11], s28 offen lds")
    def advance():
        a("s_add_u32 s25, s25, 128")
        a("s_and_b32 s25, s25, 1023")
        a("s_add_u32 s33, s33, 24576")
        a("s_cmp_ge_u32 s33, 163840")
        a("s_cselect_b32 s28, 98304, 0")
        a("s_sub_u32 s33, s33, s28")
        a("s_add_u32 s58, s58, 1")
    def flag_check():
        a("v_add_u32 v24, -1, v14")
        a("v_cmp_le_u32 vcc, 3, v24")
    def snap():
        a("s_mov_b32 exec_lo, s46")
        a("s_mov_b32 exec_hi, s46")
        a("buffer_load_dword v14, v12, s[12:15], s45 offen sc1")
        a("s_mov_b64 exec, -1")
    a("L_ldB:")
    a("s_mul_i32 s34, s25, 1536")
    a("s_add_u32 s35, s30, s25")
    a("s_mov_b32 m0, s31")
    a("s_add_u32 s34, s34, s32")
    a("buffer_load_dwordx4 v3, s[4:7], s35 offen lds")
    a("s_add_u32 m0, s31, 1024")
    a("s_add_u32 s28, s35, 16384")
    a("buffer_load_dwordx4 v4, s[4:7], s28 offen lds")
    wloads()
    a("s_add_u32 s31, s31, 8192")
    advance()
    if opt.get("pro", 3) == 2:
        a("s_cmp_eq_u32 s58, 2")
        a("s_cbranch_scc0 L_nb0")
        a("s_waitcnt vmcnt(8)")
        a("s_barrier")
        D.stamp("b0", slot=0)
        a("s_branch L_ldB")
        a("L_nb0:")
        a("s_cmp_lt_u32 s58, 4")
    else:
        a("s_cmp_lt_u32 s58, 3")
    a("s_cbranch_scc1 L_ldB")
    a("s_waitcnt vmcnt(16)")
    if opt.get("diag", 0) > 1: D.stamp("w", dyn="s_add_u32 m0, s58, 37")
    a("s_barrier")
    D.stamp("b", dyn="s_sub_u32 m0, s58, 3")
    a("s_cmp_lt_u32 s58, 8")
    a("s_cbranch_scc1 L_ldB")
    a("s_mov_b64 s[8:9], s[38:39]")
    a("v_mov_b32 v12, 0")
    a("v_mov_b32 v31, 0")
    a("L_ldA:")
    a("s_mul_i32 s34, s25, 1536")
    a("s_add_u32 s34, s34, s32")
    wloads()
    advance()
    a("s_cmp_eq_u32 s58, 12")
    a("s_cbranch_scc1 L_lsetup")
    a("L_lsetup_ret:")
    a("s_waitcnt vmcnt(12)")
    if opt.get("diag", 0) > 1: D.stamp("w", dyn="s_add_u32 m0, s58, 37")
    a("s_barrier")
    D.stamp("b", dyn="s_sub_u32 m0, s58, 3")
    a("s_cmp_lt_u32 s58, 16")
    a("s_cbranch_scc1 L_ldA")
    def snapshot(mask):
        a(f"s_mov_b32 exec_lo, {mask}")
        a("s_mov_b32 exec_hi, 0")
        a("v_mov_b32 v14, -1")
        a("buffer_load_dword v14, v12, s[12:15], s45 offen sc1")
        a("s_mov_b64 exec, -1")
    def ready():
        return ["v_add_u32 v29, -1, v14",
                "v_cmp_gt_u32 vcc, 3, v29",
                "s_nop 0",
                "s_lshr_b32 s28, vcc_lo, 1",
                "s_and_b32 s43, s28, vcc_lo",
                "s_and_b32 s43, s43, 0x5555"]
    def pair_a():
        return ["s_mov_b32 m0, s41",
                "s_ff1_i32_b32 s28, s34",
                "s_bitset0_b32 s42, s28",
                "s_lshl_b32 s28, s28, 13",
                "s_add_u32 s33, s28, s40",
                "buffer_load_dwordx4 v2, s[12:15], s33 offen sc1 lds",
                "buffer_load_dwordx4 v2, s[12:15], s33 offen offset:1024 sc1 lds"]
    def pair_b():
        return ["s_add_u32 m0, s41, 16",
                "s_add_u32 s41, s41, 16512",
                "buffer_load_dwordx4 v2, s[12:15], s33 offen offset:2048 sc1 lds",
                "buffer_load_dwordx4 v2, s[12:15], s33 offen offset:3072 sc1 lds"]
    if opt.get("pdel", 0): a(f"s_sleep {opt['pdel']}")
    snapshot("0xffff")
    loop_init()
    a(f"s_mov_b32 s62, {first(PL, True)}")
    a(f"s_mov_b32 s63, {first(PL, False)}")
    a("s_mov_b32 s37, 1")
    a("s_mov_b32 s36, 1")
    a("s_waitcnt vmcnt(1)")
    a("s_barrier")
    D.stamp("b14", slot=14)
    a("s_mov_b32 exec_lo, 0x3fffe")
    a("s_mov_b32 exec_hi, 0")
    a("ds_write_b128 v28, v[32:35] offset:2048")
    a("s_mov_b64 exec, -1")
    a("L_pw:")
    a("v_cmp_eq_u32 vcc, -1, v14")
    a("s_add_u32 s47, s47, 1")
    a(f"s_cmp_gt_u32 s47, {SPIN_MAX*4}")
    a("s_cbranch_scc1 L_pforce")
    a("s_cbranch_vccz L_pgot")
    a("s_sleep 1")
    a("s_branch L_pw")
    a("L_pforce:")
    a("s_mov_b32 s43, 0x5555")
    a("s_mov_b32 s35, 0")
    a("s_branch L_pq")
    a("L_pgot:")
    for l in ready(): a(l)
    a("s_and_b32 s34, s43, s42")
    a("s_bcnt1_i32_b32 s35, s34")
    a("s_add_u32 s35, s35, s44")
    a("s_cmp_lt_u32 s35, 2")
    a("s_cselect_b32 s35, 0x5555, s46")
    a("s_andn2_b32 s35, s35, s43")
    a("s_mul_i32 s35, s35, 3")
    a("s_cmp_eq_u32 s35, 0")
    a("s_cbranch_scc1 L_pq")
    if opt.get("psl", 0): a(f"s_sleep {opt['psl']}")
    snapshot("s35")
    a("L_pq:")
    a("s_and_b32 s28, s43, s61")
    a("s_cbranch_scc0 L_pp")
    a("s_mov_b64 exec, 1")
    a("ds_write_b32 v13, v32")
    a("s_mov_b64 exec, -1")
    a(f"buffer_load_dwordx4 v[{Q}:{Q+3}], v2, s[12:15], s30 offen sc1")
    a("s_mov_b32 s61, 0")
    D.stamp("lq")
    a("L_pp:")
    a("s_cmp_ge_u32 s44, 2")
    a("s_cbranch_scc1 L_pe")
    a("s_and_b32 s34, s43, s42")
    a("s_cbranch_scc0 L_pe")
    for l in pair_a() + pair_b(): a(l)
    a("s_add_u32 s44, s44, 1")
    a("s_branch L_pp")
    a("L_pe:")
    a("s_cmp_lg_u32 s35, 0")
    a("s_cbranch_scc1 L_pw")
    D.stamp("dog")
    a("s_andn2_b32 s35, 0x5555, s43")
    a("s_mul_i32 s35, s35, 3")
    a("s_cmp_eq_u32 s35, 0")
    a("s_waitcnt vmcnt(0) lgkmcnt(0)")
    a("s_cbranch_scc1 L_nosf")
    a("s_mov_b32 exec_lo, s35")
    a("s_mov_b32 exec_hi, 0")
    a("v_mov_b32 v30, -1")
    a("buffer_load_dword v30, v31, s[12:15], s45 offen sc1")
    a("s_mov_b64 exec, -1")
    a("L_nosf:")
    a("s_barrier")
    D.stamp("F2")
    a(f"s_setprio {LP0}")
    a("s_mov_b32 exec_lo, 0xfffc0000")
    a("ds_write_b128 v28, v[32:35] offset:2048")
    a("s_mov_b32 exec_lo, -1")
    if not opt.get("x1old", 1):
        a(f"v_mov_b32 v29, {GFL}")
        a("ds_write_b32 v29, v139 offset:4")
    a("s_branch L_main")
    a("L_lsetup:")
    late_ids()
    qg_offsets(30, 31, False)
    a("s_mov_b64 s[16:17], s[50:51]")
    a("s_lshl_b32 s40, s21, 17")
    a("s_lshl_b32 s28, s29, 12")
    a("s_add_u32 s40, s40, s28")
    a(f"s_add_u32 s40, s40, {WS_KV}")
    a("s_mul_i32 s41, s29, 4128")
    a("s_mov_b32 s42, 0x5555")
    a("s_mov_b32 s44, 0")
    a("s_mov_b32 s47, 0")
    a("s_lshl_b32 s28, s22, 1")
    a("s_lshl_b32 s46, 1, s28")
    a("s_mov_b32 s61, s46")
    a("s_and_b32 s45, s26, 6")
    a("s_and_b32 s28, s26, 1")
    a("s_lshl_b32 s28, s28, 7")
    a("s_add_u32 s45, s45, s28")
    a("s_lshl_b32 s28, s29, 3")
    a("s_add_u32 s45, s45, s28")
    a("s_lshl_b32 s45, s45, 7")
    a("s_and_b32 s28, s21, 2")
    a("s_lshl_b32 s28, s28, 2")
    a("s_add_u32 s45, s45, s28")
    a(f"s_add_u32 s45, s45, {WS_F}")
    a("v_bfe_u32 v12, v1, 3, 1")
    a("v_lshlrev_b32 v12, 7, v12")
    a("v_bfe_u32 v13, v1, 1, 2")
    a("v_lshl_add_u32 v12, v13, 12, v12")
    a("v_and_b32 v13, 1, v1")
    a("v_lshl_add_u32 v12, v13, 2, v12")
    a("v_mov_b32 v31, v12")
    a("s_lshl_b32 s28, s29, 2")
    a("s_add_u32 s28, s28, 2048")
    a("v_mov_b32 v13, s28")
    a("v_mov_b32 v14, 0")
    a("v_mov_b32 v30, 0")
    a(f"v_mul_u32_u24 v28, {TS}, v1")
    for r in range(4):
        a(f"v_mov_b32 v{32+r}, 0x3f803f80")
    a("s_branch L_lsetup_ret")

    a("L_compute:")
    if opt.get("cprio", 3): a(f"s_setprio {opt.get('cprio', 3)}")
    a("s_and_b32 s28, s20, 1")
    a("s_lshr_b32 s29, s20, 1")
    a("s_lshl_b32 s58, s23, 1")
    a("s_add_u32 s58, s58, s28")
    a("s_lshl_b32 s59, s24, 1")
    a("s_add_u32 s59, s59, s29")
    a("v_and_b32 v7, 31, v1")
    a("v_lshrrev_b32 v8, 5, v1")
    a("s_lshl_b32 s61, s58, 4")
    a("s_add_u32 s61, s61, s59")
    a("s_lshl_b32 s30, s2, 12")
    a(f"s_add_u32 s30, s30, {WS_F}")
    for r in range(4): a(f"v_mov_b32 v{24+r}, 0")
    a("v_bfe_u32 v9, v1, 1, 3")
    a("v_lshlrev_b32 v9, 5, v9")
    a("v_lshl_add_u32 v9, v8, 4, v9")
    a("v_add_u32 v9, s25, v9")
    a("v_lshrrev_b32 v10, 4, v1")
    a("v_xor_b32 v10, v10, v1")
    a("v_and_b32 v10, 1, v10")
    for i in range(4):
        a(f"v_add_u32 v{224+i}, {256*i}, v9")
        a(f"v_and_b32 v{224+i}, 1023, v{224+i}")
        a(f"v_lshl_add_u32 v{224+i}, v10, 16, v{224+i}")
    a("s_mov_b32 s6, 1024")
    a("s_mov_b32 s7, 0x00020000")
    a("s_mov_b32 s18, 0x80000")
    a("s_mov_b32 s19, 0x00020000")
    a(f"s_mov_b32 s14, {WS_SIZE}")
    a("s_mov_b32 s15, 0x00020000")
    a("s_mov_b32 s10, 256")
    a("s_mov_b32 s11, 0x00020000")
    a("s_cmp_lt_u32 s58, 32")
    a("s_waitcnt lgkmcnt(0)")
    a("s_cselect_b32 s16, s40, s46")
    a("s_cselect_b32 s17, s41, s47")
    a("s_mov_b32 s12, s54")
    a("s_mov_b32 s13, s55")
    a("s_mov_b32 s8, s52")
    a("s_mov_b32 s9, s53")
    GQ = [224 + 4*u for u in range(8)]; GV = 112
    a("s_mov_b64 s[4:5], s[48:49]")
    a("s_lshl_b32 s31, s20, 8")
    a("s_add_u32 s31, s31, s2")
    a("s_sub_u32 s31, s31, 256")
    a("s_cmp_lt_u32 s31, 8")
    a("s_cselect_b32 s63, 1, 0")
    a("s_cbranch_scc0 L_noinit1")
    for q in range(4):
        a(f"buffer_store_dwordx4 v[24:27], v2, s[12:15], s30 offen offset:{1024*q} sc1")
    a("L_noinit1:")
    for i in range(4):
        a(f"buffer_load_dwordx4 v[{GV+4*i+4}:{GV+4*i+7}], v{GQ[0]+i}, s[4:7], 0 offen")
    code_pf()
    a("s_cbranch_scc0 L_noinit")
    a("v_mov_b32 v12, 1")
    a("s_lshl_b32 s31, s2, 2")
    a("s_mov_b64 exec, 1")
    a("s_waitcnt vmcnt(4)")
    a("buffer_store_dword v12, v139, s[8:11], s31 offen sc1")
    a("s_mov_b64 exec, -1")
    a("L_noinit:")
    a("v_lshrrev_b32 v9, 2, v1")
    a("v_and_b32 v10, 3, v1")
    a("v_lshlrev_b32 v9, 10, v9")
    a("v_lshl_add_u32 v138, v10, 4, v9")
    a("s_and_b32 s30, s58, 31")
    a("s_lshl_b32 s48, s30, 14")
    a("s_lshl_b32 s32, s59, 6")
    a("s_add_u32 s48, s48, s32")
    a("s_lshl_b32 s49, s20, 10")
    a(f"s_add_u32 s49, s49, {SCR}")
    XA = [3, 4, 5, 6]; WA = 13
    a("v_bfe_u32 v9, v1, 1, 3")
    a("v_xor_b32 v9, v9, v8")
    a("v_lshlrev_b32 v9, 4, v9")
    a("s_lshl_b32 s30, s28, 12")
    a("v_lshlrev_b32 v3, 7, v7")
    a("v_add_u32 v3, s30, v3")
    a("v_xor_b32 v4, 32, v9")
    a("v_xor_b32 v5, 64, v9")
    a("v_xor_b32 v6, 96, v9")
    a("v_add_u32 v4, v3, v4")
    a("v_add_u32 v5, v3, v5")
    a("v_add_u32 v6, v3, v6")
    a("v_add_u32 v3, v3, v9")
    a("v_bfe_u32 v9, v1, 2, 2")
    a(f"v_lshl_add_u32 v{WA}, v8, 3, v9")
    a(f"v_lshlrev_b32 v{WA}, 7, v{WA}")
    a("v_bfe_u32 v10, v1, 3, 1")
    a("v_xor_b32 v10, s29, v10")
    a(f"v_lshl_add_u32 v{WA}, v10, 6, v{WA}")
    a("v_bfe_u32 v10, v1, 4, 1")
    a("v_and_b32 v11, 3, v1")
    a(f"v_lshl_add_u32 v{WA}, v10, 5, v{WA}")
    a(f"v_lshl_add_u32 v{WA}, v11, 3, v{WA}")
    a(f"v_add_u32 v{WA}, 65536, v{WA}")
    a("v_lshl_add_u32 v12, v8, 2, v9")
    a("v_lshlrev_b32 v12, 6, v12")
    a("v_lshl_add_u32 v12, v10, 5, v12")
    a("v_lshl_add_u32 v12, v11, 3, v12")
    a("v_add_u32 v140, s49, v12")
    a("v_lshlrev_b32 v18, 17, v10")
    a("v_lshl_add_u32 v18, v8, 8, v18")
    a("v_and_b32 v9, 15, v1")
    a("v_lshl_add_u32 v18, v9, 4, v18")
    for r in range(32): a(f"v_mov_b32 v{GQ[0]+r}, 0")
    late_ids()
    def gm(u, A, f): return f"v_mfma_f32_16x16x32_bf16 v[{GQ[u]}:{GQ[u]+3}], v[{A}:{A+3}], v[{f}:{f+3}], v[{GQ[u]}:{GQ[u]+3}]"
    ACCB, ACCA = 32, 144
    for r in range(48):
        a(f"v_mov_b32 v{ACCB+r}, 0")
        a(f"v_mov_b32 v{ACCA+r}, 0")
    a("s_lshr_b32 s47, s58, 5")
    a("s_lshl_b32 s47, s47, 4")
    a("s_add_u32 s47, s47, s59")
    a("s_lshl_b32 s47, s47, 5")
    a("s_and_b32 s31, s58, 31")
    a("s_add_u32 s47, s47, s31")
    a("s_lshl_b32 s47, s47, 10")
    a(f"s_add_u32 s47, s47, {WS_WOF}")
    a("s_mov_b32 s34, 65536")
    a("s_mov_b32 s35, 0")
    a("s_cmp_eq_u32 s20, 0")
    a("s_cselect_b32 s46, 1, 0")
    a("s_lshl_b32 s31, s20, 2")
    a("s_add_u32 s31, s31, 2048")
    a("v_mov_b32 v7, s31")
    a("v_mov_b32 v31, 0")
    a("v_and_b32 v11, 7, v1")
    a("v_lshlrev_b32 v11, 2, v11")
    a("v_mov_b32 v14, 0")
    D.stamp("setup")
    a("s_barrier")
    D.stamp("b0", slot=0)
    F = [80, 96, 192, 208]
    def reads(s):
        f = F[s]
        L = [f"ds_read_b128 v[{f}:{f+3}], v{XA[s]}"]
        for t in range(3):
            L.append(f"ds_read_b64_tr_b16 v[{f+4+4*t}:{f+5+4*t}], v{WA} offset:{t*8192 + (16*s)*128}")
            L.append(f"ds_read_b64_tr_b16 v[{f+6+4*t}:{f+7+4*t}], v{WA} offset:{t*8192 + (16*s+4)*128}")
        return L
    def mf(s, ACC):
        f = F[s]
        return [mfma(ACC+16, f+8, f), mfma(ACC+32, f, f+12), mfma(ACC, f+4, f)]
    def emit(out):
        if opt.get("nolds"): out = [l for l in out if not l.startswith("ds_read_b128") and not l.startswith("ds_read_b64")]
        if opt.get("nomfma"): out = [l for l in out if not l.startswith("v_mfma")]
        if opt.get("nost"): out = [l for l in out if not l.startswith("buffer_store_dwordx4")]
        for l in out: a(l)
    def kstep(M, R, X=[[], [], []]):
        emit([M[0]] + R[0:4] + X[0] + [M[1]] + R[4:] + X[1] + [M[2]] + X[2] + M[3:])
    def addr_update():
        return ["s_add_u32 s34, s34, 24576",
                "s_cmp_ge_u32 s34, 163840",
                "s_cselect_b32 s28, 98304, 0",
                "s_sub_u32 s34, s34, s28",
                "s_sub_u32 s28, 24576, s28",
                "s_add_u32 s35, s35, 1",
                "s_cmp_eq_u32 s35, 8",
                "s_cselect_b32 s29, -65536, 0",
                "s_add_u32 s29, s29, 8192",
                f"v_add_u32 v{WA}, s28, v{WA}"] + [f"v_add_u32 v{r}, s29, v{r}" for r in XA]
    emit(reads(0) + reads(1))
    a("s_waitcnt vmcnt(1)")
    a("s_cmp_eq_u32 s63, 1")
    a("s_cbranch_scc1 L_cB")
    a("s_waitcnt vmcnt(0)")
    a("L_cB:")
    for sub in range(2):
        for s in range(4):
            if s == 2:
                a("s_waitcnt lgkmcnt(0)")
                a("s_barrier")
            elif s < 2:
                a("s_waitcnt lgkmcnt(7)")
            X = [[], addr_update() if s == 1 else [], []]
            if sub == 0 and s == 0:
                sh = [f"v_mov_b32 v{GV+i}, v{GV+i+4}" for i in range(16)]
                X = [sh[0:5], sh[5:11], sh[11:16]]
            kstep(mf(s, ACCB) + [gm(4*sub + s, GV, F[s])], reads((s + 2) % 4), X)
    a(f"s_cmp_eq_u32 s35, {opt.get('ichk', 6)}")
    a("s_cbranch_scc1 L_dbgld")
    a("L_dbgld_ret:")
    a("s_cmp_lt_u32 s35, 8")
    a("s_cbranch_scc1 L_cB")
    D.stamp("Bend")
    K0, V0_ = ACCB+16, ACCB+32
    E = ["s_lshl_b32 s30, s59, 17",
         "s_lshl_b32 s36, s58, 10",
         "s_add_u32 s30, s30, s36",
         "s_add_u32 s31, s30, 65536",
         "s_lshl_b32 s32, s30, 1",
         f"s_add_u32 s32, s32, {WS_KV}",
         "s_add_u32 s33, s32, 131072",
         f"s_mov_b32 s37, {f2u(QSCALE)}"]
    for l in E: a(l)
    E = [f"v_cvt_pk_bf16_f32 v{K0+r}, v{K0+2*r}, v{K0+2*r+1}" for r in range(4)]
    E += [f"buffer_store_dwordx4 v[{K0}:{K0+3}], v2, s[12:15], s32 offen sc1"]
    E += [f"v_cvt_pk_bf16_f32 v{K0+r}, v{K0+2*r}, v{K0+2*r+1}" for r in range(4, 8)]
    E += [f"buffer_store_dwordx4 v[{K0+4}:{K0+7}], v2, s[12:15], s33 offen sc1"]
    E += [f"v_cvt_pk_bf16_f32 v{V0_+r}, v{V0_+2*r}, v{V0_+2*r+1}" for r in range(4)]
    E += [f"buffer_store_dwordx4 v[{V0_}:{V0_+3}], v18, s[12:15], s32 offen offset:1024 sc1"]
    E += [f"v_cvt_pk_bf16_f32 v{V0_+r}, v{V0_+2*r}, v{V0_+2*r+1}" for r in range(4, 8)]
    E += [f"buffer_store_dwordx4 v[{V0_+4}:{V0_+7}], v18, s[12:15], s32 offen offset:1536 sc1"]
    for hf in range(2):
        E += [f"v_mul_f32 v{ACCB+r}, s37, v{ACCB+r}" for r in range(8*hf, 8*hf+8)]
        E += [f"v_cvt_pk_bf16_f32 v{ACCB+r}, v{ACCB+2*r}, v{ACCB+2*r+1}" for r in range(4*hf, 4*hf+4)]
        E += [f"buffer_store_dwordx4 v[{ACCB+4*hf}:{ACCB+4*hf+3}], v2, s[12:15], s{30+hf} offen sc1"]
    ng = len(E)
    per = opt.get("eper", 8)
    gaps = [E[per*i:per*i+per] for i in range((ng + per - 1)//per)]
    gaps += [[]]*(12 - len(gaps))
    assert len(gaps) == 12
    goread = ["ds_read_b32 v15, v7"]
    for s in range(4):
        X = gaps[3*s:3*s+3]
        if s == 1: X = [X[0], addr_update() + X[1], X[2]]
        if s == 2:
            a("s_waitcnt lgkmcnt(0)")
            a("s_barrier")
            a("s_mov_b32 exec_lo, s46")
            a("s_mov_b32 exec_hi, 0")
            a("ds_write_b128 v139, v[24:27] offset:2048")
            a("s_mov_b64 exec, -1")
        elif s < 2:
            a("s_waitcnt lgkmcnt(7)")
        kstep(mf(s, ACCA), reads((s + 2) % 4), X)
    a("s_lshl_b32 s60, s2, 7")
    a("s_lshl_b32 s28, s20, 2")
    a("s_add_u32 s60, s60, s28")
    a(f"s_add_u32 s60, s60, {WS_F}")
    qg_offsets(31, 32, False)
    a("s_mov_b32 s62, 0")
    a("v_mov_b32 v16, 1")
    a(f"s_waitcnt vmcnt({0 if opt.get('nost') else 6})")
    a("L_ichk:")
    a("v_cmp_ne_u32 vcc, 1, v14")
    a("s_add_u32 s62, s62, 1")
    a(f"s_cmp_gt_u32 s62, {SPIN_MAX}")
    a("s_cbranch_scc1 L_iok")
    a("s_cbranch_vccz L_iok")
    a("s_sleep 4")
    a("buffer_load_dword v14, v11, s[8:11], 0 offen sc1")
    a("s_waitcnt vmcnt(0)")
    a("s_branch L_ichk")
    a("L_iok:")
    a("s_mov_b32 s62, 0")
    a("s_mov_b32 s63, 14")
    D.stamp("Bepi")
    def fsite(k):
        a("s_cmp_eq_u32 s62, 0")
        a(f"s_cbranch_scc1 L_sf{k}")
        a(f"L_sr{k}:")
    g0 = opt.get("g0", 5)
    a("L_cA:")
    for s in range(2):
        a("s_waitcnt lgkmcnt(7)")
        kstep(mf(s, ACCA), reads(s + 2), [[], addr_update() if s == 1 else [], []])
        if s == 0 and g0 & 1: fsite(0)
    a("s_cmp_ge_u32 s35, 15")
    a("s_waitcnt lgkmcnt(0)")
    a("s_cbranch_scc1 L_cA15")
    a("s_barrier")
    a("L_nb15:")
    kstep(mf(2, ACCA), goread + reads(0))
    if g0 & 2: fsite(1)
    kstep(mf(3, ACCA), reads(1))
    fsite(2)
    a("s_cmp_lt_u32 s35, s63")
    a("s_cbranch_scc1 L_cA")
    a("s_waitcnt lgkmcnt(14)")
    a("v_readfirstlane_b32 s28, v15")
    a("s_cmp_eq_u32 s28, 0")
    a("s_cbranch_scc1 L_cA")
    a(f"buffer_load_dwordx4 v[{Q}:{Q+3}], v2, s[12:15], s31 offen sc1")
    a("s_mov_b32 s63, 99")
    D.stamp("go")
    a("s_branch L_cA")
    assert FMAX <= 6
    for k in range(3):
        if k < 2 and not (g0 >> k) & 1: continue
        a(f"L_sf{k}:")
        a("s_getreg_b32 s28, hwreg(HW_REG_IB_STS)")
        a("s_and_b32 s28, s28, 0xc0000f")
        a(f"s_cmp_ge_u32 s35, {8+FMAX}")
        a("s_cselect_b32 s28, 0, s28")
        a("s_cmp_eq_u32 s28, 0")
        a(f"s_cbranch_scc0 L_sr{k}")
        a("s_waitcnt vmcnt(0)")
        a("s_mov_b64 exec, 1")
        a("buffer_store_dword v16, v139, s[12:15], s60 offen sc1")
        a("s_mov_b64 exec, -1")
        a("s_mov_b32 s62, 1")
        D.stamp("flag1")
        a(f"s_branch L_sr{k}")
    a("L_dbgld:")
    a("buffer_load_dword v14, v11, s[8:11], 0 offen sc1")
    a("s_branch L_dbgld_ret")
    a("L_cA15:")
    a("s_cmp_eq_u32 s35, 15")
    a("s_cbranch_scc1 L_nb15")
    M = mf(2, ACCA)
    a(M[0])
    a(goread[0])
    a(M[1])
    a(M[2])
    a("s_cmp_eq_u32 s63, 99")
    a("s_cbranch_scc1 L_qdone")
    a("s_waitcnt lgkmcnt(0)")
    a("v_readfirstlane_b32 s28, v15")
    a("s_cmp_eq_u32 s28, 0")
    a("s_cbranch_scc1 L_qdone")
    a(f"buffer_load_dwordx4 v[{Q}:{Q+3}], v2, s[12:15], s31 offen sc1")
    a("s_mov_b32 s63, 99")
    D.stamp("go")
    a("L_qdone:")
    M = mf(3, ACCA)
    a(M[0])
    a(M[1])
    a(f"s_mov_b32 s29, {f2u(QSCALE)}")
    if not LATE:
        for r in range(4):
            a(f"v_mov_b32 v{28+r}, -1")
        a("buffer_store_dwordx4 v[28:31], v2, s[12:15], s57 offen sc1")
    a(M[2])
    D.stamp("Aend")
    QA, KA, VA = 112, 120, 128
    a("s_nop 3")
    for r in range(8):
        a(f"v_cvt_pk_bf16_f32 v{KA+r}, v{ACCA+16+2*r}, v{ACCA+16+2*r+1}")
    def halo_stores():
        a("s_lshl_b32 s30, s61, 12")
        a(f"s_add_u32 s30, s30, {WS_HALO}")
        a("v_lshrrev_b32 v28, 1, v2")
        a("s_mov_b32 exec_lo, 0xff000000")
        a("s_mov_b32 exec_hi, 0xff000000")
        a(f"buffer_store_dwordx4 v[{KA}:{KA+3}], v2, s[12:15], s30 offen sc1")
        a(f"buffer_store_dwordx4 v[{KA+4}:{KA+7}], v2, s[12:15], s30 offen offset:1024 sc1")
        a("s_mov_b64 exec, -1")
        a(f"buffer_store_dwordx2 v[{VA+6}:{VA+7}], v28, s[12:15], s30 offen offset:2048 sc1")
    for r in range(4, 8):
        a(f"v_cvt_pk_bf16_f32 v{VA+r}, v{ACCA+32+2*r}, v{ACCA+32+2*r+1}")
    if not LATE: halo_stores()
    for r in range(4):
        a(f"v_cvt_pk_bf16_f32 v{VA+r}, v{ACCA+32+2*r}, v{ACCA+32+2*r+1}")
    for r in range(16):
        a(f"v_mul_f32 v{ACCA+r}, s29, v{ACCA+r}")
    for r in range(8):
        a(f"v_cvt_pk_bf16_f32 v{QA+r}, v{ACCA+2*r}, v{ACCA+2*r+1}")
    loop_init()
    D.stamp("Aepi")
    a("s_cmp_eq_u32 s63, 99")
    a("s_cbranch_scc1 L_qok")
    a("s_mov_b32 s29, 0")
    a("L_qspin:")
    a("ds_read_b32 v15, v7")
    a("s_add_u32 s29, s29, 1")
    a("s_waitcnt lgkmcnt(0)")
    a("v_readfirstlane_b32 s28, v15")
    a(f"s_cmp_gt_u32 s29, {SPIN_MAX*8}")
    a("s_cselect_b32 s28, 1, s28")
    a("s_cmp_eq_u32 s28, 0")
    a("s_cbranch_scc0 L_qgo")
    a("s_sleep 1")
    a("s_branch L_qspin")
    a("L_qgo:")
    a(f"buffer_load_dwordx4 v[{Q}:{Q+3}], v2, s[12:15], s31 offen sc1")
    D.stamp("go")
    a("L_qok:")
    a(f"s_mov_b32 s62, {first(PC, True)}")
    a(f"s_mov_b32 s63, {first(PC, False)}")
    a("s_mov_b32 s37, 0")
    a("s_mov_b32 s36, 1")
    a("s_mov_b32 m0, s49")
    a("s_barrier")
    a(f"s_setprio {CP0}")
    a("buffer_load_dwordx4 v138, s[16:19], s48 offen lds")

    a("L_main:")
    D.stamp("main")
    a("ds_read_b128 v[24:27], v5")
    a(f"ds_read_b128 v[{KF}:{KF+3}], v5 offset:{TS}")
    a("s_waitcnt vmcnt(1) lgkmcnt(1)")
    a(mfma(S[0], 24, Q, NM))
    a("s_mov_b32 s39, 0")
    a("s_nop 7")
    a("s_nop 0")
    a("s_waitcnt lgkmcnt(0)")
    D.stamp("loop")
    a("s_cmp_eq_u32 s37, 1")
    a("s_cbranch_scc1 L_loop0")
    def ready2():
        return ["v_add_u32 v29, -1, v30",
                "v_cmp_gt_u32 vcc, 3, v29",
                "s_nop 0",
                "s_lshr_b32 s28, vcc_lo, 1",
                "s_and_b32 s28, s28, vcc_lo",
                "s_and_b32 s28, s28, 0x5555",
                "s_or_b32 s43, s43, s28"]
    def piece(i):
        n, ph = i // 4, i % 4
        if ph == 0:
            return (ready2() if n in (2, 4, 5) else []) + ["s_and_b32 s34, s43, s42", f"s_cbranch_scc0 L_pa{n}"] + pair_a() + [f"L_pa{n}:"]
        if ph == 2:
            return ["s_cmp_eq_u32 s34, 0", f"s_cbranch_scc1 L_pb{n}"] + pair_b() + [f"L_pb{n}:"]
        return []
    def body(dma):
        for u in range(U):
            cur, nxt = S[u & 1], S[(u+1) & 1]
            Pc, Pp = P[u & 1], P[(u+1) & 1]
            ex = [f"v_exp_f32 v{cur+i}, v{cur+i}" for i in range(16)]
            cv = [f"v_cvt_pk_bf16_f32 v{Pc+i}, v{cur+2*i}, v{cur+2*i+1}" for i in range(8)]
            pc = [piece(3*u + q) if dma else [] for q in range(3)]
            if u == U//2 and not dma:
                a("s_cmp_eq_u32 s39, s62")
                a("s_cbranch_scc1 L_mid")
                a("L_mid_ret:")
            if u == 6 and not dma:
                a("s_cmp_eq_u32 s39, s36")
                a("s_cbranch_scc1 L_G")
                a("L_G_ret:")
            a(mfma(nxt, KF, Q, NM))
            a(f"ds_read_b128 v[{KF}:{KF+3}], v5 offset:{(u+2)*TS}")
            for l in ex[0:4] + pc[0] + [cv[0]] + ex[4:6] + [cv[1]]: a(l)
            a("s_waitcnt lgkmcnt(2)")
            a(mfma(O, V0, Pp))
            a(f"ds_read_b128 v[{V0}:{V0+3}], v3 offset:{u*TS}")
            for l in ex[6:8] + [cv[2]] + pc[1] + ex[8:10] + [cv[3]] + ex[10:12] + [cv[4]]: a(l)
            a("s_waitcnt lgkmcnt(2)")
            a(mfma(O, V1, Pp+4))
            a(f"ds_read_b128 v[{V1}:{V1+3}], v4 offset:{u*TS}")
            for l in ex[12:14] + pc[2] + [cv[5]] + ex[14:16] + [cv[6]]: a(l)
            if u == U-1:
                a(f"v_add_u32 v5, {TS*U}, v5")
                a(f"v_add_u32 v3, {TS*U}, v3")
                a(f"v_add_u32 v4, {TS*U}, v4")
                a("s_add_u32 s39, s39, 1")
                a("s_cmp_eq_u32 s39, s63")
            a("s_waitcnt lgkmcnt(2)")
            a(cv[7])
    a(".p2align 6")
    a("L_loop:")
    body(False)
    a("s_cbranch_scc1 L_endh")
    a("L_endh_ret:")
    a(f"s_cmp_lt_u32 s39, {64//U}")
    a("s_cbranch_scc1 L_loop")
    a("s_waitcnt lgkmcnt(0)")
    a(mfma(O, V0, P[1]))
    a(mfma(O, V1, P[1]+4))
    if opt.get("tprio", 3): a(f"s_setprio {opt.get('tprio', 3)}")
    D.stamp("loopend")
    a(f"s_mov_b32 s40, {f2u(2.0**80)}")
    a("s_nop 7")
    a("s_nop 3")
    a(f"v_rcp_f32 v27, v{O+8}")
    a(f"v_fma_f32 v26, v{O}, 0, v{O+8}")
    for r in range(1, 8):
        a(f"v_fma_f32 v26, v{O+r}, 0, v26")
    a("v_add_f32 v26, v26, v27")
    a("v_cmp_nlt_f32 vcc, v26, s40")
    a("s_cmp_eq_u32 s38, 0")
    a("s_cbranch_scc0 L_fin")
    a("s_nop 1")
    a("s_cbranch_vccnz L_fallback")
    a("L_fin:")
    TQ = opt.get("tq", 0)
    def probe(mask):
        a(f"s_mov_b64 exec, {mask}")
        a("buffer_load_dword v12, v138, s[12:15], s30 offen sc1")
        a("s_mov_b64 exec, -1")
    if TQ:
        a(f"s_add_u32 s30, s44, {WS_OB}")
        a(f"s_add_u32 s31, s44, {WS_OB + 4096}")
        a("s_mov_b64 s[36:37], 0xff")
        probe("s[36:37]")
    a(f"v_mul_f32 v27, v27, v{GB}")
    for r in range(8):
        a(f"v_mul_f32 v{O+r}, v{O+r}, v27")
    for i in range(4):
        a(f"v_cvt_pk_bf16_f32 v{O+i}, v{O+2*i}, v{O+2*i+1}")
    for i in range(4):
        a(f"v_min_u32 v{O+i}, -2, v{O+i}")
    a(f"buffer_store_dwordx4 v[{O}:{O+3}], v2, s[12:15], s57 offen sc1")
    D.stamp("ost")
    if opt.get("ackt"):
        a("s_waitcnt vmcnt(0)")
        D.stamp("ack")

    AC = [144, 160]; WF = 176
    OF = [112, 116, 120, 124, 128, 132, 240, 244]
    X1O = opt.get("x1old", 1)
    if X1O:
        a("s_cmp_ge_u32 s20, 4")
        a("s_cbranch_scc0 L_t0")
        a("s_barrier")
        a("L_t0:")
    else:
        a(f"v_mov_b32 v25, {GFL}")
        a("v_mov_b32 v24, 1")
        a("ds_add_u32 v25, v24 offset:4")
    if opt.get("ackw", 0): a("s_waitcnt vmcnt(0)")
    if opt.get("cdelay", 0):
        a("s_cmp_ge_u32 s20, 4")
        a("s_cbranch_scc1 L_cd")
        a(f"s_sleep {opt['cdelay']}")
        a("L_cd:")
    if opt.get("tdelay", 0): a(f"s_sleep {opt['tdelay']}")
    if not (H4C and H4L) and not TQ:
        a(f"s_add_u32 s30, s44, {WS_OB}")
        a(f"s_add_u32 s31, s44, {WS_OB + 4096}")
    a("s_mov_b32 s33, 0xff")
    a("s_mov_b32 s34, 0")
    def oload(k):
        a(f"buffer_load_dwordx4 v[{OF[k]}:{OF[k]+3}], v2, s[12:15], s{30 + k//4} offen offset:{(k%4)*1024} sc1")
    def ocheck(k, skip, sm=33):
        a(f"v_max3_u32 v24, v{OF[k]}, v{OF[k]+1}, v{OF[k]+2}")
        a(f"v_max_u32 v24, v24, v{OF[k]+3}")
        a("v_cmp_eq_u32 vcc, -1, v24")
        a("s_nop 0")
        a(f"s_cbranch_vccnz {skip}")
        a(mfma(AC[0], WF+4*k, OF[k]))
        a(mfma(AC[1], WF+32+4*k, OF[k]))
        a(f"s_bitset0_b32 s{sm}, {k}")
        a(f"{skip}:")
    D.stamp("tp0")
    if TQ:
        a("s_mov_b32 s33, 0")
        a("s_waitcnt vmcnt(1)")
        a("L_q0:")
        a("v_cmp_ne_u32 vcc, -1, v12")
        a("s_add_u32 s34, s34, 1")
        a(f"s_cmp_gt_u32 s34, {SPIN_MAX*4}")
        a("s_cbranch_scc1 L_tgo")
        a("s_and_b32 s35, vcc_lo, s36")
        a("s_cbranch_scc0 L_q1")
        a("s_andn2_b32 s36, s36, s35")
        for k in range(8):
            a(f"s_bitcmp1_b32 s35, {k}")
            a(f"s_cbranch_scc0 L_ql{k}")
            oload(k)
            a(f"L_ql{k}:")
        a("L_q1:")
        a("s_cmp_eq_u32 s36, 0")
        a("s_cbranch_scc1 L_q2")
        if opt.get("qsl", 0): a(f"s_sleep {opt['qsl']}")
        probe("s[36:37]")
        a("L_q2:")
        a("s_cmp_eq_u32 s33, 0")
        a("s_cbranch_scc1 L_q3")
        a("s_or_b32 s36, s36, s33")
        for k in range(8):
            a(f"s_bitcmp1_b32 s33, {k}")
            a(f"s_cbranch_scc0 L_qk{k}")
            ocheck(k, f"L_qk{k}", 36)
        a("L_q3:")
        a("s_mov_b32 s33, s35")
        a("s_or_b32 s28, s33, s36")
        a("s_waitcnt vmcnt(0)")
        a("s_cbranch_scc1 L_q0")
        a(f"s_sub_u32 s34, s34, 2")
    elif H4C and H4L:
        a("s_waitcnt vmcnt(1)")
        for k in range(8): ocheck(k, f"L_ck{k}")
    else:
        if H4C or H4L:
            a("s_cmp_ge_u32 s20, 4")
            a(f"s_cbranch_scc{1 if H4L else 0} L_e4")
        for k in range(8): oload(k)
        for k in range(8):
            a(f"s_waitcnt vmcnt({7-k})")
            ocheck(k, f"L_ck{k}")
        if H4C or H4L: a("L_e4r:")
    D.stamp("tr1")
    if D.on: a("v_writelane_b32 v0, s33, 59")
    a("L_tchk:")
    a("s_cmp_eq_u32 s33, 0")
    a("s_cbranch_scc0 L_tre")
    a("L_tgo:")
    D.stamp("polled")
    if D.on: a("v_writelane_b32 v0, s34, 60")
    a("s_cmp_ge_u32 s20, 4")
    a("s_nop 0" if X1O else "s_cbranch_scc1 L_x1")
    a("s_nop 7")
    a("s_nop 1")
    a("L_x1r:")
    for p in range(1, 4):
        for part in range(2):
            r = AC[0] + 8*p + 4*part
            a(f"ds_write_b128 v{27+p}, v[{r}:{r+3}] offset:{1024*part}")
    a("s_waitcnt lgkmcnt(0)")
    CE = opt.get("cearly", 1) and X1O
    if X1O and not CE:
        a("s_cbranch_scc1 L_t1")
        a("s_barrier")
        a("L_t1:")
    a("s_barrier")
    D.stamp("x2")
    for i in range(6):
        a(f"ds_read_b128 v[{32+4*i}:{35+4*i}], v31 offset:{1024*i}")
    for p in range(3):
        a(f"s_waitcnt lgkmcnt({4-2*p})")
        for r in range(8):
            a(f"v_add_f32 v{AC[0]+r}, v{AC[0]+r}, v{32+8*p+r}")
    for i in range(4):
        a(f"v_cvt_pk_bf16_f32 v{32+i}, v{AC[0]+2*i}, v{AC[0]+2*i+1}")
    a("s_nop 1")
    a("v_permlane32_swap_b32 v32, v34")
    a("v_permlane32_swap_b32 v33, v35")
    a("s_nop 1")
    a("buffer_store_dwordx4 v[32:35], v6, s[16:19], s45 offen" + (" sc1" if opt.get("outsc1") else ""))
    D.stamp("fst")
    if CE:
        a("s_cmp_ge_u32 s20, 4")
        a("s_cbranch_scc1 L_t1")
        a("s_barrier")
        a("L_t1:")
    if D.on:
        a("s_waitcnt vmcnt(0)")
        D.stamp("end"); D.stamp("rtend", True, slot=63)
        D.flush()
    a("L_end:")
    a("s_endpgm")
    if bool(H4C) != bool(H4L):
        a("L_e4:")
        a("s_waitcnt vmcnt(1)")
        for k in range(8): ocheck(k, f"L_ek{k}")
        a("s_branch L_e4r")
    a("L_x1:")
    a("ds_read_b32 v32, v25 offset:4")
    a("s_add_u32 s34, s34, 1")
    a("s_nop 7")
    a("s_nop 1")
    a("s_waitcnt lgkmcnt(0)")
    a("v_readfirstlane_b32 s28, v32")
    a(f"s_cmp_gt_u32 s34, {SPIN_MAX*8}")
    a("s_cbranch_scc1 L_x1r")
    a("s_cmp_eq_u32 s28, 512")
    a("s_cbranch_scc1 L_x1r")
    a("s_sleep 1")
    a("s_branch L_x1")
    a("L_tre:")
    if opt.get("tp", 0):
        for k in range(1, 8):
            a(f"s_bitcmp1_b32 s33, {k-1}")
            a(f"s_cbranch_scc1 L_sp_{k-1}")
        for k in range(7, -1, -1):
            a(f"L_sp_{k}:")
            a("s_add_u32 s34, s34, 1")
            a(f"s_cmp_gt_u32 s34, {SPIN_MAX}")
            a("s_cbranch_scc1 L_tgo")
            if opt.get("tsleep", 1): a(f"s_sleep {opt.get('tsleep', 1)}")
            oload(k)
            a("s_waitcnt vmcnt(0)")
            a(f"v_max3_u32 v24, v{OF[k]}, v{OF[k]+1}, v{OF[k]+2}")
            a(f"v_max_u32 v24, v24, v{OF[k]+3}")
            a("v_cmp_eq_u32 vcc, -1, v24")
            a(f"s_bitset0_b32 s33, {k}")
            a(f"s_bitset1_b32 s33, {8+k}")
            a(f"s_cbranch_vccz L_tall")
            a(f"s_bitset1_b32 s33, {k}")
            a(f"s_bitset0_b32 s33, {8+k}")
            a(f"s_branch L_sp_{k}")
        a("L_tall:")
        for k in range(1, 8):
            a(f"s_bitcmp1_b32 s33, {k}")
            a(f"s_cbranch_scc0 L_rl{k}")
            oload(k)
            a(f"L_rl{k}:")
        for k in range(8):
            a(f"s_bitcmp1_b32 s33, {8+k}")
            a(f"s_cbranch_scc0 L_rm{k}")
            a(mfma(AC[0], WF+4*k, OF[k]))
            a(mfma(AC[1], WF+32+4*k, OF[k]))
            a(f"L_rm{k}:")
        a("s_and_b32 s33, s33, 0xff")
        a("s_cbranch_scc0 L_tgo")
    else:
        a("s_add_u32 s34, s34, 1")
        a(f"s_cmp_gt_u32 s34, {SPIN_MAX}")
        a("s_cbranch_scc1 L_tgo")
        if opt.get("tsleep", 1): a(f"s_sleep {opt.get('tsleep', 1)}")
        for k in range(8):
            a(f"s_bitcmp1_b32 s33, {k}")
            a(f"s_cbranch_scc0 L_rl{k}")
            oload(k)
            a(f"L_rl{k}:")
    a("s_waitcnt vmcnt(0)")
    for k in range(8):
        a(f"s_bitcmp1_b32 s33, {k}")
        a(f"s_cbranch_scc0 L_rk{k}")
        ocheck(k, f"L_rk{k}")
    a("s_branch L_tchk")

    a("L_loop0:")
    a("s_mov_b32 s37, 0")
    body(True)
    a("s_cmp_eq_u32 s42, 0")
    a("s_cbranch_scc0 L_slow")
    a("L_slow_ret:")
    if LATE:
        for r in range(4):
            a(f"v_mov_b32 v{24+r}, -1")
        a(f"s_sub_u32 s28, s57, {1 << 15}")
        a("buffer_store_dwordx4 v[24:27], v2, s[12:15], s57 offen sc1")
        a("buffer_store_dwordx4 v[24:27], v2, s[12:15], s28 offen sc1")
    D.stamp("it0")
    a("s_branch L_loop")
    a("L_slow:")
    a("s_and_b32 s34, s43, s42")
    a("s_cbranch_scc0 L_slp")
    for l in pair_a() + pair_b(): a(l)
    a("s_cmp_eq_u32 s42, 0")
    a("s_cbranch_scc1 L_slow_ret")
    a("s_branch L_slow")
    a("L_slp:")
    a("s_add_u32 s47, s47, 1")
    a(f"s_cmp_gt_u32 s47, {SPIN_MAX*4}")
    a("s_cselect_b32 s43, 0x5555, s43")
    a("s_sleep 2")
    a("s_mov_b32 exec_lo, 0xffff")
    a("s_mov_b32 exec_hi, 0")
    a("buffer_load_dword v30, v31, s[12:15], s45 offen sc1")
    a("s_mov_b64 exec, -1")
    a("s_waitcnt vmcnt(0)")
    for l in ready2(): a(l)
    a("s_branch L_slow")
    a("L_fallback:")
    a("s_mov_b32 s38, 1")
    a("v_mov_b32 v5, v2")
    a(f"v_subrev_u32 v3, {TS*64}, v3")
    a(f"v_subrev_u32 v4, {TS*64}, v4")
    a(f"v_mov_b32 v26, {f2u(-3.0e38)}")
    a("s_mov_b32 s39, 0")
    a("L_fb_loop:")
    a(f"ds_read_b128 v[{KF}:{KF+3}], v5")
    a(f"v_add_u32 v5, {TS}, v5")
    a("s_waitcnt lgkmcnt(0)")
    a(mfma(S[0], KF, Q, "0"))
    a("s_nop 7")
    a("s_nop 3")
    for i in range(8):
        a(f"v_max3_f32 v26, v26, v{S[0]+2*i}, v{S[0]+2*i+1}")
    a("s_add_u32 s39, s39, 1")
    a("s_cmp_lt_u32 s39, 64")
    a("s_cbranch_scc1 L_fb_loop")
    a("v_mov_b32 v5, v2")
    a("v_mov_b32 v27, v26")
    a("s_nop 1")
    a("v_permlane32_swap_b32 v26, v27")
    a("s_nop 1")
    a("v_max_f32 v26, v26, v27")
    for r in range(16):
        a(f"v_sub_f32 v{NM+r}, 0, v26")
    zero_state()
    a("s_branch L_main")

    def setflag(val):
        a("s_mov_b64 exec, 1")
        a(f"v_mov_b32 v28, {val}")
        a("buffer_store_dword v28, v139, s[12:15], s60 offen sc1")
        a("s_mov_b64 exec, -1")
    def wof_store():
        a("ds_read_b64_tr_b16 v[24:25], v140")
        a("ds_read_b64_tr_b16 v[26:27], v140 offset:512")
        a("s_waitcnt lgkmcnt(0)")
        a("buffer_store_dwordx4 v[24:27], v2, s[12:15], s47 offen sc1")
    BIG = {"H1": "L_H1", "H2": "L_H2", "H3": "L_H3", "gs": "L_G", "hl": "L_Ahl", "at": "L_Aat"}
    RET = {}
    def action(x):
        if x == "hs":
            g0, g1 = GQ[0], GQ[0] + 1
            for rho in range(4):
                for e in range(2):
                    a(f"v_add_f32_dpp v{g0+e}, v{GQ[2*rho]+e}, v{GQ[2*rho+1]+2+e} quad_perm:[0,1,2,3] row_mask:{1 << rho} bank_mask:0xf")
            a("v_and_b32 v30, 31, v1")
            a("v_lshlrev_b32 v30, 2, v30")
            a(f"v_permlane16_swap_b32 v{g0}, v{g1}")
            a("s_nop 1")
            a(f"v_add_f32 v{g0}, v{g0}, v{g1}")
            a(f"v_mov_b32 v{g1}, v{g0}")
            a("s_nop 1")
            a(f"v_permlane32_swap_b32 v{g0}, v{g1}")
            a("s_nop 1")
            a(f"v_add_f32 v{g0}, v{g0}, v{g1}")
            a(f"v_mul_f32 v{g0}, {f2u(-math.log2(math.e))}, v{g0}")
            a(f"v_exp_f32 v{g0}, v{g0}")
            a("s_nop 0")
            a(f"v_add_f32 v{g0}, 1.0, v{g0}")
            a(f"v_rcp_f32 v136, v{g0}")
            a("s_waitcnt vmcnt(0)")
            halo_stores()
            wof_store()
            a("s_lshl_b32 s30, s59, 6")
            a("s_add_u32 s30, s30, s58")
            a("s_lshl_b32 s30, s30, 7")
            a(f"s_add_u32 s30, s30, {WS_G}")
            a("v_sub_f32 v29, 1.0, v136")
            a("s_mov_b32 exec_hi, 0")
            a("buffer_store_dword v29, v30, s[12:15], s30 offen sc1")
            a("s_mov_b32 exec_hi, -1")
            D.stamp("hs")
        elif x == "f2":
            a("s_waitcnt vmcnt(0)")
            setflag(2)
            D.stamp("flag2")
        elif x == "f3":
            a("s_waitcnt vmcnt(0)")
            setflag(3)
            D.stamp("flag3")
        elif x == "pl":
            a("s_and_b32 s30, s23, 15")
            a("s_cmp_eq_u32 s30, 0")
            a(f"s_cselect_b32 s30, {127*128}, 0")
            a("s_cmp_eq_u32 s23, 0")
            a(f"s_cselect_b32 s30, {8*128}, s30")
            a("s_add_u32 s30, s30, s60")
            a(f"s_sub_u32 s46, s30, {8*128}")
            a("buffer_load_dword v24, v139, s[12:15], s46 offen sc1")
        elif x == "h4":
            a(f"s_add_u32 s30, s44, {WS_OB}")
            a(f"s_add_u32 s31, s44, {WS_OB + 4096}")
            for k in range(8): oload(k)
        elif x[0] == "p":
            a(f"s_setprio {x[1]}")
        else:
            raise ValueError(x)
    def dispatch(mid):
        ret = "L_mid_ret" if mid else "L_endh_ret"
        sreg = 62 if mid else 63
        nm = "M" if mid else "E"
        a("s_cmp_lt_u32 s20, 4")
        a(f"s_cbranch_scc0 L_{nm}l")
        for tn, Pg in (("c", PC), ("l", PL)):
            a(f"L_{nm}{tn}:")
            pos = sorted(p for p in Pg if (p % 8 == 4) == mid)
            for p_ in pos[1:]:
                a(f"s_cmp_eq_u32 s39, {p_//8}")
                a(f"s_cbranch_scc1 L_{nm}{tn}{p_}")
            for p_ in pos:
                a(f"L_{nm}{tn}{p_}:")
                a(f"s_mov_b32 s{sreg}, {first(Pg, mid, p_)}")
                big = [x for x in Pg[p_] if x in BIG]
                assert len(big) <= 1
                for x in Pg[p_]:
                    if x not in BIG: action(x)
                if big:
                    assert RET.setdefault(big[0], ret) == ret
                    a(f"s_branch {BIG[big[0]]}")
                else:
                    a(f"s_branch {ret}")
            if not pos: a(f"s_branch {ret}")
    a("L_mid:")
    dispatch(True)
    a("L_endh:")
    dispatch(False)
    a("L_H1:")
    a("s_and_b32 s28, s20, 3")
    a("s_lshr_b32 s29, s21, 2")
    a("s_lshl_b32 s30, s29, 3")
    a("s_and_b32 s31, s21, 3")
    a("s_lshl_b32 s31, s31, 1")
    a("s_add_u32 s30, s30, s31")
    a("s_lshr_b32 s31, s20, 2")
    a("s_add_u32 s30, s30, s31")
    a("s_lshr_b32 s31, s28, 1")
    a("s_lshl_b32 s32, s22, 1")
    a("s_add_u32 s42, s32, s31")
    a("s_xor_b32 s43, s42, 1")
    a("s_lshl_b32 s33, s28, 13")
    a("s_lshl_b32 s42, s42, 15")
    a("s_lshl_b32 s43, s43, 15")
    a("s_add_u32 s42, s42, s33")
    a("s_add_u32 s43, s43, s33")
    a(f"s_add_u32 s42, s42, {WS_WOF}")
    a(f"s_add_u32 s43, s43, {WS_WOF}")
    a("s_lshl_b32 s44, s30, 15")
    a("s_add_u32 s44, s44, s33")
    a("s_and_b32 s33, s22, 6")
    a("s_and_b32 s41, s22, 1")
    a("s_lshl_b32 s41, s41, 7")
    a("s_add_u32 s33, s33, s41")
    a("s_lshl_b32 s41, s28, 5")
    a("s_add_u32 s33, s33, s41")
    a("v_bfe_u32 v26, v1, 2, 2")
    a("v_lshlrev_b32 v26, 3, v26")
    a("v_bfe_u32 v27, v1, 4, 1")
    a("v_add3_u32 v26, v26, v27, s33")
    a("s_lshl_b32 s41, s28, 1")
    a("s_lshr_b32 s33, s30, 5")
    a("s_add_u32 s33, s33, s41")
    a("s_bfe_u32 s46, s30, 0x40001")
    a("s_lshl_b32 s46, s46, 3")
    a("s_add_u32 s33, s33, s46")
    a("v_bfe_u32 v27, v1, 2, 1")
    a("v_lshlrev_b32 v25, 7, v27")
    a("v_add_u32 v25, s33, v25")
    a("v_cmp_gt_u32 vcc, 32, v1")
    a("v_and_b32 v24, 3, v1")
    a("s_nop 0")
    a("v_cndmask_b32 v26, v25, v26, vcc")
    a("v_lshlrev_b32 v26, 7, v26")
    a("v_lshl_add_u32 v26, v24, 2, v26")
    a("s_lshr_b32 s33, s30, 3")
    a("s_lshl_b32 s33, s33, 5")
    a("s_add_u32 s33, s33, s41")
    a("v_lshl_add_u32 v25, v24, 3, v27")
    a("v_add_u32 v25, s33, v25")
    a("v_lshlrev_b32 v25, 7, v25")
    a("v_add_u32 v25, 16, v25")
    a("v_cmp_gt_u32 vcc, 48, v1")
    a(f"s_mov_b32 s41, {WS_F}")
    a("s_nop 0")
    a("v_cndmask_b32 v26, v25, v26, vcc")
    a("s_and_b32 s33, s26, 6")
    a("s_and_b32 s46, s26, 1")
    a("s_lshl_b32 s46, s46, 7")
    a("s_add_u32 s33, s33, s46")
    a("s_lshr_b32 s46, s56, 5")
    a("s_add_u32 s33, s33, s46")
    a("s_bfe_u32 s46, s56, 0x40001")
    a("s_lshl_b32 s46, s46, 3")
    a("s_add_u32 s33, s33, s46")
    a("s_lshl_b32 s33, s33, 5")
    a("s_and_b32 s46, s56, 1")
    a("s_add_u32 s33, s33, s46")
    a("s_and_b32 s46, s21, 2")
    a("s_add_u32 s33, s33, s46")
    a("s_lshl_b32 s33, s33, 2")
    a("v_cmp_gt_u32 vcc, 56, v1")
    a("v_mov_b32 v25, s33")
    a("s_nop 0")
    a("v_cndmask_b32 v26, v25, v26, vcc")
    a("buffer_load_dword v24, v26, s[12:15], s41 offen sc1")
    a("s_and_b32 s33, s28, 1")
    a("s_lshl_b32 s33, s33, 8")
    a("v_xor_b32 v7, s33, v2")
    a("s_cmp_lt_u32 s20, 4")
    a(f"s_cselect_b32 s29, {XCH}, 0")
    for p in range(1, 4):
        a(f"s_xor_b32 s33, s28, {p}")
        a("s_mul_i32 s33, s33, 6144")
        a("s_add_u32 s33, s33, s29")
        a(f"s_add_u32 s33, s33, {(p-1)*2048}")
        a(f"v_add_u32 v{27+p}, s33, v2")
    a("s_mul_i32 s33, s28, 6144")
    a("s_add_u32 s33, s33, s29")
    a("v_add_u32 v31, s33, v2")
    a("v_and_b32 v6, 31, v1")
    a("v_lshlrev_b32 v6, 11, v6")
    a("v_lshrrev_b32 v138, 5, v1")
    a("v_lshl_add_u32 v6, v138, 4, v6")
    a("s_lshr_b32 s33, s30, 1")
    a("s_lshl_b32 s33, s33, 6")
    a("s_and_b32 s45, s30, 1")
    a("s_add_u32 s33, s33, s45")
    a("s_lshl_b32 s33, s33, 10")
    a("s_lshl_b32 s45, s22, 7")
    a("s_add_u32 s45, s45, s33")
    a("s_lshl_b32 s33, s28, 5")
    a("s_add_u32 s45, s45, s33")
    if TQ:
        a("v_lshlrev_b32 v138, 10, v1")
        a(f"v_add_u32 v138, {opt.get('pofs', 1020)}, v138")
    a("s_mov_b32 s16, s50")
    a("s_mov_b32 s17, s51")
    a("s_mov_b32 s18, 0x200000")
    a("s_mov_b32 s19, 0x00020000")
    a(f"s_branch {RET['H1']}")

    def wload(br):
        for pct in range(2):
            for k in range(8):
                if k % 4 == 0:
                    a(f"s_add_u32 s33, s{42+pct}, {br*512*1024 + 1024*k}")
                r = WF + 32*pct + 4*k
                a(f"buffer_load_dwordx4 v[{r}:{r+3}], v7, s[12:15], s33 offen offset:{(k%4)*1024} sc1")
    a("L_H2:")
    a("s_mov_b32 s33, 0")
    a("L_H2_chk:")
    a("s_waitcnt vmcnt(0)")
    a("v_cmp_ne_u32 vcc, 3, v24")
    a("s_add_u32 s33, s33, 1")
    a(f"s_cmp_gt_u32 s33, {SPIN_MAX}")
    a("s_cbranch_scc1 L_H2_go")
    a("s_cbranch_vccz L_H2_go")
    a("s_sleep 2")
    a("buffer_load_dword v24, v26, s[12:15], s41 offen sc1")
    a("s_branch L_H2_chk")
    a("L_H2_go:")
    qg_offsets(30, 31)
    a("v_and_b32 v24, 31, v1")
    a("v_lshlrev_b32 v24, 2, v24")
    a(f"buffer_load_dword v{GB}, v24, s[12:15], s31 offen sc1")
    a(f"s_add_u32 s30, s44, {WS_OA}")
    a(f"s_add_u32 s31, s44, {WS_OA + 4096}")
    for k in range(8): oload(k)
    wload(0)
    a(f"s_branch {RET['H2']}")
    a("L_H3:")
    a("s_waitcnt vmcnt(0)")
    for k in range(8):
        a(mfma(AC[0], WF+4*k, OF[k], "0" if k == 0 else None))
        a(mfma(AC[1], WF+32+4*k, OF[k], "0" if k == 0 else None))
    wload(1)
    a(f"s_branch {RET['H3']}")

    a("L_G:")
    a("s_mov_b32 s36, 99")
    a("s_cmp_lt_u32 s20, 4")
    a("s_cbranch_scc1 L_G1")
    a("s_waitcnt vmcnt(0)")
    a("L_G1:")
    a("s_barrier")
    D.stamp("G")
    a("s_cmp_eq_u32 s20, 0")
    a("s_cbranch_scc0 L_G_ret")
    a("s_mov_b64 exec, 1")
    a("v_mov_b32 v25, 3")
    a("buffer_store_dword v25, v139, s[12:15], s60 offen offset:16 sc1")
    a("s_mov_b64 exec, -1")
    a("s_branch L_G_ret")
    KP, VP, ONES, PP = 140, 148, 152, 156
    MC, MP, SC, SP, OA, LL = 160, 176, 192, 208, 224, 240
    a("L_Ahl:")
    a("s_waitcnt vmcnt(0)")
    a(f"s_mov_b32 s44, {f2u(1000.0)}")
    a("s_cmp_eq_u32 s23, 0")
    a("s_cbranch_scc1 L_A_nohalo")
    a("s_mov_b32 s44, 0")
    a("s_mov_b32 s31, 0")
    a("L_A_poll:")
    a("s_add_u32 s31, s31, 1")
    a("s_waitcnt vmcnt(0)")
    a("v_readfirstlane_b32 s28, v24")
    a(f"s_cmp_gt_u32 s31, {SPIN_MAX}")
    a("s_cbranch_scc1 L_A_go")
    a("s_cmp_ge_u32 s28, 2")
    a("s_cbranch_scc1 L_A_go")
    a("s_sleep 2")
    a("buffer_load_dword v24, v139, s[12:15], s46 offen sc1")
    a("s_branch L_A_poll")
    a("L_A_go:")
    a("s_sub_u32 s30, s61, 32")
    a("s_lshl_b32 s30, s30, 12")
    a(f"s_add_u32 s30, s30, {WS_HALO}")
    a(f"buffer_load_dwordx4 v[{KP}:{KP+3}], v2, s[12:15], s30 offen sc1")
    a(f"buffer_load_dwordx4 v[{KP+4}:{KP+7}], v2, s[12:15], s30 offen offset:1024 sc1")
    a("v_lshrrev_b32 v28, 1, v2")
    a(f"v_mov_b32 v{VP}, 0")
    a(f"v_mov_b32 v{VP+1}, 0")
    a(f"buffer_load_dwordx2 v[{VP+2}:{VP+3}], v28, s[12:15], s30 offen offset:2048 sc1")
    a("s_branch L_A_masks")
    a("L_A_nohalo:")
    for r in range(8):
        a(f"v_mov_b32 v{KP+r}, v{KA+r}")
    for r in range(4):
        a(f"v_mov_b32 v{VP+r}, v{VA+4+r}")
    a("L_A_masks:")
    a("v_and_b32 v24, 31, v1")
    a("v_lshrrev_b32 v25, 5, v1")
    a("v_lshlrev_b32 v26, 2, v25")
    a("v_sub_u32 v26, v24, v26")
    a("v_cvt_f32_i32 v26, v26")
    a(f"v_add_f32 v26, {f2u(-3.5)}, v26")
    a("v_add_f32 v28, s44, v26")
    a(f"s_mov_b32 s45, {f2u(-1e30)}")
    for r in range(16):
        cst = 8*(r//4) + (r % 4)
        a(f"v_subrev_f32 v{MC+r}, {f2u(float(cst))}, v26")
    for b in range(4):
        a(f"v_subrev_f32 v{MP+12+b}, {f2u(float(b-8))}, v28")
    regs = [MC+r for r in range(16)] + [MP+12+b for b in range(4)]
    for r in regs:
        a(f"v_add_f32_e64 v{r}, |v{r}|, -4.0 clamp")
    for r in regs:
        a(f"v_mul_f32 v{r}, s45, v{r}")
    for r in range(12):
        a(f"v_mov_b32 v{MP+r}, 0")
    for r in range(4):
        a(f"v_mov_b32 v{ONES+r}, 0x3f803f80")
    a(f"v_mov_b32 v{PP}, 0")
    a(f"v_mov_b32 v{PP+1}, 0")
    D.stamp("hl")
    a(f"s_branch {RET['hl']}")
    a("L_Aat:")
    a("s_lshl_b32 s30, s58, 15")
    a("s_lshl_b32 s28, s59, 11")
    a("s_add_u32 s30, s30, s28")
    a(f"s_add_u32 s30, s30, {WS_OA}")
    a("s_waitcnt vmcnt(0)")
    for e in range(2):
        a(mfma(SC, KA+4*e, QA+4*e, MC))
        a(mfma(SP, KP+4*e, QA+4*e, MP))
        a("s_nop 7")
        a("s_nop 2")
        a(f"v_max3_f32 v26, v{SC}, v{SC+1}, v{SC+2}")
        a(f"v_max3_f32 v27, v{SC+3}, v{SC+4}, v{SC+5}")
        a(f"v_max3_f32 v26, v26, v{SC+6}, v{SC+7}")
        a(f"v_max3_f32 v27, v27, v{SC+8}, v{SC+9}")
        a(f"v_max3_f32 v26, v26, v{SC+10}, v{SC+11}")
        a(f"v_max3_f32 v27, v27, v{SC+12}, v{SC+13}")
        a(f"v_max3_f32 v26, v26, v{SC+14}, v{SC+15}")
        a(f"v_max3_f32 v27, v27, v{SP+12}, v{SP+13}")
        a(f"v_max3_f32 v26, v26, v{SP+14}, v{SP+15}")
        a("v_max_f32 v26, v26, v27")
        a("v_mov_b32 v27, v26")
        a("s_nop 1")
        a("v_permlane32_swap_b32 v26, v27")
        a("s_nop 1")
        a("v_max_f32 v26, v26, v27")
        sregs = [SC+r for r in range(16)] + [SP+12+b for b in range(4)]
        for r in sregs:
            a(f"v_sub_f32 v{r}, v{r}, v26")
        for r in sregs:
            a(f"v_exp_f32 v{r}, v{r}")
        a(f"v_cvt_pk_bf16_f32 v{PP+2}, v{SP+12}, v{SP+13}")
        for i in range(8):
            a(f"v_cvt_pk_bf16_f32 v{SC+i}, v{SC+2*i}, v{SC+2*i+1}")
        a(f"v_cvt_pk_bf16_f32 v{PP+3}, v{SP+14}, v{SP+15}")
        a("s_nop 0")
        a(mfma(LL, ONES, SC, "0"))
        a(mfma(OA, VA, SC, "0"))
        a(mfma(LL, ONES, SC+4))
        a(mfma(OA, VA+4, SC+4))
        a(mfma(LL, ONES, PP))
        a(mfma(OA, VP, PP))
        a("s_nop 7")
        a("s_nop 2")
        a(f"v_rcp_f32 v26, v{LL}")
        a("s_nop 0")
        a("v_mul_f32 v26, v26, v136")
        for r in range(8):
            a(f"v_mul_f32 v{OA+8*e+r}, v{OA+8*e+r}, v26")
        for i in range(4):
            a(f"v_cvt_pk_bf16_f32 v{28+i}, v{OA+8*e+2*i}, v{OA+8*e+2*i+1}")
        a(f"buffer_store_dwordx4 v[28:31], v2, s[12:15], s30 offen offset:{1024*e} sc1")
    D.stamp("Aattn")
    a(f"s_branch {RET['at']}")
    if D.on:
        json.dump(D.names, open("names3.json", "w"))
        opt["_names"] = D.names
    return 256

HEADER = open("gated_mix__sliding_local_dilated__softmax_full_mha__prompt.s.ref").read().split("; Override launch")[0]

def main(out, opt):
    a = Asm()
    n = gen(a, opt)
    a("L_code_end:")
    a("s_endpgm")
    s = HEADER
    s += "; generated by gen/gen13.py (hand-written generator)\n"
    if "_names" in opt: s += "; NAMES " + json.dumps(opt["_names"]) + "\n"
    s += "; @launch grid=(256,1,1) block=(512,1,1) lds=163840\n"
    s += '.amdgcn_target "amdgcn-amd-amdhsa--gfx950"\n.text\n'
    s += a.text()
    s += kd("KNAME", n)
    open(out, "w").write(s.replace("KNAME", KN))

if __name__ == "__main__":
    out = sys.argv[1] if len(sys.argv) > 1 else "gated_mix__sliding_local_dilated__softmax_full_mha__prompt.s"
    opt = {}
    for kv in sys.argv[2:]:
        k, v = kv.split("=")
        opt[k] = int(v)
    main(out, opt)
```

```python
import sys, math, struct, json
from asmlib import *

MB = 1 << 20
WS_QB   = 0
WS_KV   = 2*MB
WS_HALO = 6*MB
WS_OA   = 10*MB
WS_OB   = 12*MB
WS_WOF  = 14*MB
WS_G    = 15*MB
WS_F    = 15*MB + 256*1024
WS_SIZE = 16*MB
DIAG_BASE = 32*MB
QSCALE = 0.25 * math.log2(math.e)
TS = 2064
XCH = 64*TS
SCR = XCH + 24576
SPIN_MAX = 40000
KN = "gated_mix__sliding_local_dilated__softmax_full_mha__prompt_kernel"
def f2u(x): return struct.unpack("<I", struct.pack("<f", x))[0]

class Diag:
    def __init__(self, a, opt):
        self.a, self.on = a, opt.get("diag", 0)
        self.names = {}
        self.n = 16
    def stamp(self, name, real=False, slot=None, dyn=None):
        if not self.on: return
        a = self.a
        if dyn is None:
            if slot is None:
                if name not in self.names:
                    self.names[name] = self.n; self.n += 1
                slot = self.names[name]
            else:
                self.names[name] = slot
            assert slot < 64
        a(f"s_{'memrealtime' if real else 'memtime'} s[64:65]")
        if dyn is not None: a(dyn)
        a("s_waitcnt lgkmcnt(0)")
        a(f"v_writelane_b32 v0, s64, {'m0' if dyn is not None else slot}")
    def flush(self):
        if not self.on: return
        a = self.a
        a("s_mov_b32 s96, s54")
        a("s_mov_b32 s97, s55")
        a(f"s_mov_b32 s98, {64*MB}")
        a("s_mov_b32 s99, 0x00020000")
        a("s_lshl_b32 s100, s2, 3")
        a("s_add_u32 s100, s100, s20")
        a("s_lshl_b32 s100, s100, 8")
        a(f"s_add_u32 s100, s100, {DIAG_BASE}")
        a("s_mov_b64 exec, -1")
        a("v_lshlrev_b32 v24, 2, v1")
        a("buffer_store_dword v0, v24, s[96:99], s100 offen")
        a("s_waitcnt vmcnt(0)")

def mfma(d, A, B, C=None):
    c = f"v[{d}:{d+15}]" if C is None else (C if isinstance(C, str) else f"v[{C}:{C+15}]")
    return f"v_mfma_f32_32x32x16_bf16 v[{d}:{d+15}], v[{A}:{A+3}], v[{B}:{B+3}], {c}"

def gen(a, opt):
    U = 8
    FMAX = opt.get("fmax", 4)
    LATE = 1
    CP0, LP0 = opt.get("cp0", 3), opt.get("lp0", 3)
    S = [32, 48]; P = [64, 72]; O = 80; NM = 112
    GA, SN1, SN2 = 141, 142, 143
    def loop_init():
        a("v_and_b32 v24, 31, v1")
        a("v_lshrrev_b32 v25, 5, v1")
        a("v_lshlrev_b32 v6, 4, v24")
        a("v_lshl_add_u32 v6, v25, 8, v6")
        a("v_mov_b32 v5, 2048")
        a("v_and_b32 v26, 27, v24")
        a("v_mov_b32 v27, 0x40000")
        a("v_cmp_eq_u32 vcc, 16, v26")
        a("s_mov_b32 s38, 0")
        a("s_nop 0")
        a("v_cndmask_b32 v5, v27, v5, vcc")
        a("v_cmp_gt_u32 vcc, 16, v24")
        a("v_add_u32 v3, 1024, v6")
        a("v_add_u32 v4, 1536, v6")
        a("v_cndmask_b32 v3, v5, v3, vcc")
        a("v_cndmask_b32 v4, v5, v4, vcc")
        a("v_mov_b32 v5, v2")
    def zero_state():
        for r in range(8):
            a(f"v_mov_b32 v{P[1]+r}, 0")
            a(f"v_mov_b32 v{16+r}, 0")
        for r in range(16):
            a(f"v_mov_b32 v{O+r}, 0")
    def tail_params(t0, t1, t2):
        L = []
        a = L.append
        FB = WS_F >> 7
        a("s_and_b32 s75, s20, 3")
        a("s_lshr_b32 s76, s21, 2")
        a("s_lshl_b32 s76, s76, 3")
        a("s_and_b32 s79, s21, 3")
        a("s_lshl_b32 s79, s79, 1")
        a("s_add_u32 s76, s76, s79")
        a("s_lshr_b32 s79, s20, 2")
        a("s_add_u32 s76, s76, s79")
        a("s_lshr_b32 s79, s75, 1")
        a("s_lshl_b32 s70, s22, 1")
        a("s_add_u32 s70, s70, s79")
        a("s_xor_b32 s71, s70, 1")
        a("s_lshl_b32 s77, s75, 13")
        a("s_lshl_b32 s70, s70, 15")
        a("s_lshl_b32 s71, s71, 15")
        a("s_lshl_b32 s72, s76, 15")
        a("s_add_u32 s72, s72, s77")
        a(f"s_add_u32 s77, s77, {WS_WOF}")
        a("s_add_u32 s70, s70, s77")
        a("s_add_u32 s71, s71, s77")
        a("s_and_b32 s77, s22, 6")
        a("s_and_b32 s79, s22, 1")
        a("s_lshl_b32 s79, s79, 7")
        a("s_add_u32 s77, s77, s79")
        a("s_lshl_b32 s79, s75, 5")
        a("s_add_u32 s77, s77, s79")
        a(f"s_add_u32 s77, s77, {FB}")
        a("s_lshl_b32 s77, s77, 7")
        a(f"v_bfe_u32 v{t0}, v1, 2, 2")
        a(f"v_and_b32 v{t2}, 3, v1")
        a(f"v_bfe_u32 v{t1}, v1, 4, 1")
        a(f"v_lshl_add_u32 v{GA}, v{t0}, 10, s77")
        a(f"v_lshl_add_u32 v{GA}, v{t1}, 7, v{GA}")
        a("s_lshl_b32 s78, s75, 1")
        a(f"s_add_u32 s78, s78, {FB}")
        a("s_lshr_b32 s77, s76, 5")
        a("s_add_u32 s77, s77, s78")
        a("s_bfe_u32 s79, s76, 0x40001")
        a("s_lshl_b32 s79, s79, 3")
        a("s_add_u32 s77, s77, s79")
        a("s_lshl_b32 s77, s77, 7")
        a("s_mov_b32 exec_lo, 0")
        a(f"v_lshl_add_u32 v{GA}, v{t1}, 14, s77")
        a("s_mov_b32 exec_lo, -1")
        a(f"v_lshl_add_u32 v{GA}, v{t2}, 2, v{GA}")
        a("s_lshr_b32 s77, s76, 3")
        a("s_lshl_b32 s77, s77, 5")
        a("s_add_u32 s77, s77, s78")
        a("s_lshl_b32 s77, s77, 7")
        a("s_add_u32 s77, s77, 16")
        a(f"v_lshl_add_u32 v{t0}, v{t1}, 7, s77")
        a("s_and_b32 s77, s26, 6")
        a("s_and_b32 s79, s26, 1")
        a("s_lshl_b32 s79, s79, 7")
        a("s_add_u32 s77, s77, s79")
        a("s_lshr_b32 s79, s56, 5")
        a("s_add_u32 s77, s77, s79")
        a("s_bfe_u32 s79, s56, 0x40001")
        a("s_lshl_b32 s79, s79, 3")
        a("s_add_u32 s77, s77, s79")
        a("s_lshl_b32 s77, s77, 5")
        a("s_and_b32 s79, s56, 1")
        a("s_add_u32 s77, s77, s79")
        a("s_and_b32 s79, s21, 2")
        a("s_add_u32 s77, s77, s79")
        a("s_lshl_b32 s77, s77, 2")
        a(f"s_add_u32 s77, s77, {WS_F}")
        a("s_mov_b32 exec_lo, 0")
        a("s_mov_b32 exec_hi, 0x00f000f0")
        a(f"v_lshl_add_u32 v{GA}, v{t2}, 10, v{t0}")
        a("s_mov_b32 exec_hi, 0xff00ff00")
        a(f"v_mov_b32 v{GA}, s77")
        a("s_mov_b64 exec, -1")
        a("s_and_b32 s88, s75, 1")
        a("s_lshl_b32 s88, s88, 8")
        a("s_cmp_lt_u32 s20, 4")
        a(f"s_cselect_b32 s77, {XCH}, 0")
        for p in range(1, 4):
            a(f"s_xor_b32 s79, s75, {p}")
            a("s_mul_i32 s79, s79, 6144")
            a("s_add_u32 s79, s79, s77")
            a(f"s_add_u32 s{83+p}, s79, {(p-1)*2048}")
        a("s_mul_i32 s79, s75, 6144")
        a("s_add_u32 s87, s79, s77")
        a("s_lshr_b32 s77, s76, 1")
        a("s_lshl_b32 s77, s77, 6")
        a("s_and_b32 s79, s76, 1")
        a("s_add_u32 s77, s77, s79")
        a("s_lshl_b32 s77, s77, 10")
        a("s_lshl_b32 s73, s22, 7")
        a("s_add_u32 s73, s73, s77")
        a("s_lshl_b32 s79, s75, 5")
        a("s_add_u32 s73, s73, s79")
        a("s_lshr_b32 s74, s21, 1")
        a("s_lshl_b32 s74, s74, 6")
        a("s_add_u32 s74, s74, s56")
        a("s_lshl_b32 s74, s74, 7")
        a(f"s_add_u32 s74, s74, {WS_G}")
        a("s_mov_b32 s80, s50")
        a("s_mov_b32 s81, s51")
        a("s_mov_b32 s82, 0x200000")
        a("s_mov_b32 s83, 0x00020000")
        atoms = []; open_ = False
        for x in L:
            if open_: atoms[-1].append(x)
            else: atoms.append([x])
            if x.startswith("s_cmp") or x == "s_mov_b32 exec_lo, 0": open_ = True
            if x.startswith("s_cselect") or x.endswith(", -1"): open_ = False
        return atoms
    a(".p2align 8")
    a(".globl KNAME")
    a(".type KNAME,@function")
    a("KNAME:")
    a("s_cmp_ge_u32 s2, 256")
    a("s_cbranch_scc1 L_end")
    D = Diag(a, opt)
    if D.on:
        a("s_memrealtime s[66:67]")
        a("s_memtime s[68:69]")
        a("s_waitcnt lgkmcnt(0)")
    a("s_load_dwordx16 s[36:51], s[0:1], 0")
    a("s_load_dwordx4 s[52:55], s[0:1], 64")
    a("v_lshrrev_b32 v2, 6, v0")
    a("v_and_b32 v1, 63, v0")
    if D.on:
        a("v_mov_b32 v0, 0")
        a("v_writelane_b32 v0, s66, 62")
        a("v_writelane_b32 v0, s68, 61")
    a("v_readfirstlane_b32 s20, v2")
    a("v_lshlrev_b32 v2, 4, v1")
    a("s_and_b32 s26, s2, 7")
    a("s_lshr_b32 s27, s2, 3")
    MAP = opt.get("map", 0)
    if MAP == 0:
        a("s_and_b32 s23, s26, 1")
        a("s_lshl_b32 s23, s23, 4")
        a("s_and_b32 s28, s27, 15")
        a("s_add_u32 s23, s23, s28")
        a("s_and_b32 s24, s26, 6")
        a("s_lshr_b32 s28, s27, 4")
        a("s_add_u32 s24, s24, s28")
        a("s_lshl_b32 s28, s28, 2")
        a("s_add_u32 s25, s27, s28")
    elif MAP == 1:
        a("s_lshr_b32 s23, s26, 1")
        a("s_lshl_b32 s23, s23, 3")
        a("s_lshr_b32 s25, s27, 2")
        a("s_add_u32 s23, s23, s25")
        a("s_and_b32 s24, s26, 1")
        a("s_lshl_b32 s24, s24, 2")
        a("s_and_b32 s28, s27, 3")
        a("s_add_u32 s24, s24, s28")
        a("s_lshl1_add_u32 s25, s28, s25")
    elif MAP == 3:
        a("s_lshr_b32 s23, s26, 1")
        a("s_lshl_b32 s23, s23, 3")
        a("s_lshr_b32 s25, s27, 2")
        a("s_add_u32 s23, s23, s25")
        a("s_and_b32 s24, s26, 1")
        a("s_and_b32 s28, s27, 3")
        a("s_lshl1_add_u32 s24, s28, s24")
        a("s_lshl1_add_u32 s25, s28, s25")
    elif MAP == 4:
        a("s_and_b32 s23, s26, 1")
        a("s_lshl_b32 s23, s23, 4")
        a("s_and_b32 s28, s27, 15")
        a("s_add_u32 s23, s23, s28")
        a("s_lshr_b32 s24, s26, 1")
        a("s_lshr_b32 s28, s27, 4")
        a("s_lshl_b32 s28, s28, 2")
        a("s_add_u32 s24, s24, s28")
        a("s_add_u32 s25, s27, s28")
    else:
        a("s_lshr_b32 s28, s27, 3")
        a("s_lshl2_add_u32 s23, s26, s28")
        a("s_and_b32 s24, s27, 7")
        a("s_lshl1_add_u32 s25, s28, s24")
    a("s_and_b32 s25, s25, 7")
    a("s_lshl_b32 s25, s25, 7")
    def late_ids():
        return ["s_lshl_b32 s21, s26, 2",
                "s_and_b32 s75, s27, 3",
                "s_add_u32 s21, s21, s75",
                "s_lshr_b32 s22, s27, 2",
                "s_lshl_b32 s56, s22, 2",
                "s_and_b32 s75, s20, 3",
                "s_add_u32 s56, s56, s75",
                "s_lshl_b32 s56, s56, 1",
                "s_lshr_b32 s75, s20, 2",
                "s_add_u32 s56, s56, s75",
                "s_lshl_b32 s57, s56, 15",
                "s_lshl_b32 s75, s21, 10",
                "s_add_u32 s57, s57, s75",
                f"s_add_u32 s57, s57, {WS_OB}"]
    a("v_mov_b32 v139, 0")
    a("s_getpc_b64 s[98:99]")
    a("L_pc:")
    a("s_sub_u32 s98, s98, L_pc-KNAME")
    a("s_subb_u32 s99, s99, 0")
    a("s_and_b32 s100, s2, 0xf8")
    a("s_add_u32 s100, s100, s20")
    a("s_lshl_b32 s100, s100, 8")
    a("s_min_u32 s100, s100, L_code_end-KNAME-132")
    def code_pf():
        a("s_load_dword s101, s[98:99], s100")
        a("s_load_dword s101, s[98:99], s100 offset:128")
    a("s_cmp_ge_u32 s20, 4")
    a("s_cbranch_scc0 L_compute")
    Q, KF, V0, V1 = 8, 12, 16, 20
    GB = 137
    def qg_offsets(sq, sg, gate=True):
        if not gate:
            a(f"s_lshl_b32 s{sq}, s21, 16")
            a("s_lshl_b32 s28, s56, 10")
            a(f"s_add_u32 s{sq}, s{sq}, s28")
            return
        a(f"s_lshr_b32 s{sg}, s21, 1")
        a(f"s_lshl_b32 s{sg}, s{sg}, 6")
        a(f"s_add_u32 s{sg}, s{sg}, s56")
        a(f"s_lshl_b32 s{sg}, s{sg}, 7")
        a(f"s_add_u32 s{sg}, s{sg}, {WS_G}")

    a("s_setprio 2")
    a("s_sub_u32 s29, s20, 4")
    a("v_lshrrev_b32 v6, 3, v1")
    a("v_lshrrev_b32 v7, 4, v1")
    a("v_and_b32 v8, 7, v1")
    a("v_xor_b32 v9, v8, v7")
    a("v_xor_b32 v10, 4, v9")
    a("v_lshlrev_b32 v3, 11, v6")
    a("v_lshl_add_u32 v4, v10, 4, v3")
    a("v_lshl_add_u32 v3, v9, 4, v3")
    a("v_and_b32 v7, 1, v7")
    a("v_lshlrev_b32 v7, 2, v7")
    a("v_xor_b32 v7, v8, v7")
    a("v_mul_u32_u24 v5, 3072, v6")
    a("v_lshl_add_u32 v5, v7, 4, v5")
    a("s_lshr_b32 s28, s29, 1")
    a("s_lshl_b32 s30, s23, 6")
    a("s_add_u32 s30, s30, s28")
    a("s_lshl_b32 s30, s30, 10")
    a("s_lshl_b32 s31, s28, 12")
    a("s_and_b32 s28, s29, 1")
    a("s_lshl_b32 s33, s28, 15")
    a("s_add_u32 s30, s30, s33")
    a("s_lshl_b32 s33, s28, 11")
    a("s_add_u32 s31, s31, s33")
    a("s_mul_i32 s32, s29, 49152")
    a("s_lshl_b32 s28, s24, 7")
    a("s_add_u32 s32, s32, s28")
    a("s_lshl_b32 s33, s29, 11")
    a("s_add_u32 s33, s33, 65536")
    a("s_mov_b32 s58, 0")
    a("s_mov_b32 s6, 0x200000")
    a("s_mov_b32 s7, 0x00020000")
    a("s_mov_b32 s10, 0x180000")
    a("s_mov_b32 s11, 0x00020000")
    a(f"s_mov_b32 s14, {WS_SIZE}")
    a("s_mov_b32 s15, 0x00020000")
    a("s_waitcnt lgkmcnt(0)")
    a("s_mov_b32 s4, s36")
    a("s_mov_b32 s5, s37")
    a("s_mov_b32 s8, s44")
    a("s_mov_b32 s9, s45")
    a("s_mov_b32 s12, s54")
    a("s_mov_b32 s13, s55")
    D.stamp("karg")
    code_pf()
    def wloads():
        for t in range(3):
            for jj in range(2):
                a(f"s_add_u32 m0, s33, {8192*t + 1024*jj}")
                a(f"s_add_u32 s28, s34, {1024*t + 24576*jj}")
                a("buffer_load_dwordx4 v5, s[8:11], s28 offen lds")
    def advance():
        a("s_add_u32 s25, s25, 128")
        a("s_and_b32 s25, s25, 1023")
        a("s_add_u32 s33, s33, 24576")
        a("s_cmp_ge_u32 s33, 163840")
        a("s_cselect_b32 s28, 98304, 0")
        a("s_sub_u32 s33, s33, s28")
        a("s_add_u32 s58, s58, 1")
    def bissue():
        a("s_mul_i32 s34, s25, 1536")
        a("s_add_u32 s35, s30, s25")
        a("s_mov_b32 m0, s31")
        a("s_add_u32 s34, s34, s32")
        a("buffer_load_dwordx4 v3, s[4:7], s35 offen lds")
        a("s_add_u32 m0, s31, 1024")
        a("s_add_u32 s28, s35, 16384")
        a("buffer_load_dwordx4 v4, s[4:7], s28 offen lds")
        wloads()
        a("s_add_u32 s31, s31, 8192")
        advance()
    a("L_ldB:")
    bissue()
    a("s_cmp_lt_u32 s58, 3")
    a("s_cbranch_scc1 L_ldB")
    a("s_waitcnt vmcnt(16)")
    if opt.get("diag", 0) > 1: D.stamp("w", dyn="s_add_u32 m0, s58, 37")
    a("s_barrier")
    D.stamp("b", dyn="s_sub_u32 m0, s58, 3")
    a("s_cmp_lt_u32 s58, 8")
    a("s_cbranch_scc1 L_ldB")
    a("s_mov_b64 s[8:9], s[38:39]")
    a("v_mov_b32 v12, 0")
    a("v_mov_b32 v31, 0")
    a("L_ldA:")
    a("s_mul_i32 s34, s25, 1536")
    a("s_add_u32 s34, s34, s32")
    wloads()
    advance()
    a("s_cmp_eq_u32 s58, 12")
    a("s_cbranch_scc1 L_lsetup")
    a("L_lsetup_ret:")
    a("s_waitcnt vmcnt(12)")
    if opt.get("diag", 0) > 1: D.stamp("w", dyn="s_add_u32 m0, s58, 37")
    a("s_barrier")
    D.stamp("b", dyn="s_sub_u32 m0, s58, 3")
    a("s_cmp_lt_u32 s58, 16")
    a("s_cbranch_scc1 L_ldA")
    def snapshot(mask):
        a(f"s_mov_b32 exec_lo, {mask}")
        a("s_mov_b32 exec_hi, 0")
        a("v_mov_b32 v14, -1")
        a("buffer_load_dword v14, v12, s[12:15], s45 offen sc1")
        a("s_mov_b64 exec, -1")
    def ready():
        return ["v_add_u32 v29, -1, v14",
                "v_cmp_gt_u32 vcc, 3, v29",
                "s_nop 0",
                "s_lshr_b32 s28, vcc_lo, 1",
                "s_and_b32 s43, s28, vcc_lo",
                "s_and_b32 s43, s43, 0x5555"]
    def pair_a():
        return ["s_mov_b32 m0, s41",
                "s_ff1_i32_b32 s28, s34",
                "s_bitset0_b32 s42, s28",
                "s_lshl_b32 s28, s28, 13",
                "s_add_u32 s33, s28, s40",
                "buffer_load_dwordx4 v2, s[12:15], s33 offen sc1 lds",
                "buffer_load_dwordx4 v2, s[12:15], s33 offen offset:1024 sc1 lds"]
    def pair_b():
        return ["s_add_u32 m0, s41, 16",
                "s_add_u32 s41, s41, 16512",
                "buffer_load_dwordx4 v2, s[12:15], s33 offen offset:2048 sc1 lds",
                "buffer_load_dwordx4 v2, s[12:15], s33 offen offset:3072 sc1 lds"]
    if opt.get("pdel", 0): a(f"s_sleep {opt['pdel']}")
    snapshot("0xffff")
    loop_init()
    a("s_waitcnt vmcnt(1)")
    a("s_barrier")
    D.stamp("b14", slot=14)
    a("s_mov_b32 exec_lo, 0x3fffe")
    a("s_mov_b32 exec_hi, 0")
    a("ds_write_b128 v28, v[32:35] offset:2048")
    a("s_mov_b64 exec, -1")
    a("L_pw:")
    a("v_cmp_eq_u32 vcc, -1, v14")
    a("s_add_u32 s47, s47, 1")
    a(f"s_cmp_gt_u32 s47, {SPIN_MAX*4}")
    a("s_cbranch_scc1 L_pforce")
    a("s_cbranch_vccz L_pgot")
    a("s_sleep 1")
    a("s_branch L_pw")
    a("L_pforce:")
    a("s_mov_b32 s43, 0x5555")
    a("s_mov_b32 s35, 0")
    a("s_branch L_pq")
    a("L_pgot:")
    for l in ready(): a(l)
    a("s_and_b32 s34, s43, s42")
    a("s_bcnt1_i32_b32 s35, s34")
    a("s_add_u32 s35, s35, s44")
    a("s_cmp_lt_u32 s35, 2")
    a("s_cselect_b32 s35, 0x5555, s46")
    a("s_andn2_b32 s35, s35, s43")
    a("s_mul_i32 s35, s35, 3")
    a("s_cmp_eq_u32 s35, 0")
    a("s_cbranch_scc1 L_pq")
    if opt.get("psl", 0): a(f"s_sleep {opt['psl']}")
    snapshot("s35")
    a("L_pq:")
    a("s_and_b32 s28, s43, s61")
    a("s_cbranch_scc0 L_pp")
    a("s_mov_b64 exec, 1")
    a("ds_write_b32 v13, v32")
    a("s_mov_b64 exec, -1")
    a(f"buffer_load_dwordx4 v[{Q}:{Q+3}], v2, s[12:15], s30 offen sc1")
    a("s_mov_b32 s61, 0")
    D.stamp("lq")
    a("L_pp:")
    a("s_cmp_ge_u32 s44, 2")
    a("s_cbranch_scc1 L_pe")
    a("s_and_b32 s34, s43, s42")
    a("s_cbranch_scc0 L_pe")
    for l in pair_a() + pair_b(): a(l)
    a("s_add_u32 s44, s44, 1")
    a("s_branch L_pp")
    a("L_pe:")
    a("s_cmp_lg_u32 s35, 0")
    a("s_cbranch_scc1 L_pw")
    D.stamp("dog")
    a("s_andn2_b32 s35, 0x5555, s43")
    a("s_mul_i32 s35, s35, 3")
    a("s_cmp_eq_u32 s35, 0")
    a("s_waitcnt vmcnt(0) lgkmcnt(0)")
    a("s_cbranch_scc1 L_nosf")
    a("s_mov_b32 exec_lo, s35")
    a("s_mov_b32 exec_hi, 0")
    a("v_mov_b32 v30, -1")
    a("buffer_load_dword v30, v31, s[12:15], s45 offen sc1")
    a("s_mov_b64 exec, -1")
    a("L_nosf:")
    a("s_barrier")
    D.stamp("F2")
    a(f"s_setprio {LP0}")
    a("s_mov_b32 exec_lo, 0xfffc0000")
    a("ds_write_b128 v28, v[32:35] offset:2048")
    a("s_mov_b32 exec_lo, -1")
    a("s_branch L_main")
    a("L_lsetup:")
    for x in late_ids(): a(x)
    qg_offsets(30, 31, False)
    a("s_lshl_b32 s40, s21, 17")
    a("s_lshl_b32 s28, s29, 12")
    a("s_add_u32 s40, s40, s28")
    a(f"s_add_u32 s40, s40, {WS_KV}")
    a("s_mul_i32 s41, s29, 4128")
    a("s_mov_b32 s42, 0x5555")
    a("s_mov_b32 s44, 0")
    a("s_mov_b32 s47, 0")
    a("s_lshl_b32 s28, s22, 1")
    a("s_lshl_b32 s46, 1, s28")
    a("s_mov_b32 s61, s46")
    a("s_and_b32 s45, s26, 6")
    a("s_and_b32 s28, s26, 1")
    a("s_lshl_b32 s28, s28, 7")
    a("s_add_u32 s45, s45, s28")
    a("s_lshl_b32 s28, s29, 3")
    a("s_add_u32 s45, s45, s28")
    a("s_lshl_b32 s45, s45, 7")
    a("s_and_b32 s28, s21, 2")
    a("s_lshl_b32 s28, s28, 2")
    a("s_add_u32 s45, s45, s28")
    a(f"s_add_u32 s45, s45, {WS_F}")
    a("v_bfe_u32 v12, v1, 3, 1")
    a("v_lshlrev_b32 v12, 7, v12")
    a("v_bfe_u32 v13, v1, 1, 2")
    a("v_lshl_add_u32 v12, v13, 12, v12")
    a("v_and_b32 v13, 1, v1")
    a("v_lshl_add_u32 v12, v13, 2, v12")
    a("v_mov_b32 v31, v12")
    a("s_lshl_b32 s28, s29, 2")
    a("s_add_u32 s28, s28, 2048")
    a("v_mov_b32 v13, s28")
    a("v_mov_b32 v14, 0")
    a("v_mov_b32 v30, 0")
    a(f"v_mul_u32_u24 v28, {TS}, v1")
    for r in range(4):
        a(f"v_mov_b32 v{32+r}, 0x3f803f80")
    a("s_branch L_lsetup_ret")

    a("L_compute:")
    if opt.get("cprio", 3): a(f"s_setprio {opt.get('cprio', 3)}")
    a("s_and_b32 s28, s20, 1")
    a("s_lshr_b32 s29, s20, 1")
    a("s_lshl_b32 s58, s23, 1")
    a("s_add_u32 s58, s58, s28")
    a("s_lshl_b32 s59, s24, 1")
    a("s_add_u32 s59, s59, s29")
    a("v_and_b32 v7, 31, v1")
    a("v_lshrrev_b32 v8, 5, v1")
    a("s_lshl_b32 s30, s2, 12")
    a(f"s_add_u32 s30, s30, {WS_F}")
    a("v_mov_b64 v[24:25], 0")
    a("v_mov_b64 v[26:27], 0")
    a("v_bfe_u32 v9, v1, 1, 3")
    a("v_lshlrev_b32 v9, 5, v9")
    a("v_lshl_add_u32 v9, v8, 4, v9")
    a("v_add_u32 v9, s25, v9")
    a("v_lshrrev_b32 v10, 4, v1")
    a("v_xor_b32 v10, v10, v1")
    a("v_and_b32 v10, 1, v10")
    for i in range(4):
        a(f"v_add_u32 v{224+i}, {256*i}, v9")
        a(f"v_and_b32 v{224+i}, 1023, v{224+i}")
        a(f"v_lshl_add_u32 v{224+i}, v10, 16, v{224+i}")
    a("s_mov_b32 s6, 1024")
    a("s_mov_b32 s7, 0x00020000")
    a(f"s_mov_b32 s14, {WS_SIZE}")
    a("s_mov_b32 s15, s7")
    a("s_movk_i32 s10, 256")
    a("s_mov_b32 s11, s7")
    a("s_waitcnt lgkmcnt(0)")
    a("s_mov_b64 s[12:13], s[54:55]")
    a("s_mov_b64 s[8:9], s[52:53]")
    GQ = [224 + 4*u for u in range(8)]; GV = 112
    a("s_mov_b64 s[4:5], s[48:49]")
    a("s_lshl_b32 s31, s20, 8")
    a("s_add_u32 s31, s31, s2")
    a("s_sub_u32 s31, s31, 256")
    a("s_cmp_lt_u32 s31, 8")
    a("s_cselect_b32 s63, 1, 0")
    a("s_cbranch_scc0 L_noinit1")
    for q in range(4):
        a(f"buffer_store_dwordx4 v[24:27], v2, s[12:15], s30 offen offset:{1024*q} sc1")
    a("L_noinit1:")
    for i in range(4):
        g = GV + 4*i if i else GV + 16
        a(f"buffer_load_dwordx4 v[{g}:{g+3}], v{GQ[0]+i}, s[4:7], 0 offen")
    code_pf()
    a("s_cbranch_scc0 L_noinit")
    a("v_mov_b32 v12, 1")
    a("s_lshl_b32 s31, s2, 2")
    a("s_mov_b64 exec, 1")
    a("s_waitcnt vmcnt(4)")
    a("buffer_store_dword v12, v139, s[8:11], s31 offen sc1")
    a("s_mov_b64 exec, -1")
    a("L_noinit:")
    XA = [3, 4, 5, 6]; WA = 13
    a("v_bfe_u32 v9, v1, 1, 3")
    a("v_xor_b32 v9, v9, v8")
    a("v_lshlrev_b32 v9, 4, v9")
    a("s_lshl_b32 s30, s28, 12")
    a("v_lshlrev_b32 v3, 7, v7")
    a("v_add_u32 v3, s30, v3")
    a("v_xor_b32 v4, 32, v9")
    a("v_xor_b32 v5, 64, v9")
    a("v_xor_b32 v6, 96, v9")
    a("v_add_u32 v4, v3, v4")
    a("v_add_u32 v5, v3, v5")
    a("v_add_u32 v6, v3, v6")
    a("v_add_u32 v3, v3, v9")
    a("v_bfe_u32 v9, v1, 2, 2")
    a(f"v_lshl_add_u32 v{WA}, v8, 3, v9")
    a(f"v_lshlrev_b32 v{WA}, 7, v{WA}")
    a("v_bfe_u32 v10, v1, 3, 1")
    a("v_xor_b32 v10, s29, v10")
    a(f"v_lshl_add_u32 v{WA}, v10, 6, v{WA}")
    a("v_bfe_u32 v10, v1, 4, 1")
    a("v_and_b32 v11, 3, v1")
    a(f"v_lshl_add_u32 v{WA}, v10, 5, v{WA}")
    a(f"v_lshl_add_u32 v{WA}, v11, 3, v{WA}")
    a(f"v_add_u32 v{WA}, 65536, v{WA}")
    def gm(u, A, f, z=False):
        c = "0" if z else f"v[{GQ[u]}:{GQ[u]+3}]"
        return f"v_mfma_f32_16x16x32_bf16 v[{GQ[u]}:{GQ[u]+3}], v[{A}:{A+3}], v[{f}:{f+3}], {c}"
    ACCB, ACCA = 32, 144
    a("s_mov_b32 s34, 65536")
    a("s_mov_b32 s35, 0")
    DF = [["s_cmp_lt_u32 s58, 32", "s_cselect_b32 s16, s40, s46", "s_cselect_b32 s17, s41, s47"],
          "s_mov_b32 s18, 0x80000", "s_mov_b32 s19, s7",
          "v_and_b32 v19, 7, v1", "v_lshlrev_b32 v19, 2, v19",
          "v_lshrrev_b32 v12, 2, v1", "v_lshlrev_b32 v12, 10, v12", "v_lshl_add_u32 v138, v11, 4, v12",
          "s_and_b32 s76, s58, 31", "s_lshl_b32 s48, s76, 14", "s_lshl_b32 s75, s59, 6", "s_add_u32 s48, s48, s75",
          "s_lshl_b32 s49, s20, 10", f"s_add_u32 s49, s49, {SCR}",
          "v_lshl_add_u32 v12, v8, 2, v9", "v_lshlrev_b32 v12, 6, v12", "v_lshl_add_u32 v12, v10, 5, v12",
          "v_lshl_add_u32 v12, v11, 3, v12", "v_add_u32 v140, s49, v12",
          "v_lshlrev_b32 v18, 17, v10", "v_lshl_add_u32 v18, v8, 8, v18", "v_and_b32 v9, 15, v1", "v_lshl_add_u32 v18, v9, 4, v18",
          "s_lshr_b32 s47, s58, 5", "s_lshl_b32 s47, s47, 4", "s_add_u32 s47, s47, s59", "s_lshl_b32 s47, s47, 5",
          "s_add_u32 s47, s47, s76", "s_lshl_b32 s47, s47, 10", f"s_add_u32 s47, s47, {WS_WOF}",
          ["s_cmp_eq_u32 s20, 0", "s_cselect_b32 s46, 1, 0"],
          "s_lshl_b32 s75, s20, 2", "s_add_u32 s75, s75, 2048", "v_mov_b32 v7, s75",
          "v_mov_b32 v31, 0",
          "s_lshl_b32 s61, s58, 4", "s_add_u32 s61, s61, s59"] + late_ids()
    DF = [x if isinstance(x, list) else [x] for x in DF]
    D.stamp("setup")
    a("s_barrier")
    D.stamp("b0", slot=0)
    F = [80, 96, 192, 208]
    def reads(s):
        f = F[s]
        L = [f"ds_read_b128 v[{f}:{f+3}], v{XA[s]}"]
        for t in range(3):
            L.append(f"ds_read_b64_tr_b16 v[{f+4+4*t}:{f+5+4*t}], v{WA} offset:{t*8192 + (16*s)*128}")
            L.append(f"ds_read_b64_tr_b16 v[{f+6+4*t}:{f+7+4*t}], v{WA} offset:{t*8192 + (16*s+4)*128}")
        return L
    def mf(s, ACC, z=None):
        f = F[s]
        return [mfma(ACC+16, f+8, f, z), mfma(ACC+32, f, f+12, z), mfma(ACC, f+4, f, z)]
    def emit(out):
        if opt.get("nolds"): out = [l for l in out if not l.startswith("ds_read_b128") and not l.startswith("ds_read_b64")]
        if opt.get("nomfma"): out = [l for l in out if not l.startswith("v_mfma")]
        if opt.get("nost"): out = [l for l in out if not l.startswith("buffer_store_dwordx4")]
        for l in out: a(l)
    MB = opt.get("mb", 0)
    def kstep(M, R, X=[[], [], []], skip=0):
        if skip == 0: emit([M[0]] + R[0:4] + X[0] + [M[1]] + R[4:] + X[1] + [M[2]] + X[2] + M[3:])
        elif skip == 1: emit(R[0:4] + X[0] + [M[1]] + R[4:] + X[1] + [M[2]] + X[2] + M[3:])
        elif skip == 2: emit(R + X[0] + X[1] + [M[2]] + X[2] + M[3:])
        else: emit(R + X[0] + X[1] + X[2] + M[3:])
    def prebar(M):
        if MB:
            a("s_waitcnt lgkmcnt(7)")
            emit(M[:MB])
        a("s_waitcnt lgkmcnt(0)")
    def addr_update():
        return ["s_add_u32 s34, s34, 24576",
                "s_cmp_ge_u32 s34, 163840",
                "s_cselect_b32 s28, 98304, 0",
                "s_sub_u32 s34, s34, s28",
                "s_sub_u32 s28, 24576, s28",
                "s_add_u32 s35, s35, 1",
                "s_cmp_eq_u32 s35, 8",
                "s_cselect_b32 s29, -65536, 0",
                "s_add_u32 s29, s29, 8192",
                f"v_add_u32 v{WA}, s28, v{WA}"] + [f"v_add_u32 v{r}, s29, v{r}" for r in XA]
    emit(reads(0) + reads(1))
    a("s_waitcnt vmcnt(1)")
    a("s_cmp_eq_u32 s63, 1")
    a("s_cbranch_scc1 L_cB0")
    a("s_waitcnt vmcnt(0)")
    a("L_cB0:")
    dbgld = "buffer_load_dword v14, v19, s[8:11], 0 offen sc1"
    def biter(first):
        for sub in range(2):
            for s in range(4):
                M = mf(s, ACCB, "0" if first and sub == 0 and s == 0 else None) + [gm(4*sub + s, GV + 16 if first else GV, F[s], first)]
                if s == 2:
                    prebar(M)
                    a("s_barrier")
                elif s < 2:
                    a("s_waitcnt lgkmcnt(7)")
                X = [[], addr_update() if s == 1 else [], []]
                if first:
                    n = 8*3; i = 3*(4*sub + s)
                    for q in range(3):
                        X[q] = X[q] + sum(DF[(i+q)*len(DF)//n:(i+q+1)*len(DF)//n], [])
                elif sub == 0 and s == 0:
                    sh = [f"v_mov_b64 v[{GV+i}:{GV+i+1}], v[{GV+i+4}:{GV+i+5}]" for i in range(0, 12, 2)]
                    X = [sh[0:2], sh[2:4], sh[4:6]]
                elif sub == 1 and s == 3:
                    X = [[], [dbgld], []]
                kstep(M, reads((s + 2) % 4), X, MB if s == 2 else 0)
    biter(True)
    a("L_cB:")
    biter(False)
    a("s_cmp_lt_u32 s35, 8")
    a("s_cbranch_scc1 L_cB")
    D.stamp("Bend")
    K0, V0_ = ACCB+16, ACCB+32
    E = ["s_lshl_b32 s30, s59, 17",
         "s_lshl_b32 s36, s58, 10",
         "s_add_u32 s30, s30, s36",
         "s_add_u32 s31, s30, 65536",
         "s_lshl_b32 s32, s30, 1",
         f"s_add_u32 s32, s32, {WS_KV}",
         "s_add_u32 s33, s32, 131072",
         f"s_mov_b32 s37, {f2u(QSCALE)}"]
    for l in E: a(l)
    E = [f"v_cvt_pk_bf16_f32 v{K0+r}, v{K0+2*r}, v{K0+2*r+1}" for r in range(4)]
    E += [f"buffer_store_dwordx4 v[{K0}:{K0+3}], v2, s[12:15], s32 offen sc1"]
    E += [f"v_cvt_pk_bf16_f32 v{K0+r}, v{K0+2*r}, v{K0+2*r+1}" for r in range(4, 8)]
    E += [f"buffer_store_dwordx4 v[{K0+4}:{K0+7}], v2, s[12:15], s33 offen sc1"]
    E += [f"v_cvt_pk_bf16_f32 v{V0_+r}, v{V0_+2*r}, v{V0_+2*r+1}" for r in range(4)]
    E += [f"buffer_store_dwordx4 v[{V0_}:{V0_+3}], v18, s[12:15], s32 offen offset:1024 sc1"]
    E += [f"v_cvt_pk_bf16_f32 v{V0_+r}, v{V0_+2*r}, v{V0_+2*r+1}" for r in range(4, 8)]
    E += [f"buffer_store_dwordx4 v[{V0_+4}:{V0_+7}], v18, s[12:15], s32 offen offset:1536 sc1"]
    for hf in range(2):
        E += [f"v_mul_f32 v{ACCB+r}, s37, v{ACCB+r}" for r in range(8*hf, 8*hf+8)]
        E += [f"v_cvt_pk_bf16_f32 v{ACCB+r}, v{ACCB+2*r}, v{ACCB+2*r+1}" for r in range(4*hf, 4*hf+4)]
        E += [f"buffer_store_dwordx4 v[{ACCB+4*hf}:{ACCB+4*hf+3}], v2, s[12:15], s{30+hf} offen sc1"]
    ng = len(E)
    per = opt.get("eper", 8)
    gaps = [E[per*i:per*i+per] for i in range((ng + per - 1)//per)]
    gaps += [[]]*(12 - len(gaps))
    assert len(gaps) == 12
    goread = ["ds_read_b32 v15, v7"]
    for s in range(4):
        X = gaps[3*s:3*s+3]
        if s == 1: X = [X[0], addr_update() + X[1], X[2]]
        M = mf(s, ACCA, "0" if s == 0 else None)
        if s == 2:
            prebar(M)
            a("s_barrier")
            a("s_mov_b32 exec_lo, s46")
            a("s_mov_b32 exec_hi, 0")
            a("ds_write_b128 v139, v[24:27] offset:2048")
            a("s_mov_b64 exec, -1")
        elif s < 2:
            a("s_waitcnt lgkmcnt(7)")
        kstep(M, reads((s + 2) % 4), X, MB if s == 2 else 0)
    a("s_and_b32 s60, s24, 6")
    a("s_lshr_b32 s28, s23, 4")
    a("s_add_u32 s60, s60, s28")
    a("s_and_b32 s28, s23, 15")
    a("s_lshl3_add_u32 s60, s28, s60")
    a("s_and_b32 s28, s24, 1")
    a("s_lshl_b32 s28, s28, 7")
    a("s_add_u32 s60, s60, s28")
    a("s_lshl_b32 s60, s60, 7")
    a("s_lshl2_add_u32 s60, s20, s60")
    a(f"s_add_u32 s60, s60, {WS_F}")
    qg_offsets(31, 32, False)
    a("s_mov_b32 s62, 0")
    a("v_mov_b32 v16, 1")
    a(f"s_waitcnt vmcnt({0 if opt.get('nost') else 6})")
    a("L_ichk:")
    a("v_cmp_ne_u32 vcc, 1, v14")
    a("s_add_u32 s62, s62, 1")
    a(f"s_cmp_gt_u32 s62, {SPIN_MAX}")
    a("s_cbranch_scc1 L_iok")
    a("s_cbranch_vccz L_iok")
    a("s_sleep 4")
    a(dbgld)
    a("s_waitcnt vmcnt(0)")
    a("s_branch L_ichk")
    a("L_iok:")
    a("s_mov_b32 s62, 0")
    a("s_mov_b32 s63, 14")
    D.stamp("Bepi")
    def fsite(k):
        a("s_cmp_eq_u32 s62, 0")
        a(f"s_cbranch_scc1 L_sf{k}")
        a(f"L_sr{k}:")
    g0 = opt.get("g0", 5)
    a("L_cA:")
    for s in range(2):
        a("s_waitcnt lgkmcnt(7)")
        kstep(mf(s, ACCA), reads(s + 2), [[], addr_update() if s == 1 else [], []])
        if s == 0 and g0 & 1: fsite(0)
    a("s_cmp_ge_u32 s35, 15")
    prebar(mf(2, ACCA))
    a("s_cbranch_scc1 L_cA15")
    a("s_barrier")
    a("L_nb15:")
    kstep(mf(2, ACCA), goread + reads(0), skip=MB)
    if g0 & 2: fsite(1)
    kstep(mf(3, ACCA), reads(1))
    fsite(2)
    a("s_cmp_lt_u32 s35, s63")
    a("s_cbranch_scc1 L_cA")
    a("s_waitcnt lgkmcnt(14)")
    a("v_readfirstlane_b32 s28, v15")
    a("s_cmp_eq_u32 s28, 0")
    a("s_cbranch_scc1 L_cA")
    a(f"buffer_load_dwordx4 v[{Q}:{Q+3}], v2, s[12:15], s31 offen sc1")
    a("s_mov_b32 s63, 99")
    D.stamp("go")
    a("s_branch L_cA")
    assert FMAX <= 6
    for k in range(3):
        if k < 2 and not (g0 >> k) & 1: continue
        a(f"L_sf{k}:")
        a("s_getreg_b32 s28, hwreg(HW_REG_IB_STS)")
        a("s_and_b32 s28, s28, 0xc0000f")
        a(f"s_cmp_ge_u32 s35, {8+FMAX}")
        a("s_cselect_b32 s28, 0, s28")
        a("s_cmp_eq_u32 s28, 0")
        a(f"s_cbranch_scc0 L_sr{k}")
        a("s_waitcnt vmcnt(0)")
        a("s_mov_b64 exec, 1")
        a("buffer_store_dword v16, v139, s[12:15], s60 offen sc1")
        a("s_mov_b64 exec, -1")
        a("s_mov_b32 s62, 1")
        D.stamp("flag1")
        a(f"s_branch L_sr{k}")
    a("L_cA15:")
    a("s_cmp_eq_u32 s35, 15")
    a("s_cbranch_scc1 L_nb15")
    M = mf(2, ACCA)
    if MB < 1: a(M[0])
    a(goread[0])
    if MB < 2: a(M[1])
    if MB < 3: a(M[2])
    a("s_cmp_eq_u32 s63, 99")
    a("s_cbranch_scc1 L_qdone")
    a("s_waitcnt lgkmcnt(0)")
    a("v_readfirstlane_b32 s28, v15")
    a("s_cmp_eq_u32 s28, 0")
    a("s_cbranch_scc1 L_qdone")
    a(f"buffer_load_dwordx4 v[{Q}:{Q+3}], v2, s[12:15], s31 offen sc1")
    a("s_mov_b32 s63, 99")
    D.stamp("go")
    a("L_qdone:")
    M = mf(3, ACCA)
    a(M[0])
    a(M[1])
    a(f"s_mov_b32 s29, {f2u(QSCALE)}")
    if not LATE:
        for r in range(4):
            a(f"v_mov_b32 v{28+r}, -1")
        a("buffer_store_dwordx4 v[28:31], v2, s[12:15], s57 offen sc1")
    a(M[2])
    D.stamp("Aend")
    QA, KA, VA = 112, 120, 128
    a("s_nop 3")
    for r in range(8):
        a(f"v_cvt_pk_bf16_f32 v{KA+r}, v{ACCA+16+2*r}, v{ACCA+16+2*r+1}")
    def halo_stores():
        a("s_lshl_b32 s30, s61, 12")
        a(f"s_add_u32 s30, s30, {WS_HALO}")
        a("v_lshrrev_b32 v28, 1, v2")
        a("s_mov_b32 exec_lo, 0xff000000")
        a("s_mov_b32 exec_hi, 0xff000000")
        a(f"buffer_store_dwordx4 v[{KA}:{KA+3}], v2, s[12:15], s30 offen sc1")
        a(f"buffer_store_dwordx4 v[{KA+4}:{KA+7}], v2, s[12:15], s30 offen offset:1024 sc1")
        a("s_mov_b64 exec, -1")
        a(f"buffer_store_dwordx2 v[{VA+6}:{VA+7}], v28, s[12:15], s30 offen offset:2048 sc1")
    for r in range(4, 8):
        a(f"v_cvt_pk_bf16_f32 v{VA+r}, v{ACCA+32+2*r}, v{ACCA+32+2*r+1}")
    if not LATE: halo_stores()
    for r in range(4):
        a(f"v_cvt_pk_bf16_f32 v{VA+r}, v{ACCA+32+2*r}, v{ACCA+32+2*r+1}")
    for r in range(16):
        a(f"v_mul_f32 v{ACCA+r}, s29, v{ACCA+r}")
    for r in range(8):
        a(f"v_cvt_pk_bf16_f32 v{QA+r}, v{ACCA+2*r}, v{ACCA+2*r+1}")
    loop_init()
    D.stamp("Aepi")
    a("s_cmp_eq_u32 s63, 99")
    a("s_cbranch_scc1 L_qok")
    a("s_mov_b32 s29, 0")
    a("L_qspin:")
    a("ds_read_b32 v15, v7")
    a("s_add_u32 s29, s29, 1")
    a("s_waitcnt lgkmcnt(0)")
    a("v_readfirstlane_b32 s28, v15")
    a(f"s_cmp_gt_u32 s29, {SPIN_MAX*8}")
    a("s_cselect_b32 s28, 1, s28")
    a("s_cmp_eq_u32 s28, 0")
    a("s_cbranch_scc0 L_qgo")
    a("s_sleep 1")
    a("s_branch L_qspin")
    a("L_qgo:")
    a(f"buffer_load_dwordx4 v[{Q}:{Q+3}], v2, s[12:15], s31 offen sc1")
    D.stamp("go")
    a("L_qok:")
    a("s_mov_b32 m0, s49")
    a("s_barrier")
    a(f"s_setprio {CP0}")
    a("buffer_load_dwordx4 v138, s[16:19], s48 offen lds")

    AC = [144, 160]; WF = 176
    OF = [112, 116, 120, 124, 128, 132, 240, 244]
    KP, VP, ONES, PP = 96, 104, 152, 156
    MC, MP, SC, SP, OA, LL = 160, 176, 192, 208, 224, 240
    a("L_main:")
    D.stamp("main")
    a("ds_read_b128 v[24:27], v5")
    a(f"ds_read_b128 v[{KF}:{KF+3}], v5 offset:{TS}")
    a("s_waitcnt vmcnt(1) lgkmcnt(1)")
    a(mfma(S[0], 24, Q, "0"))
    a("s_cmp_lt_u32 s20, 4")
    a("s_nop 7")
    a("s_nop 0")
    a("s_waitcnt lgkmcnt(0)")
    D.stamp("loop")
    if D.on: a("s_cmp_lt_u32 s20, 4")
    a("s_cbranch_scc0 L_lseg")

    ADV = 24
    class Seg:
        def __init__(self): self.pre, self.slot = {}, {}
        def at(self, t, x): self.pre.setdefault(t, []).append(x)
        def sl(self, t, q, x): self.slot.setdefault((t, q), []).append(x)
        def spread(self, atoms, t0, t1):
            n = 3*(t1 - t0)
            for i, x in enumerate(atoms):
                k = (i*n)//len(atoms)
                self.sl(t0 + k//3, k % 3, x)
    def tile(t, slot, C="0", rolled=False):
        u = t % ADV
        cur, nxt = S[t & 1], S[(t+1) & 1]
        Pc, Pp = P[t & 1], P[(t+1) & 1]
        ex = [f"v_exp_f32 v{cur+i}, v{cur+i}" for i in range(16)]
        cv = [f"v_cvt_pk_bf16_f32 v{Pc+i}, v{cur+2*i}, v{cur+2*i+1}" for i in range(8)]
        pc = [sum([x if isinstance(x, list) else [x] for x in slot.get((t, q), [])], []) for q in range(3)]
        kr = rolled or t + 2 < 64
        L = []
        if rolled or t < 63: L.append(mfma(nxt, KF, Q, C))
        if kr: L.append(f"ds_read_b128 v[{KF}:{KF+3}], v5 offset:{(u+2)*TS}")
        L += ex[0:4] + pc[0] + [cv[0]] + ex[4:6] + [cv[1]]
        if rolled or t > 0:
            L.append(f"s_waitcnt lgkmcnt({2 if kr else 1})")
            L.append(mfma(O, V0, Pp, "0" if (t == 1 and not rolled) else None))
        L.append(f"ds_read_b128 v[{V0}:{V0+3}], v3 offset:{u*TS}")
        L += ex[6:8] + [cv[2]] + pc[1] + ex[8:10] + [cv[3]] + ex[10:12] + [cv[4]]
        if rolled or t > 0:
            L.append(f"s_waitcnt lgkmcnt({2 if kr else 1})")
            L.append(mfma(O, V1, Pp+4))
        L.append(f"ds_read_b128 v[{V1}:{V1+3}], v4 offset:{u*TS}")
        L += ex[12:14] + pc[2] + [cv[5]] + ex[14:16] + [cv[6]]
        if not rolled and u == ADV-1:
            L += [f"v_add_u32 v{r}, {TS*ADV}, v{r}" for r in (5, 3, 4)]
        if kr: L.append("s_waitcnt lgkmcnt(2)")
        L.append(cv[7])
        return L
    def run(seg, t0, t1, post=[]):
        L = []
        for t in range(t0, t1):
            if D.on and opt.get("its") and t % 8 == 0 and t: L.append("s_memtime s[66:67]")
            if D.on and opt.get("its") and t % 8 == 4 and t > 8: L.append(f"v_writelane_b32 v0, s66, {47 + t//8}")
            for x in seg.pre.get(t, []): L += x if isinstance(x, list) else [x]
            L += tile(t, seg.slot)
        L += post
        lds = []
        for x in L:
            if callable(x): x()
            elif isinstance(x, tuple) and x[0] == "ld":
                lds.append(x[1]); a(x[2])
            elif isinstance(x, tuple):
                a(f"s_waitcnt vmcnt({len(lds) - 1 - lds.index(x[1])})")
            else: a(x)
    def setflag(val):
        a("s_mov_b64 exec, 1")
        a(f"v_mov_b32 v28, {val}")
        a("buffer_store_dword v28, v139, s[12:15], s60 offen sc1")
        a("s_mov_b64 exec, -1")
    def prios(seg, lo, hi, keys):
        for k, (key, dflt) in enumerate(zip(keys, (32, 48, 56))):
            pos = opt.get(key, dflt)
            if lo <= pos < hi: seg.at(pos, f"s_setprio {2-k}")
    def ratchet(seg, g, back):
        if not opt.get("rat", 1): return
        for k, d in enumerate((opt.get("r1", 7), opt.get("r2", 3), opt.get("r3", 1))):
            if d: seg.at(g - d, f"s_setprio {2-k}")
        seg.at(g, f"s_setprio {back}")
    snap1 = f"buffer_load_dword v{SN1}, v{GA}, s[12:15], 0 offen sc1"
    snap2 = f"buffer_load_dword v{SN2}, v{GA}, s[12:15], 0 offen sc1"
    CM = opt.get("cm", 32)

    def wof_store():
        a("ds_read_b64_tr_b16 v[24:25], v140")
        a("ds_read_b64_tr_b16 v[26:27], v140 offset:512")
        a("s_waitcnt lgkmcnt(0)")
        a("buffer_store_dwordx4 v[24:27], v2, s[12:15], s47 offen sc1")
    def h_hs():
        g0, g1 = GQ[0], GQ[0] + 1
        for rho in range(4):
            for e in range(2):
                a(f"v_add_f32_dpp v{g0+e}, v{GQ[2*rho]+e}, v{GQ[2*rho+1]+2+e} quad_perm:[0,1,2,3] row_mask:{1 << rho} bank_mask:0xf")
        a("v_and_b32 v30, 31, v1")
        a("v_lshlrev_b32 v30, 2, v30")
        a(f"v_permlane16_swap_b32 v{g0}, v{g1}")
        a("s_nop 1")
        a(f"v_add_f32 v{g0}, v{g0}, v{g1}")
        a(f"v_mov_b32 v{g1}, v{g0}")
        a("s_nop 1")
        a(f"v_permlane32_swap_b32 v{g0}, v{g1}")
        a("s_nop 1")
        a(f"v_add_f32 v{g0}, v{g0}, v{g1}")
        a(f"v_mul_f32 v{g0}, {f2u(-math.log2(math.e))}, v{g0}")
        a(f"v_exp_f32 v{g0}, v{g0}")
        a("s_nop 0")
        a(f"v_add_f32 v{g0}, 1.0, v{g0}")
        a(f"v_rcp_f32 v136, v{g0}")
        a("s_waitcnt vmcnt(0)")
        halo_stores()
        wof_store()
        a("s_lshl_b32 s30, s59, 6")
        a("s_add_u32 s30, s30, s58")
        a("s_lshl_b32 s30, s30, 7")
        a(f"s_add_u32 s30, s30, {WS_G}")
        a("v_sub_f32 v29, 1.0, v136")
        a("s_mov_b32 exec_hi, 0")
        a("buffer_store_dword v29, v30, s[12:15], s30 offen sc1")
        a("s_mov_b32 exec_hi, -1")
        D.stamp("hs")
    def h_f(val):
        def f():
            a("s_waitcnt vmcnt(0)")
            setflag(val)
            D.stamp(f"flag{val}")
        return f
    def h_G1c():
        a("s_barrier")
        D.stamp("G")
        a("s_cmp_eq_u32 s20, 0")
        a("s_cbranch_scc0 L_G1c")
        a("s_lshl_b32 s28, s2, 7")
        a(f"s_add_u32 s28, s28, {WS_F}")
        a("s_mov_b64 exec, 1")
        a("v_mov_b32 v25, 3")
        a("buffer_store_dword v25, v139, s[12:15], s28 offen offset:16 sc1")
        a("s_mov_b64 exec, -1")
        a("L_G1c:")
    def h_G2c():
        a("s_barrier")
        D.stamp("G2")
    h_pl = ["s_and_b32 s30, s23, 15",
            "s_cmp_eq_u32 s30, 0",
            f"s_cselect_b32 s30, {127*128}, 0",
            "s_cmp_eq_u32 s23, 0",
            f"s_cselect_b32 s30, {8*128}, s30",
            "s_add_u32 s30, s30, s60",
            f"s_sub_u32 s46, s30, {8*128}",
            "buffer_load_dword v24, v139, s[12:15], s46 offen sc1"]
    def h_hl():
        a("s_cmp_eq_u32 s23, 0")
        a("s_cbranch_scc1 L_A_nohalo")
        a("s_waitcnt vmcnt(0)")
        a("v_readfirstlane_b32 s28, v24")
        a("s_cmp_ge_u32 s28, 2")
        a("s_cbranch_scc0 L_A_poll")
        a("L_A_go:")
        a("s_sub_u32 s30, s61, 32")
        a("s_lshl_b32 s30, s30, 12")
        a(f"s_add_u32 s30, s30, {WS_HALO}")
        a(f"buffer_load_dwordx4 v[{KP}:{KP+3}], v2, s[12:15], s30 offen sc1")
        a(f"buffer_load_dwordx4 v[{KP+4}:{KP+7}], v2, s[12:15], s30 offen offset:1024 sc1")
        a("v_lshrrev_b32 v28, 1, v2")
        a(f"buffer_load_dwordx2 v[{VP+2}:{VP+3}], v28, s[12:15], s30 offen offset:2048 sc1")
        a("L_A_hret:")
        D.stamp("hl")
    def h_hl_out():
        a("L_A_poll:")
        a("s_mov_b32 s31, 0")
        a("L_A_poll1:")
        a("s_add_u32 s31, s31, 1")
        a("s_sleep 2")
        a("buffer_load_dword v24, v139, s[12:15], s46 offen sc1")
        a("s_waitcnt vmcnt(0)")
        a("v_readfirstlane_b32 s28, v24")
        a(f"s_cmp_gt_u32 s31, {SPIN_MAX}")
        a("s_cbranch_scc1 L_A_go")
        a("s_cmp_ge_u32 s28, 2")
        a("s_cbranch_scc1 L_A_go")
        a("s_branch L_A_poll1")
        a("L_A_nohalo:")
        for r in range(8):
            a(f"v_mov_b32 v{KP+r}, v{KA+r}")
        for r in range(2, 4):
            a(f"v_mov_b32 v{VP+r}, v{VA+4+r}")
        a("s_branch L_A_hret")
    def h_mk():
        L = [[f"v_mov_b32 v{ONES}, {f2u(-1e30)}", "s_movk_i32 s90, 0xff", "s_movk_i32 s91, 0xff0"]]
        for r in range(16):
            cst = 8*(r//4) + (r % 4)
            x = [f"s_lshl_b64 s[92:93], s[90:91], {cst}"]
            if cst > 24: x.append(f"s_mov_b32 s93, {(0xff0 << cst) & 0xffffffff}")
            L.append(x + [f"v_cndmask_b32_e64 v{MC+r}, v{ONES}, 0, s[92:93]"])
        for b in range(4):
            L.append(["s_cmp_eq_u32 s23, 0", f"s_cselect_b32 s92, 0, {(1 << b) - 1}", f"s_cselect_b32 s93, 0, {(16 << b) - 1}",
                      f"v_cndmask_b32_e64 v{MP+12+b}, v{ONES}, 0, s[92:93]"])
        L += [[f"v_mov_b32 v{ONES+r}, 0x3f803f80"] for r in range(4)]
        L += [[f"v_mov_b64 v[{PP}:{PP+1}], 0"], [f"v_mov_b64 v[{VP}:{VP+1}], 0"]]
        return L
    def at_head(e, exact):
        a(mfma(SC, KA+4*e, QA+4*e, MC))
        a(mfma(SP, KP+4*e, QA+4*e, MP))
        a("s_nop 7")
        a("s_nop 2")
        sregs = [SC+r for r in range(16)] + [SP+12+b for b in range(4)]
        if exact:
            a(f"v_max3_f32 v26, v{SC}, v{SC+1}, v{SC+2}")
            a(f"v_max3_f32 v27, v{SC+3}, v{SC+4}, v{SC+5}")
            a(f"v_max3_f32 v26, v26, v{SC+6}, v{SC+7}")
            a(f"v_max3_f32 v27, v27, v{SC+8}, v{SC+9}")
            a(f"v_max3_f32 v26, v26, v{SC+10}, v{SC+11}")
            a(f"v_max3_f32 v27, v27, v{SC+12}, v{SC+13}")
            a(f"v_max3_f32 v26, v26, v{SC+14}, v{SC+15}")
            a(f"v_max3_f32 v27, v27, v{SP+12}, v{SP+13}")
            a(f"v_max3_f32 v26, v26, v{SP+14}, v{SP+15}")
            a("v_max_f32 v26, v26, v27")
            a("v_mov_b32 v27, v26")
            a("s_nop 1")
            a("v_permlane32_swap_b32 v26, v27")
            a("s_nop 1")
            a("v_max_f32 v26, v26, v27")
            for r in sregs:
                a(f"v_sub_f32 v{r}, v{r}, v26")
        for r in sregs:
            a(f"v_exp_f32 v{r}, v{r}")
        a(f"v_cvt_pk_bf16_f32 v{PP+2}, v{SP+12}, v{SP+13}")
        for i in range(8):
            a(f"v_cvt_pk_bf16_f32 v{SC+i}, v{SC+2*i}, v{SC+2*i+1}")
        a(f"v_cvt_pk_bf16_f32 v{PP+3}, v{SP+14}, v{SP+15}")
        a("s_nop 0")
        a(mfma(LL, ONES, SC, "0"))
        a(mfma(OA, VA, SC, "0"))
        a(mfma(LL, ONES, SC+4))
        a(mfma(OA, VA+4, SC+4))
        a(mfma(LL, ONES, PP))
        a(mfma(OA, VP, PP))
        a("s_nop 7")
        a("s_nop 2")
        a(f"v_rcp_f32 v26, v{LL}")
    AFAST = opt.get("afast", 1)
    def h_at():
        a("s_lshl_b32 s30, s58, 15")
        a("s_lshl_b32 s28, s59, 11")
        a("s_add_u32 s30, s30, s28")
        a(f"s_add_u32 s30, s30, {WS_OA}")
        a(f"s_mov_b32 s31, {f2u(2.0**80)}")
        a("s_waitcnt vmcnt(0)")
        for e in range(2):
            at_head(e, not AFAST)
            a("s_nop 0")
            if AFAST:
                a(f"v_add_f32 v27, v26, v{LL}")
                a("v_cmp_nlt_f32 vcc, v27, s31")
                a("s_nop 1")
                a(f"s_cbranch_vccnz L_atx{e}")
                a(f"L_atr{e}:")
            a("v_mul_f32 v26, v26, v136")
            for r in range(8):
                a(f"v_mul_f32 v{OA+8*e+r}, v{OA+8*e+r}, v26")
            for i in range(4):
                a(f"v_cvt_pk_bf16_f32 v{28+i}, v{OA+8*e+2*i}, v{OA+8*e+2*i+1}")
            a(f"buffer_store_dwordx4 v[28:31], v2, s[12:15], s30 offen offset:{1024*e} sc1")
        D.stamp("Aattn")
    def h_at_out():
        for e in range(2 if AFAST else 0):
            a(f"L_atx{e}:")
            at_head(e, True)
            a("s_nop 0")
            a(f"s_branch L_atr{e}")
    c = Seg()
    G1 = opt.get("g1", 14); G2C, G2L = opt.get("g2c", 24), opt.get("g2l", 24)
    assert G1 <= 14 and G1 < G2C <= 30 and G1 < G2L <= 30
    order = [("hs", 8, h_hs), ("f2", 12, h_f(2)), ("G1", G1, h_G1c), ("pl", 20, h_pl), ("G2", G2C, h_G2c),
             ("hl", 24, h_hl), ("at", 28, h_at)]
    pos = {nm: opt.get(nm, d) if nm[0] != "G" else d for nm, d, _ in order}
    assert pos["hs"] < pos["f2"] <= pos["pl"] < pos["hl"] < pos["at"] < CM and opt.get("mk1", 24) <= pos["at"] and pos["hs"] < pos["at"]
    assert not pos["pl"] <= pos["hs"] <= pos["hl"]
    for nm, d, f in order: c.at(pos[nm], f)
    c.spread(h_mk(), opt.get("mk0", 14), opt.get("mk1", 24))
    c.spread(tail_params(108, 109, 110) + [["v_xor_b32 v7, s88, v2"]], opt.get("tp0", 0), opt.get("tp1", 12))
    c.sl(max(pos["at"], opt.get("sn1c", 29)), 1, snap1)
    ratchet(c, G1, CP0); ratchet(c, G2C, CP0)
    prios(c, 0, CM, ("c1", "c2", "c3"))
    F3 = opt.get("f3", CM)
    if F3 < CM: c.at(F3, h_f(3))
    run(c, 0, CM)
    if F3 >= CM: h_f(3)()
    a("s_branch L_common")

    def ready2():
        return ["v_add_u32 v29, -1, v30",
                "v_cmp_gt_u32 vcc, 3, v29",
                "s_nop 0",
                "s_lshr_b32 s28, vcc_lo, 1",
                "s_and_b32 s28, s28, vcc_lo",
                "s_and_b32 s28, s28, 0x5555",
                "s_or_b32 s43, s43, s28"]
    def issue_a(n):
        L = []
        if n > 2:
            L += ["s_andn2_b32 s28, s42, s43", f"s_cbranch_scc0 L_r{n}"] + ready2()
            L += ["s_andn2_b32 s28, s42, s43", f"s_cbranch_scc0 L_r{n}",
                  "s_mul_i32 exec_lo, s28, 3", "s_mov_b32 exec_hi, 0",
                  "buffer_load_dword v30, v31, s[12:15], s45 offen sc1",
                  "s_mov_b64 exec, -1", f"L_r{n}:"]
        return L + ["s_and_b32 s34, s43, s42", f"s_cbranch_scc0 L_pa{n}"] + pair_a() + ["s_add_u32 s44, s44, 1", f"L_pa{n}:"]
    def issue_b(n):
        return ["s_cmp_eq_u32 s34, 0", f"s_cbranch_scc1 L_pb{n}"] + pair_b() + [f"L_pb{n}:"]
    def h_Gl(k, need):
        def f():
            a(f"s_cmp_lt_u32 s44, {need}")
            a(f"s_cbranch_scc1 L_slow{k}")
            a(f"L_slow{k}_ret:")
            a("s_waitcnt vmcnt(0)")
            a("s_barrier")
            D.stamp("G" if k == 1 else "G2")
        return f
    def slow(k, need):
        a(f"L_slow{k}:")
        a("s_and_b32 s34, s43, s42")
        a(f"s_cbranch_scc0 L_slp{k}")
        for l in pair_a() + pair_b(): a(l)
        a("s_add_u32 s44, s44, 1")
        a(f"s_cmp_ge_u32 s44, {need}")
        a(f"s_cbranch_scc1 L_slow{k}_ret")
        a(f"s_branch L_slow{k}")
        a(f"L_slp{k}:")
        a("s_add_u32 s47, s47, 1")
        a(f"s_cmp_gt_u32 s47, {SPIN_MAX*4}")
        a("s_cselect_b32 s43, 0x5555, s43")
        a("s_sleep 2")
        a("s_mov_b32 exec_lo, 0xffff")
        a("s_mov_b32 exec_hi, 0")
        a("buffer_load_dword v30, v31, s[12:15], s45 offen sc1")
        a("s_mov_b64 exec, -1")
        a("s_waitcnt vmcnt(0)")
        for l in ready2(): a(l)
        a(f"s_branch L_slow{k}")
    l = Seg()
    IP = [opt.get(f"ip{n}", d) for n, d in zip(range(2, 8), (0, 3, 7, 10, 14, 17))]
    for n, t in zip(range(2, 8), IP):
        assert t + 1 < G2L and t + 1 != G1
        l.sl(t, 0, issue_a(n)); l.sl(t + 1, 0, issue_b(n))
    sent = [f"v_mov_b32 v{24+r}, -1" for r in range(4)] + [f"s_sub_u32 s28, s57, {1 << 15}",
            "buffer_store_dwordx4 v[24:27], v2, s[12:15], s57 offen sc1",
            "buffer_store_dwordx4 v[24:27], v2, s[12:15], s28 offen sc1"]
    l.sl(opt.get("sent", 2), 1, sent)
    l.at(G1, h_Gl(1, 4)); l.at(G2L, h_Gl(2, 8))
    l.spread(tail_params(108, 109, 110), opt.get("tp0", 0), opt.get("tp1", 12))
    l.sl(20, 2, "v_xor_b32 v7, s88, v2")
    l.sl(opt.get("sn1l", 29), 1, snap1)
    ratchet(l, G1, LP0); ratchet(l, G2L, LP0)
    prios(l, 0, CM, ("l1", "l2", "l3"))
    a(".p2align 6")
    a("L_lseg:")
    run(l, 0, CM, ["s_waitcnt vmcnt(0)"])

    a("L_common:")
    m = Seg()
    m.at(CM, [f"v_cmp_gt_u32 vcc, 2, v{SN1}", "s_nop 0", "s_and_b32 s75, vcc_hi, 0xff00ff00", "s_or_b32 s75, s75, vcc_lo",
              "s_cbranch_scc1 L_c1", "L_c1_ret:"])
    prios(m, CM, 64, ("c1", "c2", "c3"))
    def wl(br, k):
        L = []
        if k % 4 == 0:
            L += [f"s_add_u32 s{76+pct}, s{70+pct}, {br*512*1024 + 1024*k}" for pct in range(2)]
        L = [L + [("ld", f"w{br}0{k}", f"buffer_load_dwordx4 v[{WF+4*k}:{WF+4*k+3}], v7, s[12:15], s76 offen offset:{(k%4)*1024} sc1")]]
        L += [[("ld", f"w{br}1{k}", f"buffer_load_dwordx4 v[{WF+32+4*k}:{WF+32+4*k+3}], v7, s[12:15], s77 offen offset:{(k%4)*1024} sc1")]]
        return L
    def oload_s(k): return f"buffer_load_dwordx4 v[{OF[k]}:{OF[k]+3}], v2, s[12:15], s{30 + k//4} offen offset:{(k%4)*1024} sc1"
    WA0, WA1, SN2T, CK2 = opt.get("wa0", CM), opt.get("wa1", 44), opt.get("sn2", 40), opt.get("ck2", 44)
    OA1, MM0 = opt.get("oa1", 50), opt.get("mm0", 48)
    m.spread(sum([wl(0, k) for k in range(8)], []), WA0, WA1)
    m.sl(SN2T, 2, ("ld", "sn2", snap2))
    m.at(CK2, [("wait", "sn2"), f"v_cmp_ne_u32 vcc, 3, v{SN2}", "v_and_b32 v24, 31, v1", "s_and_b32 s75, vcc_hi, 0x00ff00ff",
               "s_cbranch_scc1 L_c2", "L_c2_ret:", "v_lshlrev_b32 v24, 2, v24",
               ("ld", "gate", f"buffer_load_dword v{GB}, v24, s[12:15], s74 offen sc1"),
               f"s_add_u32 s30, s72, {WS_OA}", f"s_add_u32 s31, s72, {WS_OA + 4096}"])
    m.spread([[("ld", f"oa{k}", oload_s(k))] for k in range(8)], CK2, OA1)
    assert WA1 <= MM0
    for k in range(8):
        w = wl(1, k)
        m.sl(MM0 + k, 1, [("wait", f"oa{k}"), mfma(AC[0], WF+4*k, OF[k], "0" if k == 0 else None)] + w[0])
        m.sl(MM0 + k, 2, [mfma(AC[1], WF+32+4*k, OF[k], "0" if k == 0 else None)] + w[1])
    tp = [f"v_add_u32 v{27+p}, s{83+p}, v2" for p in range(1, 5)]
    tp += ["v_and_b32 v6, 31, v1", "v_lshlrev_b32 v6, 11, v6", "v_lshrrev_b32 v138, 5, v1", "v_lshl_add_u32 v6, v138, 4, v6",
           f"s_add_u32 s30, s72, {WS_OB}", f"s_add_u32 s31, s72, {WS_OB + 4096}", f"s_mov_b32 s40, {f2u(2.0**80)}",
           "s_mov_b32 s33, 0xff", "s_mov_b32 s34, 0"]
    m.spread(tp, max(MM0 + 8, 58), 63)
    run(m, CM, 64, [("wait", "gate")])
    a("L_loopend:")
    a("s_waitcnt lgkmcnt(0)")
    a(mfma(O, V0, P[1]))
    a(mfma(O, V1, P[1]+4))
    if opt.get("tprio", 3): a(f"s_setprio {opt.get('tprio', 3)}")
    D.stamp("loopend")
    a("s_nop 7")
    a("s_nop 4")
    a(f"v_rcp_f32 v27, v{O+8}")
    a(f"v_fma_f32 v26, v{O}, 0, v{O+8}")
    for r in range(1, 8):
        a(f"v_fma_f32 v26, v{O+r}, 0, v26")
    a("v_add_f32 v26, v26, v27")
    a("v_cmp_nlt_f32 vcc, v26, s40")
    a("s_cmp_eq_u32 s38, 0")
    a("s_cbranch_scc0 L_fin")
    a("s_nop 1")
    a("s_cbranch_vccnz L_fallback")
    a("L_fin:")
    a(f"v_mul_f32 v27, v27, v{GB}")
    for r in range(8):
        a(f"v_mul_f32 v{O+r}, v{O+r}, v27")
    for i in range(4):
        a(f"v_cvt_pk_bf16_f32 v{O+i}, v{O+2*i}, v{O+2*i+1}")
    for i in range(4):
        a(f"v_min_u32 v{O+i}, -2, v{O+i}")
    a(f"buffer_store_dwordx4 v[{O}:{O+3}], v2, s[12:15], s57 offen sc1")
    D.stamp("ost")

    a("s_cmp_ge_u32 s20, 4")
    a("s_cbranch_scc0 L_t0")
    a("s_barrier")
    a("L_t0:")
    a("s_waitcnt vmcnt(0)")
    def oload(k): a(oload_s(k))
    def ocheck(k, skip, sm=33):
        a(f"v_max3_u32 v24, v{OF[k]}, v{OF[k]+1}, v{OF[k]+2}")
        a(f"v_max_u32 v24, v24, v{OF[k]+3}")
        a("v_cmp_eq_u32 vcc, -1, v24")
        a("s_nop 0")
        a(f"s_cbranch_vccnz {skip}")
        a(mfma(AC[0], WF+4*k, OF[k]))
        a(mfma(AC[1], WF+32+4*k, OF[k]))
        a(f"s_bitset0_b32 s{sm}, {k}")
        a(f"{skip}:")
    D.stamp("tp0")
    for k in range(8): oload(k)
    for k in range(8):
        a(f"s_waitcnt vmcnt({7-k})")
        ocheck(k, f"L_ck{k}")
    D.stamp("tr1")
    if D.on: a("v_writelane_b32 v0, s33, 59")
    a("L_tchk:")
    a("s_cmp_eq_u32 s33, 0")
    a("s_cbranch_scc0 L_tre")
    a("L_tgo:")
    D.stamp("polled")
    if D.on: a("v_writelane_b32 v0, s34, 60")
    a("s_nop 7")
    a("s_nop 3")
    for p in range(1, 4):
        for part in range(2):
            r = AC[0] + 8*p + 4*part
            a(f"ds_write_b128 v{27+p}, v[{r}:{r+3}] offset:{1024*part}")
    a("s_waitcnt lgkmcnt(0)")
    a("s_barrier")
    D.stamp("x2")
    for i in range(6):
        a(f"ds_read_b128 v[{32+4*i}:{35+4*i}], v31 offset:{1024*i}")
    for p in range(3):
        a(f"s_waitcnt lgkmcnt({4-2*p})")
        for r in range(8):
            a(f"v_add_f32 v{AC[0]+r}, v{AC[0]+r}, v{32+8*p+r}")
    for i in range(4):
        a(f"v_cvt_pk_bf16_f32 v{32+i}, v{AC[0]+2*i}, v{AC[0]+2*i+1}")
    a("s_nop 1")
    a("v_permlane32_swap_b32 v32, v34")
    a("v_permlane32_swap_b32 v33, v35")
    a("s_nop 1")
    a("buffer_store_dwordx4 v[32:35], v6, s[80:83], s73 offen")
    D.stamp("fst")
    a("s_cmp_ge_u32 s20, 4")
    a("s_cbranch_scc1 L_t1")
    a("s_barrier")
    a("L_t1:")
    if D.on:
        a("s_waitcnt vmcnt(0)")
        D.stamp("end"); D.stamp("rtend", True, slot=63)
        D.flush()
    a("L_end:")
    a("s_endpgm")
    a("L_tre:")
    a("s_add_u32 s34, s34, 1")
    a(f"s_cmp_gt_u32 s34, {SPIN_MAX}")
    a("s_cbranch_scc1 L_tgo")
    if opt.get("tsleep", 1): a(f"s_sleep {opt.get('tsleep', 1)}")
    for k in range(8):
        a(f"s_bitcmp1_b32 s33, {k}")
        a(f"s_cbranch_scc0 L_rl{k}")
        oload(k)
        a(f"L_rl{k}:")
    a("s_waitcnt vmcnt(0)")
    for k in range(8):
        a(f"s_bitcmp1_b32 s33, {k}")
        a(f"s_cbranch_scc0 L_rk{k}")
        ocheck(k, f"L_rk{k}")
    a("s_branch L_tchk")
    slow(1, 4); slow(2, 8)
    h_hl_out()
    h_at_out()
    a("L_c1:")
    a("s_mov_b32 s79, 0")
    a("L_c1l:")
    a("s_add_u32 s79, s79, 1")
    a("s_sleep 2")
    a(snap1)
    a("s_waitcnt vmcnt(0)")
    a(f"v_cmp_gt_u32 vcc, 2, v{SN1}")
    a(f"s_cmp_gt_u32 s79, {SPIN_MAX}")
    a("s_cbranch_scc1 L_c1_ret")
    a("s_and_b32 s75, vcc_hi, 0xff00ff00")
    a("s_or_b32 s75, s75, vcc_lo")
    a("s_cbranch_scc1 L_c1l")
    a("s_branch L_c1_ret")
    a("L_c2:")
    a("s_mov_b32 s79, 0")
    a("L_c2l:")
    a("s_add_u32 s79, s79, 1")
    a("s_sleep 2")
    a(snap2)
    a("s_waitcnt vmcnt(0)")
    a(f"v_cmp_ne_u32 vcc, 3, v{SN2}")
    a(f"s_cmp_gt_u32 s79, {SPIN_MAX}")
    a("s_cbranch_scc1 L_c2_ret")
    a("s_and_b32 s75, vcc_hi, 0x00ff00ff")
    a("s_cbranch_scc1 L_c2l")
    a("s_branch L_c2_ret")
    a("L_fallback:")
    a("s_mov_b32 s38, 1")
    a("v_mov_b32 v5, v2")
    a(f"v_subrev_u32 v3, {TS*48}, v3")
    a(f"v_subrev_u32 v4, {TS*48}, v4")
    a(f"v_mov_b32 v26, {f2u(-3.0e38)}")
    a("s_mov_b32 s39, 0")
    a("L_fb_loop:")
    a(f"ds_read_b128 v[{KF}:{KF+3}], v5")
    a(f"v_add_u32 v5, {TS}, v5")
    a("s_waitcnt lgkmcnt(0)")
    a(mfma(S[0], KF, Q, "0"))
    a("s_nop 7")
    a("s_nop 3")
    for i in range(8):
        a(f"v_max3_f32 v26, v26, v{S[0]+2*i}, v{S[0]+2*i+1}")
    a("s_add_u32 s39, s39, 1")
    a("s_cmp_lt_u32 s39, 64")
    a("s_cbranch_scc1 L_fb_loop")
    a("v_mov_b32 v5, v2")
    a("v_mov_b32 v27, v26")
    a("s_nop 1")
    a("v_permlane32_swap_b32 v26, v27")
    a("s_nop 1")
    a("v_max_f32 v26, v26, v27")
    for r in range(16):
        a(f"v_sub_f32 v{NM+r}, 0, v26")
    zero_state()
    a("ds_read_b128 v[24:27], v5")
    a(f"ds_read_b128 v[{KF}:{KF+3}], v5 offset:{TS}")
    a("s_waitcnt lgkmcnt(0)")
    a(mfma(S[0], 24, Q, NM))
    a("s_mov_b32 s39, 0")
    a("s_nop 7")
    a("s_nop 3")
    a("L_fb2:")
    for x in tile(0, {}, NM, True): a(x)
    for x in tile(1, {}, NM, True): a(x)
    for r in (5, 3, 4): a(f"v_add_u32 v{r}, {2*TS}, v{r}")
    a("s_add_u32 s39, s39, 1")
    a("s_cmp_lt_u32 s39, 32")
    a("s_cbranch_scc1 L_fb2")
    a("s_branch L_loopend")
    if D.on:
        json.dump(D.names, open("names3.json", "w"))
        opt["_names"] = D.names
    return 256

HEADER = open("gated_mix__sliding_local_dilated__softmax_full_mha__prompt.s.ref").read().split("; Override launch")[0]

def main(out, opt):
    a = Asm()
    n = gen(a, opt)
    a("L_code_end:")
    a("s_endpgm")
    s = HEADER
    s += "; generated by gen/gen15.py (hand-written generator)\n"
    if "_names" in opt: s += "; NAMES " + json.dumps(opt["_names"]) + "\n"
    s += "; @launch grid=(256,1,1) block=(512,1,1) lds=163840\n"
    s += '.amdgcn_target "amdgcn-amd-amdhsa--gfx950"\n.text\n'
    s += a.text()
    s += kd("KNAME", n)
    open(out, "w").write(s.replace("KNAME", KN))

if __name__ == "__main__":
    out = sys.argv[1] if len(sys.argv) > 1 else "gated_mix__sliding_local_dilated__softmax_full_mha__prompt.s"
    opt = {}
    for kv in sys.argv[2:]:
        k, v = kv.split("=")
        opt[k] = int(v)
    main(out, opt)
```

```python
import sys, os, subprocess, struct, ctypes
sys.path.insert(0, "cdna_kernels")
import numpy as np

HEAD = """; @launch grid=(256,1,1) block=(256,1,1) lds=0
.amdgcn_target "amdgcn-amd-amdhsa--gfx950"
.text
.globl mb_kernel
.p2align 8
.type mb_kernel,@function
mb_kernel:
    s_load_dwordx2 s[4:5], s[0:1], 0
    s_load_dwordx2 s[6:7], s[0:1], 8
    v_lshrrev_b32 v1, 6, v0
    s_nop 0
    v_readfirstlane_b32 s20, v1
    s_waitcnt lgkmcnt(0)
    s_mov_b32 s8, s4
    s_mov_b32 s9, s5
    s_mov_b32 s10, 0x100000
    s_mov_b32 s11, 0x00020000
    s_mov_b32 s12, s6
    s_mov_b32 s13, s7
    s_mov_b32 s14, 0x1000000
    s_mov_b32 s15, 0x00020000
"""
TAIL = """
    s_sub_u32 s24, s26, s24
    s_subb_u32 s25, s27, s25
    s_lshl_b32 s3, s2, 4
    s_add_u32 s3, s3, s20
    s_lshl_b32 s3, s3, 2
    v_mov_b32 v2, s3
    v_mov_b32 v3, s24
    v_cmp_eq_u32 vcc, 0, v200
    v_and_b32 v4, 63, v0
    v_cmp_eq_u32 vcc, 0, v4
    s_and_saveexec_b64 s[30:31], vcc
    buffer_store_dword v3, v2, s[8:11], 0 offen
    s_waitcnt vmcnt(0)
    s_endpgm
.section .rodata,"a"
.p2align 6
.amdhsa_kernel mb_kernel
  .amdhsa_next_free_vgpr {nvgpr}
  .amdhsa_next_free_sgpr 102
  .amdhsa_accum_offset {accum}
  .amdhsa_group_segment_fixed_size 0
  .amdhsa_kernarg_size 16
  .amdhsa_user_sgpr_count 2
  .amdhsa_user_sgpr_kernarg_segment_ptr 1
  .amdhsa_system_sgpr_workgroup_id_x 1
.end_amdhsa_kernel
"""

def make(body_init, body_loop, iters, nvgpr=128, block=256):
    s = HEAD.replace("block=(256,1,1)", f"block=({block},1,1)")
    s += body_init + "\n"
    s += "    s_barrier\n    s_mov_b32 s21, 0\n    s_memtime s[24:25]\n    s_waitcnt lgkmcnt(0)\n"
    s += ".p2align 6\nL_loop:\n" + body_loop + f"\n    s_add_u32 s21, s21, 1\n    s_cmp_lt_u32 s21, {iters}\n    s_cbranch_scc1 L_loop\n"
    s += "    s_nop 15\n    s_nop 15\n    s_memtime s[26:27]\n    s_waitcnt lgkmcnt(0)\n"
    t = TAIL.replace("v200", "v0").format(nvgpr=nvgpr, accum=((nvgpr+3)//4)*4)
    return s + t

def build(name, asm):
    from cdna_launch import with_harness_metadata
    full = with_harness_metadata(asm, "mb_kernel", 2)
    open(f"{name}.hs", "w").write(full)
    r = subprocess.run(["clang", "-x", "assembler", "-target", "amdgcn-amd-amdhsa", "-mcpu=gfx950", f"{name}.hs", "-o", f"{name}.co"], capture_output=True, text=True)
    if r.returncode != 0:
        print(r.stderr[:1500]); raise SystemExit(1)
    return f"{name}.co"

def run(co, grid, block, lds=0, reps=3):
    from cdna_launch import AsmKernel, DeviceBuffer, pack_ptr_kernargs, _hip
    k = AsmKernel(co, "mb_kernel")
    out = DeviceBuffer.from_numpy(np.zeros(0x40000, dtype=np.uint32))
    inp = DeviceBuffer.from_numpy((np.random.randn(0x400000)).astype(np.float32))
    ka = pack_ptr_kernargs([out.ptr, inp.ptr])
    res = None
    for r in range(reps):
        k.launch((grid,1,1), (block,1,1), ka, lds)
        _hip.hipDeviceSynchronize()
        o = out.to_numpy(np.uint32, (0x40000,))
        nw = block // 64
        res = o[:grid*16].reshape(grid, 16)[:, :nw]
    k.unload()
    return res
```

```python
import sys
from mb_lib import *
ITERS=50
tests = {}
init = "\n".join(f"    v_mov_b32 v{i}, 0" for i in range(2, 128))
init += "\n    v_lshlrev_b32 v120, 4, v0\n    v_and_b32 v120, 0x3fff, v120\n"
def tile(cur, nxt, P, v):
    L = []
    Pp = 72 if P == 64 else 64
    qk = f"v_mfma_f32_32x32x16_bf16 v[{nxt}:{nxt+15}], v[8:11], v[12:15], 0"
    pv0 = f"v_mfma_f32_32x32x16_bf16 v[80:95], v[16:19], v[{Pp}:{Pp+3}], v[80:95]"
    pv1 = f"v_mfma_f32_32x32x16_bf16 v[80:95], v[20:23], v[{Pp+4}:{Pp+7}], v[80:95]"
    sm32 = f"v_smfmac_f32_32x32x32_bf16 v[80:95], v[16:19], v[{Pp}:{Pp+7}], v24"
    sm16 = f"v_smfmac_f32_16x16x64_bf16 v[96:99], v[20:23], v[{Pp}:{Pp+7}], v25"
    d16a = f"v_mfma_f32_16x16x32_bf16 v[96:99], v[20:23], v[{Pp}:{Pp+3}], v[96:99]"
    d16b = f"v_mfma_f32_16x16x32_bf16 v[100:103], v[20:23], v[{Pp+4}:{Pp+7}], v[100:103]"
    ex = [f"v_exp_f32 v{cur+i}, v{cur+i}" for i in range(16)]
    cv = [f"v_cvt_pk_bf16_f32 v{P+i}, v{cur+2*i}, v{cur+2*i+1}" for i in range(8)]
    m = {"A": (qk, pv0, pv1), "S1": (qk, sm32, None), "S2": (qk, sm32, sm16), "Q": (qk, None, None),
         "D16": (qk, d16a, d16b), "S16": (qk, sm16, None), "S1b": (qk, None, sm32), "N": (None, None, None),
         "P1": (qk, pv0, None)}[v]
    if m[0]: L.append(m[0])
    L.append("ds_read_b128 v[8:11], v120")
    L += ex[0:4] + [cv[0]] + ex[4:6]+ [cv[1]]
    if m[1]: L.append(m[1])
    L.append("ds_read_b128 v[16:19], v120 offset:1024")
    L += ex[6:8] + [cv[2]] + ex[8:10] + [cv[3]] + ex[10:12] + [cv[4]]
    if m[2]: L.append(m[2])
    if v in ("A",): L.append("ds_read_b128 v[20:23], v120 offset:2048")
    L += ex[12:14] + [cv[5]] + ex[14:16] + [cv[6]] + ["s_waitcnt lgkmcnt(1)", cv[7]]
    return "\n".join("    "+x for x in L)
for v in ["A", "S1", "S1b", "S2", "Q", "P1", "D16", "S16", "N"]:
    body = "\n".join(tile(32, 48, 64, v) + "\n" + tile(48, 32, 72, v) for _ in range(4))
    tests[v] = (init, body, 8)
if len(sys.argv) > 1 and sys.argv[1] == "build":
    for n,(i,l,c) in tests.items():
        build("b16_"+n, make(i,l,ITERS, block=1024))
else:
    for n,(i,l,c) in tests.items():
        s = f"{n:12s}"
        for block in (256, 512, 1024):
            r = run("b16_"+n+".co", 256, block, lds=100*1024)
            d = ITERS*c*(block//256)
            s += f"  w{block//256}: cyc/tile max={r.max()/d:6.1f}"
        print(s)
```
